```python
import torch

def _softmax(x, axis=-1):
    return torch.softmax(x, dim=axis)
def _gelu(x):
    return torch.nn.functional.gelu(x, approximate="tanh")
def _silu(x):
    return torch.nn.functional.silu(x)
def _sigmoid(x):
    return torch.sigmoid(x)
def _layernorm(x, axis=-1, eps=1e-5):
    m = x.mean(dim=axis, keepdim=True)
    v = x.var(dim=axis, keepdim=True, unbiased=False)
    return (x - m) / torch.sqrt(v + eps)
def _scatter_add(tgt, idx, src, axis=0):
    return tgt.clone().index_add_(axis, idx, src)
def _segment_sum(src, seg, n):
    out = torch.zeros((n,) + src.shape[1:], dtype=src.dtype)
    return out.index_add_(0, seg, src)
def _pad(x, pw):
    flat = tuple(v for pair in reversed(pw) for v in pair)
    return torch.nn.functional.pad(x, flat)

kernel_name = 'concat_heads__ssm_conv_s4__linear_kernel_hedgehog__prompt'

def setup_inputs():

    _w = (lambda a: (lambda t: t.to(torch.bfloat16) if t.is_floating_point() else t)(torch.as_tensor(a)))
    def _A_setup():
        B, L, D, N = 1, 2048, 448, 256
        A_re = -(lambda _x: torch.exp(torch.as_tensor(_x)))((lambda *s: torch.randn(*s, dtype=torch.bfloat16) * 3.2)(D, N))
        A_im = torch.pi * (lambda *s: torch.randn(*s, dtype=torch.bfloat16) * 0.2)(D, N)
        B_re = (lambda *s: torch.randn(*s, dtype=torch.bfloat16) * 0.4)(D, N)
        B_im = (lambda *s: torch.randn(*s, dtype=torch.bfloat16) * 0.4)(D, N)
        C_re = (lambda *s: torch.randn(*s, dtype=torch.bfloat16) * 0.4)(D, N)
        C_im = (lambda *s: torch.randn(*s, dtype=torch.bfloat16) * 0.4)(D, N)
        log_dt = (lambda *s: torch.randn(*s, dtype=torch.bfloat16) * 0.2)(D) * 0.5 - 4.0
        Dskip = (lambda *s: torch.randn(*s, dtype=torch.bfloat16) * 0.4)(D)
        return {
            "u": _w((lambda *s: torch.randn(*s, dtype=torch.bfloat16) * 0.05)(B, L, D)),
            "A_re": _w(A_re),
            "A_im": _w(A_im),
            "B_re": _w(B_re),
            "B_im": _w(B_im),
            "C_re": _w(C_re),
            "C_im": _w(C_im),
            "log_dt": _w(log_dt),
            "Dskip": _w(Dskip),
        }
    _A_in = _A_setup()

    def _B_setup():
        B, S, D, H = 1, 2048, 448, 16
        Dh = D // H
        return {
            "x": _w((lambda *s: torch.randn(*s, dtype=torch.bfloat16) * 0.4)(B, S, D)),
            "wqkv": _w((lambda *s: torch.randn(*s, dtype=torch.bfloat16) * 0.4)(D, 3 * D)),
            "w_phi": _w((lambda *s: torch.randn(*s, dtype=torch.bfloat16) * 0.4)(H, Dh, Dh) * (Dh ** -0.5)),
            "wo": _w((lambda *s: torch.randn(*s, dtype=torch.bfloat16) * 0.05)(D, D)),
        }
    _B_in = _B_setup()

    return {
        "A_u": _A_in["u"],
        "A_A_re": _A_in["A_re"],
        "A_A_im": _A_in["A_im"],
        "A_B_re": _A_in["B_re"],
        "A_B_im": _A_in["B_im"],
        "A_C_re": _A_in["C_re"],
        "A_C_im": _A_in["C_im"],
        "A_log_dt": _A_in["log_dt"],
        "A_Dskip": _A_in["Dskip"],
        "B_x": _B_in["x"],
        "B_wqkv": _B_in["wqkv"],
        "B_w_phi": _B_in["w_phi"],
        "B_wo": _B_in["wo"],
    }

def reference(A_u, A_A_re, A_A_im, A_B_re, A_B_im, A_C_re, A_C_im, A_log_dt, A_Dskip, B_x, B_wqkv, B_w_phi, B_wo):
    def _A_ref(u, A_re, A_im, B_re, B_im, C_re, C_im, log_dt, Dskip):
        Bsz, L, D = u.shape
        dt = torch.exp(log_dt)[:, None]
        A = A_re + 1j * A_im
        Bc = B_re + 1j * B_im
        Cc = C_re + 1j * C_im
        logdA = dt * A
        dB = dt * Bc
        l = (lambda x, dt: x.to(dt))(torch.arange(L), A_re.dtype)
        P = torch.exp(logdA[:, :, None] * l[None, None, :])
        K = torch.einsum("dn,dnl,dn->dl", Cc, P, dB).real
        L2 = 2 * L
        Kp = _pad(K, ((0, 0), (0, L)))
        up = (lambda x, *d: x.permute(*d))(u, 0, 2, 1)
        up = _pad(up, ((0, 0), (0, 0), (0, L)))
        Kf = (lambda x, axes=(-2,-1): torch.fft.rfft2(x.float(), dim=axes))(Kp[:, None, :], axes=(-2, -1))
        Uf = (lambda x, axes=(-2,-1): torch.fft.rfft2(x.float(), dim=axes))(up[:, :, None, :], axes=(-2, -1))
        Yf = Uf * Kf[None, :, :, :]
        y = (lambda x, s, axes=(-2,-1): torch.fft.irfft2(x, s=s, dim=axes).to(torch.bfloat16))(Yf, (1, L2), axes=(-2, -1))[:, :, 0, :L]
        y = (lambda x, *d: x.permute(*d))(y, 0, 2, 1) + u * Dskip[None, None, :]
        return y

    def _B_ref(x, wqkv, w_phi, wo):
        B, S, D = x.shape
        H = 16; Dh = D // H
        qkv = (lambda x, *d: x.permute(*d))((x @ wqkv).reshape(B, S, 3, H, Dh), 2, 0, 3, 1, 4)
        q, k, v = qkv[0], qkv[1], qkv[2]
        pq = torch.einsum("bhsd,hdf->bhsf", q, w_phi)
        pk = torch.einsum("bhsd,hdf->bhsf", k, w_phi)
        phi_q = torch.concatenate([_softmax(pq, axis=-1), _softmax(-pq, axis=-1)], axis=-1)
        phi_k = torch.concatenate([_softmax(pk, axis=-1), _softmax(-pk, axis=-1)], axis=-1)
        kv = torch.einsum("bhsf,bhsd->bhfd", phi_k, v)
        z  = torch.einsum("bhsf->bhf", phi_k)
        num = torch.einsum("bhqf,bhfd->bhqd", phi_q, kv)
        den = torch.einsum("bhqf,bhf->bhq", phi_q, z)[..., None] + 1e-6
        o = num / den
        return (lambda x, *d: x.permute(*d))(o, 0, 2, 1, 3).reshape(B, S, D) @ wo

    a = _A_ref(A_u, A_A_re, A_A_im, A_B_re, A_B_im, A_C_re, A_C_im, A_log_dt, A_Dskip)
    b = _B_ref(B_x, B_wqkv, B_w_phi, B_wo)
    return torch.concatenate([a, b], axis=-1)
```

```python
class Asm:
    def __init__(self):
        self.lines=[]; self.lab=0; self.vm=[]
    def __call__(self,s):
        for l in s.strip('\n').split('\n'):
            self.lines.append('  '+l.strip())
    def c(self,s): self.lines.append('  ; '+s)
    def label(self,name): self.lines.append(name+':')
    def newlabel(self,base='L'):
        self.lab+=1; return f'{base}_{self.lab}'
    def text(self): return '\n'.join(self.lines)+'\n'
    def vm_op(self,instr,tag=None):
        self(instr); self.vm.append(tag)
    def vm_wait(self,tag,extra=''):
        hits=[i for i,t in enumerate(self.vm) if t==tag]
        if not hits:
            if extra: self('s_waitcnt'+extra)
            return
        idx=max(hits)
        n=len(self.vm)-1-idx
        assert n<=63, n
        self(f's_waitcnt vmcnt({n}){extra}')
        self.vm=self.vm[idx+1:]
    def vm_drain(self,extra=''):
        self(f's_waitcnt vmcnt(0){extra}'); self.vm=[]
    def nop(self,n):
        while n>0:
            k=min(n,16); self(f's_nop {k-1}'); n-=k
def vr(b,n=1):
    return f'v{b}' if n==1 else f'v[{b}:{b+n-1}]'
def sr(b,n=1):
    return f's{b}' if n==1 else f's[{b}:{b+n-1}]'
```

```python
import re,sys
def regs(tok):
    tok=tok.strip()
    m=re.fullmatch(r'([vsa])(\d+)',tok)
    if m: return [(m.group(1),int(m.group(2)))]
    m=re.fullmatch(r'([vsa])\[(\d+):(\d+)\]',tok)
    if m: return [(m.group(1),i) for i in range(int(m.group(2)),int(m.group(3))+1)]
    if tok=='vcc': return [('s','vcc')]
    if tok=='exec': return [('s','exec')]
    if tok=='m0': return [('s','m0')]
    return []
TRANS=('v_exp_f32','v_log_f32','v_rcp_f32','v_rsq_f32','v_sqrt_f32','v_sin_f32','v_cos_f32')
def parse(line):
    l=line.split(';')[0].strip()
    if not l or l.endswith(':') or l.startswith('.'): return None
    parts=l.split(None,1); op=parts[0]; ops=[]
    if len(parts)>1:
        s=parts[1]; ops=[x.strip() for x in re.split(r',(?![^\[]*\])',s)]
        last=ops[-1].split()
        if last: ops[-1]=last[0]
        mods=' '.join(last[1:])
    else: mods=''
    op=re.sub(r'_e(32|64)$','',op)
    return op,ops,mods
def rw(op,ops,mods):
    W=[];R=[]
    if op.startswith('v_mfma'):
        W=regs(ops[0]); R=regs(ops[1])+regs(ops[2])+regs(ops[3]); return W,R,'mfma'
    if op.startswith('v_cmp'):
        W=regs(ops[0]); R=sum((regs(o) for o in ops[1:]),[]); return W,R,'valu'
    if op.startswith('v_permlane'):
        W=regs(ops[0])+regs(ops[1]); R=W; return W,R,'perm'
    if op in('v_readfirstlane_b32','v_readlane_b32'):
        W=regs(ops[0]); R=regs(ops[1]); return W,R,'rfl'
    if op.startswith('v_'):
        W=regs(ops[0]); R=sum((regs(o) for o in ops[1:]),[])
        if op in('v_fmac_f32','v_fmamk_f32x'): R+=W
        if op=='v_cndmask_b32' and len(ops)==3: R+=[('s','vcc')]
        if op.startswith('v_add_co') or op.startswith('v_addc_co'): W+=regs(ops[1])
        return W,R,('trans' if op in TRANS else 'valu')
    if op.startswith('ds_read') or op.startswith('ds_bpermute'):
        W=regs(ops[0]); R=sum((regs(o) for o in ops[1:]),[]); return W,R,'dsr'
    if op.startswith('ds_write') or op.startswith('ds_add'):
        R=sum((regs(o) for o in ops),[]); return W,R,'dsw'
    if op.startswith('buffer_load') or op.startswith('global_load'):
        if 'lds' in mods.split() or op.startswith('global_load_lds'):
            R=sum((regs(o) for o in ops),[])+[('s','m0')]; return W,R,'dma'
        W=regs(ops[0]); R=sum((regs(o) for o in ops[1:]),[]); return W,R,'vld'
    if op.startswith('buffer_store') or op.startswith('global_store'):
        R=sum((regs(o) for o in ops),[]); return W,R,'vst'
    if op.startswith('s_'):
        if op in('s_waitcnt','s_nop','s_barrier','s_branch','s_endpgm','s_setprio','s_sleep') or op.startswith('s_cbranch'): return [],[],'sctl'
        if op.startswith('s_cmp'): return [],sum((regs(o) for o in ops),[]),'salu'
        if op.startswith('s_load') or op.startswith('s_mem'): return regs(ops[0]),sum((regs(o) for o in ops[1:]),[]),'smem'
        W=regs(ops[0]); R=sum((regs(o) for o in ops[1:]),[]); return W,R,'salu'
    return W,R,'other'
def lint(text):
    hist=[]
    t=0; errs=[]
    for ln,line in enumerate(text.split('\n'),1):
        p=parse(line)
        if p is None: continue
        op,ops,mods=p
        W,R,kind=rw(op,ops,mods)
        def need(pred,dist,why):
            for (t0,op0,W0,R0,k0,l0,ops0) in reversed(hist):
                if t-t0-1>=dist: break
                if pred(op0,W0,R0,k0,ops0):
                    errs.append(f'line {ln}: {line.strip()}  <- needs {dist} wait states after line {l0} ({op0}) [{why}], has {t-t0-1}')
        Rs=set(R); Ws=set(W)
        isvalu=lambda k: k in('valu','trans','perm','rfl')
        if kind=='mfma':
            need(lambda o,w,r,k,os: isvalu(k) and Rs&set(w),2,'VALU->MFMA src')
            AB=set(regs(ops[1])+regs(ops[2])); C=set(regs(ops[3]))
            need(lambda o,w,r,k,os: k=='mfma' and '32x32' in o and AB&set(w),12,'MFMA32 D->MFMA A/B')
            need(lambda o,w,r,k,os: k=='mfma' and '16x16' in o and AB&set(w),8,'MFMA16 D->MFMA A/B')
            need(lambda o,w,r,k,os: k=='mfma' and '32x32' in o and C&set(w) and (C!=set(w) or o!=op),10,'MFMA32 D->MFMA C overlap')
            need(lambda o,w,r,k,os: k=='mfma' and '16x16' in o and C&set(w) and (C!=set(w) or o!=op),6,'MFMA16 D->MFMA C overlap')
        if kind in('valu','trans','perm','rfl','dsw','vst','dsr','vld','dma'):
            RW=Rs|(Ws if kind!='dsw' else set())
            need(lambda o,w,r,k,os: k=='mfma' and '32x32' in o and RW&set(w),12,'MFMA32 D->VALU/mem')
            need(lambda o,w,r,k,os: k=='mfma' and '16x16' in o and RW&set(w),8,'MFMA16 D->VALU/mem')
        if isvalu(kind):
            need(lambda o,w,r,k,os: k=='mfma' and '32x32' in o and Ws&set(regs(os[3])),7,'MFMA32 reads C -> VALU WAR')
            need(lambda o,w,r,k,os: k=='mfma' and '16x16' in o and Ws&set(regs(os[3])),3,'MFMA16 reads C -> VALU WAR')
            need(lambda o,w,r,k,os: k=='trans' and Rs&set(w) and kind!='trans',1,'trans->VALU')
            need(lambda o,w,r,k,os: isvalu(k) and any(x[0]=='s' for x in Rs&set(w)),2,'VALU writes SGPR->VALU reads')
            need(lambda o,w,r,k,os: k=='vst' and ('x4' in o or 'x3' in o) and Ws&set(regs(os[0] if o.startswith('buffer') else os[1])),2,'store data WAR')
        if kind=='perm':
            need(lambda o,w,r,k,os: isvalu(k) and Rs&set(w),2,'VALU->permlane')
        if kind=='rfl':
            need(lambda o,w,r,k,os: isvalu(k) and Rs&set(w),1,'VALU->readlane')
        if kind in('vld','vst','dma'):
            need(lambda o,w,r,k,os: isvalu(k) and any(x[0]=='s' for x in Rs&set(w)),5,'VALU writes SGPR->VMEM')
        if kind=='dma':
            need(lambda o,w,r,k,os: k=='salu' and ('s','m0') in w,1,'m0->DMA')
        if 'dpp' in op or 'row_' in mods:
            need(lambda o,w,r,k,os: isvalu(k) and Rs&set(w),2,'VALU->DPP')
        hist.append((t,op,W,R,kind,ln,ops))
        if len(hist)>40: hist.pop(0)
        if op=='s_nop': t+=int(ops[0])+1
        else: t+=1
    return errs
if __name__=='__main__':
    e=lint(open(sys.argv[1]).read())
    for x in e: print(x)
    print(len(e),'hazard findings')
```

```python
import sys
from asmlib import Asm, vr, sr
import lint
KN='concat_heads__ssm_conv_s4__linear_kernel_hedgehog__prompt_kernel'
PROF = '--prof' in sys.argv
NOA  = '--noA' in sys.argv
NOB  = '--noB' in sys.argv
NOCLR = '--noclr' in sys.argv
KST = '--kst' in sys.argv
ASTOP = [int(a.split('=')[1]) for a in sys.argv if a.startswith('--astop=')]
ASTOP = ASTOP[0] if ASTOP else 99
OUTF = [a for a in sys.argv[1:] if not a.startswith('--')]
OUTF = OUTF[0] if OUTF else 'out.s'

WS_EPOCH=0; WS_FLAGA1=0x10000; WS_FLAGA2=0x20000; WS_FLAGB2=0x30000
PSTR=8448; TSTR=8448
WS_PART=0x100000; WS_OBUF=WS_PART+256*PSTR; WS_RED=WS_OBUF+0x200000; CLR_KB=(256*PSTR+0x200000+0x10000)//1024
WS_UT=0x600000; WS_YT=0x800000; WS_PROF=0xA00000
WS_SIZE=0xC00000
NONCE_C=0x9E3779B9
LDS_BYTES=81920
NB=256; NA=224
SPIN=20000 if '--shortspin' not in sys.argv else 20
LOG2E=0x3fb8aa3b

A=Asm()
prof_n=[0]
def stamp(name):
    if not PROF: return
    i=prof_n[0]; prof_n[0]+=1
    assert i<32
    A(f's_memrealtime s[68:69]\ns_waitcnt lgkmcnt(0)\ns_mov_b32 s{70+i}, s68')
    A.c('stamp %d %s'%(i,name))
def prof_flush(srd_ws, wavereg):
    if not PROF: return
    n=prof_n[0]
    A(f's_lshl_b32 s68, s2, 2\ns_add_u32 s68, s68, s{wavereg}\ns_lshl_b32 s68, s68, 7\ns_add_u32 s68, s68, {WS_PROF}')
    A('s_mov_b64 exec, 1')
    for i in range(n):
        A(f'v_mov_b32 v10, s{70+i}\nv_mov_b32 v11, {4*i}')
        A(f'buffer_store_dword v10, v11, {sr(srd_ws,4)}, s68 offen')
        A('s_waitcnt vmcnt(0)')
    A('s_mov_b64 exec, -1')

def srd(dst, base, nrec):
    A(f's_mov_b32 s{dst}, s{base}\ns_and_b32 s{dst+1}, s{base+1}, 0xffff')
    if isinstance(nrec,int): A(f's_mov_b32 s{dst+2}, {nrec}')
    else: A(f's_mov_b32 s{dst+2}, {nrec}')
    A(f's_mov_b32 s{dst+3}, 0x20000')

S_X=8; S_W=12; S_WO=16; S_WP=20; S_WS=24; S_OUT=28
sN=32; sW=33; sRT=34; sA=35; sRB=36; sP=37; sT=38; sT2=39
sWB=48
sP112=49
sCP=50
sHI=58
sLO=60
sC2=62
sPART=64; sOB=65; sRED=66; sCNT=67
vXA0=1; vXA1=2; vWA=3; vXR=4; vWR=8; vL16=9
vT=10
accA=16; accB=32; wf=48; wpf=64; EP=72; EN=88; PK=104; vU=120
XF=128
SLOT=8192; NSLOT=7
L_PHI=57344; PHI_H=8704
L_WP=L_PHI
L_KVF=L_PHI

def dma(voff, srdb, soff, ldsbase_imm):
    A(f's_add_u32 m0, s{sWB}, {ldsbase_imm}')
    return f'buffer_load_dwordx4 v{voff}, {sr(srdb,4)}, s{soff} offen lds'

def issue_unit(u):
    slot=(u%NSLOT)*SLOT
    if u<14:
        c=u//2; isK=u&1
        sec=1
    elif u<21: c=u-14; isK=1; sec=2
    else: c=u-21; isK=1; sec=0
    if not isK:
        for j in range(2):
            A(f's_add_u32 m0, s{sWB}, {slot+j*1024}')
            A(f's_lshl_b32 s{sT}, s{sCP+c}, 7')
            A.vm_op(f'buffer_load_dwordx4 v{vXA0+j}, {sr(S_X,4)}, s{sT} offen lds', tag=('u',u))
    else:
        for j in range(2):
            A(f's_mul_i32 s{sT}, s{sCP+c}, 172032')
            A(f's_add_u32 s{sT}, s{sT}, s{sP112}')
            A(f's_add_u32 m0, s{sWB}, {slot+j*1024}')
            A(f's_add_u32 s{sT}, s{sT}, {sec*896+j*21504}')
            A.vm_op(f'buffer_load_dwordx4 v{vWA}, {sr(S_W,4)}, s{sT} offen lds', tag=('u',u))

def read_wfrags(u):
    slot=(u%NSLOT)*SLOT
    for kk in range(4):
        A(f'ds_read_b64_tr_b16 {vr(wf+4*kk,2)}, v{vWR} offset:{slot+2048*kk}')
        A(f'ds_read_b64_tr_b16 {vr(wf+4*kk+2,2)}, v{vWR} offset:{slot+2048*kk+512}')

def softmax(D, tagname):
    t=vT
    u=vU
    A.c('softmax '+tagname)
    for r in range(12,16): A(f'v_cndmask_b32 v{D+r}, v{D+r}, v{D}, {sr(sHI,2)}')
    for op,o in (('v_max3_f32',0),('v_min3_f32',4)):
        A(f'{op} v{u+o}, v{D}, v{D+1}, v{D+2}')
        A(f'{op} v{u+o+1}, v{D+3}, v{D+4}, v{D+5}')
        A(f'{op} v{u+o+2}, v{D+6}, v{D+7}, v{D+8}')
        A(f'{op} v{u+o+3}, v{D+9}, v{D+10}, v{D+11}')
    for op,o in (('v_max3_f32',0),('v_min3_f32',4)):
        A(f'{op} v{u+o}, v{u+o}, v{D+12}, v{D+13}')
        A(f'{op} v{u+o+1}, v{u+o+1}, v{D+14}, v{D+15}')
    for op,op2,o in (('v_max3_f32','v_max_f32',0),('v_min3_f32','v_min_f32',4)):
        A(f'{op} v{u+o}, v{u+o}, v{u+o+1}, v{u+o+2}')
    A(f'v_max_f32 v{u}, v{u}, v{u+3}\nv_min_f32 v{u+4}, v{u+4}, v{u+7}')
    A(f'v_mov_b32 v{u+1}, v{u}\nv_mov_b32 v{u+5}, v{u+4}\ns_nop 1')
    A(f'v_permlane32_swap_b32 v{u}, v{u+1}\nv_permlane32_swap_b32 v{u+4}, v{u+5}')
    A(f'v_max_f32 v{u}, v{u}, v{u+1}\nv_min_f32 v{u+4}, v{u+4}, v{u+5}')
    A(f'v_mul_f32 v{t}, s{sC2}, v{u}\nv_mul_f32 v{t+2}, s{sC2}, v{u+4}')
    for r in range(0,12,2):
        A(f'v_pk_fma_f32 {vr(EP+r,2)}, {vr(D+r,2)}, {sr(sC2,2)}, {vr(t,2)} op_sel_hi:[1,1,0] neg_lo:[0,0,1] neg_hi:[0,0,1]')
        A(f'v_pk_fma_f32 {vr(EN+r,2)}, {vr(D+r,2)}, {sr(sC2,2)}, {vr(t+2,2)} op_sel_hi:[1,1,0] neg_lo:[1,0,0] neg_hi:[1,0,0]')
    for k in range(2):
        r=12+2*k
        A(f'v_pk_fma_f32 {vr(u+2*k,2)}, {vr(D+r,2)}, {sr(sC2,2)}, {vr(t,2)} op_sel_hi:[1,1,0] neg_lo:[0,0,1] neg_hi:[0,0,1]')
        A(f'v_pk_fma_f32 {vr(u+4+2*k,2)}, {vr(D+r,2)}, {sr(sC2,2)}, {vr(t+2,2)} op_sel_hi:[1,1,0] neg_lo:[1,0,0] neg_hi:[1,0,0]')
    for r in range(12):
        A(f'v_exp_f32 v{EP+r}, v{EP+r}\nv_exp_f32 v{EN+r}, v{EN+r}')
    A(f's_mov_b64 exec, {sr(sLO,2)}')
    for k in range(4):
        A(f'v_exp_f32 v{EP+12+k}, v{u+k}\nv_exp_f32 v{EN+12+k}, v{u+4+k}')
    A('s_mov_b64 exec, -1')
    for E,o in ((EP,0),(EN,4)):
        A(f'v_pk_add_f32 {vr(u+o,2)}, {vr(E,2)}, {vr(E+2,2)}')
        A(f'v_pk_add_f32 {vr(u+o+2,2)}, {vr(E+4,2)}, {vr(E+6,2)}')
    for E,o in ((EP,0),(EN,4)):
        A(f'v_pk_add_f32 {vr(u+o,2)}, {vr(u+o,2)}, {vr(E+8,2)}')
        A(f'v_pk_add_f32 {vr(u+o+2,2)}, {vr(u+o+2,2)}, {vr(E+10,2)}')
    for E,o in ((EP,0),(EN,4)):
        A(f'v_pk_add_f32 {vr(u+o,2)}, {vr(u+o,2)}, {vr(E+12,2)}')
        A(f'v_pk_add_f32 {vr(u+o+2,2)}, {vr(u+o+2,2)}, {vr(E+14,2)}')
    for o in (0,4):
        A(f'v_pk_add_f32 {vr(u+o,2)}, {vr(u+o,2)}, {vr(u+o+2,2)}')
    A(f'v_add_f32 v{u}, v{u}, v{u+1}\nv_add_f32 v{u+4}, v{u+4}, v{u+5}')
    A(f'v_mov_b32 v{u+1}, v{u}\nv_mov_b32 v{u+5}, v{u+4}\ns_nop 1')
    A(f'v_permlane32_swap_b32 v{u}, v{u+1}\nv_permlane32_swap_b32 v{u+4}, v{u+5}')
    A(f'v_add_f32 v{u}, v{u}, v{u+1}\nv_add_f32 v{u+4}, v{u+4}, v{u+5}')
    A(f'v_rcp_f32 v{u}, v{u}\nv_rcp_f32 v{u+4}, v{u+4}\ns_nop 0')
    for r in range(0,16,2):
        A(f'v_pk_mul_f32 {vr(EP+r,2)}, {vr(EP+r,2)}, {vr(u,2)} op_sel_hi:[1,0]')
        A(f'v_pk_mul_f32 {vr(EN+r,2)}, {vr(EN+r,2)}, {vr(u+4,2)} op_sel_hi:[1,0]')
    for r in range(0,16,2):
        A(f'v_cvt_pk_bf16_f32 v{PK+r//2}, v{EP+r}, v{EP+r+1}')
        A(f'v_cvt_pk_bf16_f32 v{PK+8+r//2}, v{EN+r}, v{EN+r+1}')

def pack_and_phi(acc):
    for r in range(0,16,2):
        A(f'v_cvt_pk_bf16_f32 v{wf+r//2}, v{acc+r}, v{acc+r+1}')
    A(f'v_cndmask_b32 v{wf+6}, v{wf+6}, 0, {sr(sHI,2)}' .replace(', 0, ',', v15, ') )
    A(f'v_cndmask_b32 v{wf+7}, v{wf+7}, v15, {sr(sHI,2)}')
    A('s_nop 1')
    A(f'v_mfma_f32_32x32x16_bf16 {vr(acc,16)}, {vr(wpf,4)}, {vr(wf,4)}, 0')
    A(f'v_mfma_f32_32x32x16_bf16 {vr(acc,16)}, {vr(wpf+4,4)}, {vr(wf+4,4)}, {vr(acc,16)}')
    A.nop(16)

def poll_flags_all(nflags_bytes, base, reg, srd_ws, name):
    L=A.newlabel('Lpf'); Ld=A.newlabel('Lpfd')
    A(f's_mov_b32 s{sCNT}, 0\ns_mov_b32 s{sT}, {base}')
    A.label(L)
    A(f'buffer_load_dwordx4 {vr(reg,4)}, v{vL16}, {sr(srd_ws,4)}, s{sT} offen sc1')
    A('s_waitcnt vmcnt(0)')
    A(f'v_xor_b32 v{reg}, s{sN}, v{reg}\nv_xor_b32 v{reg+1}, s{sN}, v{reg+1}\nv_xor_b32 v{reg+2}, s{sN}, v{reg+2}\nv_xor_b32 v{reg+3}, s{sN}, v{reg+3}')
    A(f'v_or3_b32 v{reg}, v{reg}, v{reg+1}, v{reg+2}\nv_or_b32 v{reg}, v{reg}, v{reg+3}')
    A(f'v_cmp_ne_u32 vcc, 0, v{reg}')
    A(f's_cbranch_vccz {Ld}')
    A(f's_add_u32 s{sCNT}, s{sCNT}, 1\ns_cmp_lt_u32 s{sCNT}, {SPIN}\ns_cbranch_scc1 {L}')
    A.label(Ld)
    A.vm=[]

def chk_flags(reg,addr,base,srd_ws):
    Ld=A.newlabel('Lcf'); L=A.newlabel('Lcfp')
    A(f's_mov_b32 s{sCNT}, 0\ns_mov_b32 s{sT}, {base}')
    A.label(L)
    A(f'v_cmp_ne_u32 vcc, s{sN}, v{reg}')
    A(f's_cbranch_vccz {Ld}')
    A(f's_sleep 4\nbuffer_load_dword v{reg}, v{addr}, {sr(srd_ws,4)}, s{sT} offen sc1\ns_waitcnt vmcnt(0)')
    A(f's_add_u32 s{sCNT}, s{sCNT}, 1\ns_cmp_lt_u32 s{sCNT}, {SPIN}\ns_cbranch_scc1 {L}')
    A.label(Ld)

def gen_B():
    A.label('L_B')
    A('s_setprio 2')
    stamp('B start')
    A(f's_load_dwordx4 s[4:7], s[0:1], 72\ns_load_dwordx4 s[40:43], s[0:1], 88\ns_load_dwordx2 s[44:45], s[0:1], 104\ns_load_dwordx2 s[46:47], s[0:1], 120')
    A(f'v_lshrrev_b32 v10, 6, v0\nv_and_b32 v0, 63, v0\ns_nop 0\nv_readfirstlane_b32 s{sW}, v10')
    A(f's_and_b32 s{sT}, s2, 7\ns_lshl_b32 s{sT}, s{sT}, 2\ns_lshr_b32 s{sT2}, s2, 3\ns_and_b32 s{sT2}, s{sT2}, 3\ns_add_u32 s{sRB}, s{sT}, s{sT2}\ns_lshr_b32 s{sP}, s2, 5')
    A(f's_lshr_b32 s{sRT}, s{sW}, 1\ns_and_b32 s{sA}, s{sW}, 1\ns_lshl_b32 s{sWB}, s{sW}, 11\ns_mul_i32 s{sP112}, s{sP}, 112')
    A(f's_lshl_b32 s{sT2}, s{sT2}, 1\ns_add_u32 s{sT}, s{sP}, s{sT2}')
    A(f's_cmp_ge_u32 s{sT}, 7\ns_cselect_b32 s{sT2}, 7, 0\ns_sub_u32 s{sCP}, s{sT}, s{sT2}')
    for c in range(1,7):
        A(f's_add_u32 s{sT}, s{sCP+c-1}, 1\ns_cmp_ge_u32 s{sT}, 7\ns_cselect_b32 s{sCP+c}, 0, s{sT}')
    A(f's_mov_b32 s{sHI}, 0\ns_mov_b32 s{sHI+1}, -1\ns_mov_b32 s{sLO}, -1\ns_mov_b32 s{sLO+1}, 0')
    A(f's_mov_b32 s{sC2}, {LOG2E}\ns_mov_b32 s{sC2+1}, {LOG2E}')
    A(f'v_lshlrev_b32 v{vL16}, 4, v0')
    A(f'v_lshrrev_b32 v10, 3, v0\nv_lshrrev_b32 v11, 4, v0\nv_and_b32 v12, 7, v0')
    A(f's_lshl_b32 s{sT}, s{sW}, 4\nv_add_u32 v13, s{sT}, v10')
    A(f'v_xor_b32 v14, v12, v11\nv_lshlrev_b32 v14, 4, v14\nv_mul_u32_u24 v{vXA0}, 896, v13\nv_add_u32 v{vXA0}, v{vXA0}, v14')
    A(f'v_add_u32 v14, 4, v11\nv_xor_b32 v14, v12, v14\nv_lshlrev_b32 v14, 4, v14\nv_add_u32 v15, 8, v13\nv_mul_u32_u24 v{vXA1}, 896, v15\nv_add_u32 v{vXA1}, v{vXA1}, v14')
    A(f'v_and_b32 v14, 1, v11\nv_lshlrev_b32 v14, 2, v14\nv_xor_b32 v14, v12, v14\nv_lshrrev_b32 v15, 2, v14\nv_sub_u32 v14, v14, v15\nv_lshlrev_b32 v14, 4, v14')
    A(f'v_mul_u32_u24 v{vWA}, 2688, v13\nv_add_u32 v{vWA}, v{vWA}, v14')
    A('s_waitcnt lgkmcnt(0)')
    stamp('kernarg loaded')
    A(f's_mul_i32 s{sT}, s{sRB}, 57344\ns_add_u32 s4, s4, s{sT}\ns_addc_u32 s5, s5, 0')
    srd(S_X,4,57344); srd(S_W,6,1204224); srd(S_WO,42,401408); srd(S_WS,46,WS_SIZE); srd(S_OUT,44,3670016)
    A(f's_lshl_b32 s{sT}, s{sP}, 1\ns_add_u32 s{sT}, s{sT}, s{sA}\ns_mul_i32 s{sT}, s{sT}, 1568\ns_add_u32 s40, s40, s{sT}\ns_addc_u32 s41, s41, 0\ns_sub_u32 s{sT2}, 25088, s{sT}')
    srd(S_WP,40,f's{sT2}')
    A(f's_load_dword s{sN}, s[46:47], {WS_EPOCH}')
    A(f's_lshl_b32 s{sT}, s{sP}, 5\ns_add_u32 s{sT}, s{sT}, s{sRB}\ns_mul_i32 s{sPART}, s{sT}, {PSTR}\ns_add_u32 s{sPART}, s{sPART}, {WS_PART}')
    A(f's_lshl_b32 s{sRED}, s{sP}, 13\ns_add_u32 s{sRED}, s{sRED}, {WS_RED}')
    A(f's_lshl_b32 s{sT}, s{sRB}, 1\ns_add_u32 s{sT}, s{sT}, s{sRT}\ns_lshl_b32 s{sT}, s{sT}, 4\ns_lshl_b32 s{sT2}, s{sP}, 1\ns_add_u32 s{sT}, s{sT}, s{sT2}\ns_add_u32 s{sT}, s{sT}, s{sA}\ns_lshl_b32 s{sOB}, s{sT}, 11\ns_add_u32 s{sOB}, s{sOB}, {WS_OBUF}')
    for u in range(7): issue_unit(u)
    for j in range(2):
        A(f's_add_u32 m0, s{sWB}, {L_WP+j*1024}\ns_mov_b32 s{sT}, {j*1024}')
        A.vm_op(f'buffer_load_dwordx4 v{vL16}, {sr(S_WP,4)}, s{sT} offen lds',tag='wp')
    A(f's_lshl_b32 s{sT}, s{sA}, 12\ns_lshl_b32 s{sT2}, s{sRT}, 11\ns_add_u32 s{sT}, s{sT}, s{sT2}\ns_add_u32 s{sPART}, s{sPART}, s{sT}')
    A(f'v_and_b32 v10, 31, v0\nv_lshrrev_b32 v11, 5, v0\nv_lshrrev_b32 v12, 1, v10\nv_and_b32 v12, 7, v12')
    A(f's_lshl_b32 s{sT}, s{sRT}, 5\nv_add_u32 v13, s{sT}, v10\nv_lshlrev_b32 v13, 7, v13')
    for kk in range(4):
        A(f'v_add_u32 v14, {2*kk}, v11\nv_xor_b32 v14, v14, v12\nv_lshlrev_b32 v14, 4, v14\nv_add_u32 v{vXR+kk}, v13, v14')
    A(f'v_lshrrev_b32 v10, 4, v0\nv_and_b32 v10, 1, v10\nv_bfe_u32 v12, v0, 2, 2\nv_and_b32 v13, 3, v0')
    A(f'v_and_b32 v14, v13, v10\nv_lshrrev_b32 v15, 1, v13\nv_and_b32 v14, v14, v15\nv_sub_u32 v120, v13, v14')
    A(f'v_lshlrev_b32 v14, 3, v11\nv_add_u32 v14, v14, v12\nv_lshlrev_b32 v{vWR}, 7, v14')
    A(f'v_lshrrev_b32 v14, 1, v12\nv_xor_b32 v14, s{sA}, v14\nv_lshlrev_b32 v14, 6, v14\nv_add_u32 v{vWR}, v{vWR}, v14')
    A(f's_lshl_b32 s{sT}, s{sA}, 3\nv_lshlrev_b32 v14, 5, v10\nv_add_u32 v{vWR}, s{sT}, v{vWR}\nv_add_u32 v{vWR}, v{vWR}, v14\nv_lshlrev_b32 v14, 3, v120\nv_add_u32 v{vWR}, v{vWR}, v14')
    A(f'v_lshlrev_b32 v14, 2, v11\nv_add_u32 v14, v14, v12\nv_mul_u32_u24 v121, 56, v14\nv_lshlrev_b32 v14, 5, v10\nv_add_u32 v121, v121, v14\nv_lshlrev_b32 v14, 3, v13\nv_add_u32 v121, v121, v14\nv_add_u32 v121, s{sWB}, v121')
    A(f's_mul_i32 s{sT}, s{sA}, {PHI_H}\ns_add_u32 s{sT}, s{sT}, {L_PHI}')
    A(f'v_and_b32 v14, 31, v0\ns_lshl_b32 s{sT2}, s{sRT}, 5\nv_add_u32 v14, s{sT2}, v14\nv_mul_u32_u24 v122, 136, v14\nv_lshlrev_b32 v14, 3, v11\nv_add_u32 v122, v122, v14\nv_add_u32 v122, s{sT}, v122')
    A(f'v_lshlrev_b32 v14, 2, v11\nv_add_u32 v14, v14, v12\nv_mul_u32_u24 v123, 136, v14\nv_lshlrev_b32 v14, 5, v10\nv_add_u32 v123, v123, v14\nv_lshlrev_b32 v14, 3, v13\nv_add_u32 v123, v123, v14')
    A(f's_lshl_b32 s{sT2}, s{sRT}, 6\ns_add_u32 s{sT}, s{sT}, s{sT2}\nv_add_u32 v123, s{sT}, v123')
    vWPA=240; vPHW=241; vPHR=242
    A(f'v_mov_b32 v{vWPA}, v121\nv_mov_b32 v{vPHW}, v122\nv_mov_b32 v{vPHR}, v123')
    A('v_mov_b32 v15, 0')
    for k in range(4): A(f'v_mov_b32 v{EP+12+k}, 0\nv_mov_b32 v{EN+12+k}, 0')
    stamp('B prologue issued')
    for c in range(7):
        A.vm_wait(('u',2*c+1))
        A('s_barrier')
        if c==0:
            pass
        if c>=1:
            issue_unit(2*c+5); issue_unit(2*c+6)
        sx=((2*c)%NSLOT)*SLOT
        for kk in range(4):
            A(f'ds_read_b128 {vr(XF+16*c+4*kk,4)}, v{vXR+kk} offset:{sx}')
        read_wfrags(2*c+1)
        for kk in range(4):
            A(f's_waitcnt lgkmcnt({min(15,2*(3-kk))})' if kk>0 else f's_waitcnt lgkmcnt(6)')
            cin = '0' if (c==0 and kk==0) else vr(accA,16)
            A(f'v_mfma_f32_32x32x16_bf16 {vr(accA,16)}, {vr(wf+4*kk,4)}, {vr(XF+16*c+4*kk,4)}, {cin}')
        if c==1:
            pass
        if c==0 or KST: stamp('K%d done'%c)
    A('s_barrier')
    A(f'v_and_b32 v10, 31, v0\nv_lshrrev_b32 v11, 2, v10\nv_and_b32 v12, 3, v10\nv_lshlrev_b32 v12, 3, v12\nv_add_u32 v11, v11, v12\ns_lshl_b32 s{sT}, s{sP}, 5\nv_add_u32 v11, s{sT}, v11')
    A(f'v_and_b32 v12, 7, v0\nv_lshlrev_b32 v12, 5, v12\ns_and_b32 s{sT}, s2, 31\nv_add_u32 v12, s{sT}, v12')
    A(f'v_cndmask_b32 v11, v11, v12, {sr(sHI,2)}')
    A(f'v_subrev_u32 v12, 224, v11\nv_cmp_gt_u32 vcc, 224, v11\ns_nop 1\nv_cndmask_b32 v11, v12, v11, vcc\nv_lshlrev_b32 v243, 7, v11')
    A(f's_mov_b32 s{sT}, {WS_FLAGA1}')
    A.vm_op(f'buffer_load_dword v244, v243, {sr(S_WS,4)}, s{sT} offen sc1',tag='flagc')
    issue_unit(19); issue_unit(20)
    stamp('K phase done')
    A('s_waitcnt lgkmcnt(0)')
    A(f's_add_u32 s{sN}, s{sN}, {NONCE_C}')
    for j in range(2):
        A(f'ds_read_b64_tr_b16 {vr(wpf+4*j,2)}, v{vWPA} offset:{L_WP+896*j}')
        A(f'ds_read_b64_tr_b16 {vr(wpf+4*j+2,2)}, v{vWPA} offset:{L_WP+896*j+448}')
    A('s_waitcnt lgkmcnt(0)')
    A(f'v_cndmask_b32 v{wpf+6}, v{wpf+6}, v15, {sr(sHI,2)}\nv_cndmask_b32 v{wpf+7}, v{wpf+7}, v15, {sr(sHI,2)}')
    A('s_barrier')
    A.nop(4)
    pack_and_phi(accA)
    softmax(accA,'k')
    for jj in range(4):
        A(f'ds_write_b64 v{vPHW}, {vr(PK+2*jj,2)} offset:{16*jj}')
        A(f'ds_write_b64 v{vPHW}, {vr(PK+8+2*jj,2)} offset:{64+16*jj}')
    stamp('softmax k done')
    for c in range(7):
        u=14+c
        A.vm_wait(('u',u), ' lgkmcnt(0)')
        A('s_barrier')
        if c>=1: issue_unit(21+c-1)
        read_wfrags(u)
        for kk in range(4):
            A(f's_waitcnt lgkmcnt({2*(3-kk)})')
            cin = '0' if (c==0 and kk==0) else vr(accB,16)
            A(f'v_mfma_f32_32x32x16_bf16 {vr(accB,16)}, {vr(XF+16*c+4*kk,4)}, {vr(wf+4*kk,4)}, {cin}')
    stamp('V phase done')
    A.nop(16)
    for r in range(0,16,2):
        A(f'v_cvt_pk_bf16_f32 v{wf+r//2}, v{accB+r}, v{accB+r+1}')
    A(f'v_and_b32 v10, 31, v0\nv_cmp_eq_u32 vcc, 28, v10\nv_mov_b32 v11, 0x3f803f80\ns_nop 0')
    for k in range(8): A(f'v_cndmask_b32 v{wf+k}, v{wf+k}, v11, vcc')
    L_VX=(20%NSLOT)*SLOT
    A('s_barrier')
    A(f'v_add_u32 v10, s{sWB}, v{vL16}')
    A(f'ds_write_b128 v10, {vr(wf,4)} offset:{L_VX}\nds_write_b128 v10, {vr(wf+4,4)} offset:{L_VX+1024}')
    A('s_waitcnt lgkmcnt(0)\ns_barrier')
    A(f's_xor_b32 s{sT}, s{sWB}, 4096\nv_add_u32 v10, s{sT}, v{vL16}')
    A(f'ds_read_b128 {vr(wf+8,4)}, v10 offset:{L_VX}\nds_read_b128 {vr(wf+12,4)}, v10 offset:{L_VX+1024}')
    AF=[EP,EP+4,EP+8,EN]
    for m in range(4):
        A(f'ds_read_b64_tr_b16 {vr(AF[m],2)}, v{vPHR} offset:{16*m*136}')
        A(f'ds_read_b64_tr_b16 {vr(AF[m]+2,2)}, v{vPHR} offset:{16*m*136+8*136}')
    A('s_waitcnt lgkmcnt(0)')
    Lr1=A.newlabel('Lrt1'); Lr2=A.newlabel('Lrtd')
    A(f's_cmp_lg_u32 s{sRT}, 0\ns_cbranch_scc1 {Lr1}')
    order0=[wf,wf+4,wf+8,wf+12]; order1=[wf+8,wf+12,wf,wf+4]
    for m in range(4):
        A(f'v_mfma_f32_32x32x16_bf16 {vr(accA,16)}, {vr(AF[m],4)}, {vr(order0[m],4)}, '+('0' if m==0 else vr(accA,16)))
    A(f's_branch {Lr2}')
    A.label(Lr1)
    for m in range(4):
        A(f'v_mfma_f32_32x32x16_bf16 {vr(accA,16)}, {vr(AF[m],4)}, {vr(order1[m],4)}, '+('0' if m==0 else vr(accA,16)))
    A.label(Lr2)
    A.nop(16)
    for r in range(0,16,2):
        A(f'v_cvt_pk_bf16_f32 v{PK+r//2}, v{accA+r}, v{accA+r+1}')
    A.vm_wait('flagc')
    chk_flags(244,243,WS_FLAGA1,S_WS)
    A.vm_op(f'buffer_store_dwordx4 {vr(PK,4)}, v{vL16}, {sr(S_WS,4)}, s{sPART} offen sc1',tag='part')
    A.vm_op(f'buffer_store_dwordx4 {vr(PK+4,4)}, v{vL16}, {sr(S_WS,4)}, s{sPART} offen offset:1024 sc1',tag='part')
    if not NOCLR:
        A('v_mov_b32 v10, -1\nv_mov_b32 v11, -1\nv_mov_b32 v12, -1\nv_mov_b32 v13, -1')
        A.vm_op(f'buffer_store_dwordx4 v[10:13], v{vL16}, {sr(S_WS,4)}, s{sOB} offen sc1',tag='oclr')
        A.vm_op(f'buffer_store_dwordx4 v[10:13], v{vL16}, {sr(S_WS,4)}, s{sOB} offen offset:1024 sc1',tag='oclr')
    stamp('partial published')
    A('s_barrier')
    issue_unit(27)
    for c in range(7):
        u=21+c
        A.vm_wait(('u',u))
        A('s_barrier')
        read_wfrags(u)
        for kk in range(4):
            A(f's_waitcnt lgkmcnt({2*(3-kk)})')
            cin = '0' if (c==0 and kk==0) else vr(accA,16)
            A(f'v_mfma_f32_32x32x16_bf16 {vr(accA,16)}, {vr(wf+4*kk,4)}, {vr(XF+16*c+4*kk,4)}, {cin}')
    stamp('Q gemm done')
    A.vm_drain()
    A('s_barrier')
    Lf2=A.newlabel('Lfb2')
    A(f's_cmp_lg_u32 s{sW}, 3\ns_cbranch_scc1 {Lf2}')
    A(f's_lshl_b32 s{sT}, s2, 7\ns_add_u32 s{sT}, s{sT}, {WS_FLAGB2}\nv_mov_b32 v10, s{sN}\nv_mov_b32 v11, s{sN}\nv_mov_b32 v12, s{sN}\nv_mov_b32 v13, s{sN}\ns_mov_b64 exec, 0xff')
    A(f'buffer_store_dwordx4 v[10:13], v{vL16}, {sr(S_WS,4)}, s{sT} offen sc1\ns_mov_b64 exec, -1\ns_nop 1')
    A.label(Lf2)
    L1a=A.newlabel('L1a_skip')
    A(f's_cmp_lg_u32 s{sW}, 0\ns_cbranch_scc1 {L1a}')
    A(f'v_lshrrev_b32 v10, 4, v0\nv_mul_u32_u24 v10, {PSTR}, v10\nv_and_b32 v11, 15, v0\nv_lshlrev_b32 v11, 4, v11\nv_add_u32 v10, v10, v11')
    A(f's_mul_i32 s{sT}, s{sP}, {32*PSTR}\ns_lshl_b32 s{sT2}, s{sRB}, 8\ns_add_u32 s{sT}, s{sT}, s{sT2}\ns_add_u32 s40, s{sT}, {WS_PART}')
    A(f'v_and_b32 v11, 15, v0\nv_and_b32 v12, 1, v11\nv_lshlrev_b32 v12, 4, v12\nv_mov_b32 v13, 0x3f80\nv_lshlrev_b32 v12, v12, v13\nv_lshrrev_b32 v11, 1, v11')
    for q in range(4):
        A(f'v_cmp_eq_u32 vcc, {q}, v11\ns_nop 1\nv_cndmask_b32 v{120+q}, v15, v12, vcc')
    LD=[32,36,40,44,104,108,112,116]
    Lp=A.newlabel('L1a_poll'); Lpd=A.newlabel('L1a_done')
    A(f's_mov_b32 s{sCNT}, 0')
    A.label(Lp)
    for m in range(8):
        A(f's_add_u32 s{sT}, s40, {m*4*PSTR}')
        A(f'buffer_load_dwordx4 {vr(LD[m],4)}, v10, {sr(S_WS,4)}, s{sT} offen sc1')
    for m in range(8):
        A(f's_waitcnt vmcnt({7-m})')
        A(f'v_mfma_f32_16x16x32_bf16 v[48:51], v[120:123], {vr(LD[m],4)}, '+('0' if m==0 else 'v[48:51]'))
    A.nop(10)
    A(f'v_cmp_u_f32 vcc, v48, v48\ns_cbranch_vccz {Lpd}')
    A(f's_add_u32 s{sCNT}, s{sCNT}, 1\ns_cmp_lt_u32 s{sCNT}, {SPIN}\ns_cbranch_scc1 {Lp}')
    A.label(Lpd)
    A('v_cvt_pk_bf16_f32 v52, v48, v49\nv_cvt_pk_bf16_f32 v53, v50, v51')
    A(f'v_and_b32 v10, 15, v0\nv_lshlrev_b32 v10, 4, v10\nv_lshrrev_b32 v11, 4, v0\nv_lshlrev_b32 v11, 3, v11\nv_add_u32 v10, v10, v11')
    A(f's_lshl_b32 s{sT}, s{sRB}, 8\ns_add_u32 s{sT}, s{sT}, s{sRED}')
    A(f's_mov_b64 exec, {sr(sLO,2)}')
    A(f'buffer_store_dwordx2 v[52:53], v10, {sr(S_WS,4)}, s{sT} offen sc1')
    A('s_mov_b64 exec, -1')
    A.label(L1a)
    stamp('1a done')
    pack_and_phi(accA)
    softmax(accA,'q')
    stamp('softmax q done')
    A('s_barrier')
    vWO=121; vWOR=122
    sWOB=41; sCOL=42; sACT=43
    A(f's_and_b32 s{sT}, s{sP}, 3\ns_lshl_b32 s{sT}, s{sT}, 7\ns_lshl_b32 s{sT2}, s{sW}, 5\ns_add_u32 s{sCOL}, s{sT}, s{sT2}')
    A(f's_cmp_lt_u32 s{sCOL}, 448\ns_cselect_b32 s{sACT}, 1, 0\ns_lshl_b32 s{sWOB}, s{sW}, 14')
    A(f'v_lshrrev_b32 v10, 2, v0\nv_mul_u32_u24 v{vWO}, 896, v10\nv_and_b32 v11, 3, v0\nv_lshlrev_b32 v11, 4, v11\nv_add_u32 v{vWO}, v{vWO}, v11\ns_lshl_b32 s{sT}, s{sCOL}, 1\nv_add_u32 v{vWO}, s{sT}, v{vWO}')
    A(f'v_lshrrev_b32 v10, 5, v0\nv_lshlrev_b32 v10, 2, v10\nv_bfe_u32 v11, v0, 2, 2\nv_add_u32 v10, v10, v11\nv_lshlrev_b32 v10, 6, v10\nv_bfe_u32 v11, v0, 4, 1\nv_lshlrev_b32 v11, 5, v11\nv_add_u32 v10, v10, v11\nv_and_b32 v11, 3, v0\nv_lshlrev_b32 v11, 3, v11\nv_add_u32 v10, v10, v11\nv_add_u32 v{vWOR}, s{sWOB}, v10')
    def wo_issue(h0):
        for h in range(h0,h0+8):
            for half in range(2):
                A(f's_add_u32 m0, s{sWOB}, {(h-h0)*2048+half*1024}\ns_mov_b32 s{sT}, {(28*h+16*half)*896}')
                A.vm_op(f'buffer_load_dwordx4 v{vWO}, {sr(S_WO,4)}, s{sT} offen lds',tag=('wo',h0))
    def wo_read(h0):
        for h in range(h0,h0+8):
            for j in range(2):
                b=XF+8*h+4*j
                A(f'ds_read_b64_tr_b16 {vr(b,2)}, v{vWOR} offset:{(h-h0)*2048+16*j*64}')
                A(f'ds_read_b64_tr_b16 {vr(b+2,2)}, v{vWOR} offset:{(h-h0)*2048+16*j*64+8*64}')
            if h%4==3: A('s_waitcnt lgkmcnt(0)')
    Lw1=A.newlabel('Lwo1')
    A(f's_cmp_eq_u32 s{sACT}, 0\ns_cbranch_scc1 {Lw1}')
    wo_issue(0)
    A.label(Lw1)
    Lp=A.newlabel('L1b_poll'); Lpd=A.newlabel('L1b_done')
    A(f's_lshl_b32 s{sT}, s{sA}, 12\ns_add_u32 s40, s{sT}, s{sRED}\ns_mov_b32 s{sCNT}, 0')
    A.label(Lp)
    for m in range(4):
        A(f'buffer_load_dwordx4 {vr(32+4*m,4)}, v{vL16}, {sr(S_WS,4)}, s40 offen offset:{m*1024} sc1')
    A('s_waitcnt vmcnt(0)')
    A('v_max3_u32 v10, v32, v33, v34')
    for k in range(35,47,2): A(f'v_max3_u32 v10, v10, v{k}, v{k+1}')
    A('v_max_u32 v10, v10, v47\nv_cmp_eq_u32 vcc, -1, v10')
    A(f's_cbranch_vccz {Lpd}')
    A(f's_add_u32 s{sCNT}, s{sCNT}, 1\ns_cmp_lt_u32 s{sCNT}, {SPIN}\ns_cbranch_scc1 {Lp}')
    A.label(Lpd)
    A.vm=[]
    stamp('1b done')
    for m in range(4):
        A(f'v_mfma_f32_32x32x16_bf16 {vr(accA,16)}, {vr(32+4*m,4)}, {vr(PK+4*m,4)}, '+('0' if m==0 else vr(accA,16)))
    A.nop(16)
    A(f'v_mov_b32 v10, v{accA+12}\nv_mov_b32 v11, v{accA+12}\ns_nop 1\nv_permlane32_swap_b32 v10, v11')
    A('v_add_f32 v11, 0x358637bd, v11\nv_rcp_f32 v12, v11\ns_nop 0')
    for r in range(0,16,2):
        A(f'v_pk_mul_f32 {vr(accA+r,2)}, {vr(accA+r,2)}, v[12:13] op_sel_hi:[1,0]')
    for r in range(0,16,2):
        A(f'v_cvt_pk_bf16_f32 v{48+r//2}, v{accA+r}, v{accA+r+1}')
    A(f'v_cndmask_b32 v54, v54, v15, {sr(sHI,2)}\nv_cndmask_b32 v55, v55, v15, {sr(sHI,2)}')
    A.vm_op(f'buffer_store_dwordx4 v[48:51], v{vL16}, {sr(S_WS,4)}, s{sOB} offen sc1',tag='o')
    A.vm_op(f'buffer_store_dwordx4 v[52:55], v{vL16}, {sr(S_WS,4)}, s{sOB} offen offset:1024 sc1',tag='o')
    stamp('o published')
    Lw2=A.newlabel('Lwo2')
    A(f's_cmp_eq_u32 s{sACT}, 0\ns_cbranch_scc1 {Lw2}')
    wo_read(0)
    wo_issue(8)
    A.label(Lw2)
    A.vm_drain()
    Lw3=A.newlabel('Lwo3')
    A(f's_cmp_eq_u32 s{sACT}, 0\ns_cbranch_scc1 {Lw3}')
    wo_read(8)
    A.label(Lw3)
    stamp('wo in regs')
    A(f'v_and_b32 v12, 7, v0\nv_lshlrev_b32 v12, 5, v12\ns_and_b32 s{sT}, s2, 31\nv_add_u32 v12, s{sT}, v12\nv_lshlrev_b32 v123, 7, v12\ns_mov_b32 s{sT}, {WS_FLAGB2}')
    A(f'buffer_load_dword v124, v123, {sr(S_WS,4)}, s{sT} offen sc1\ns_waitcnt vmcnt(0)')
    chk_flags(124,123,WS_FLAGB2,S_WS)
    A(f's_lshl_b32 s{sT}, s{sRB}, 1\ns_lshr_b32 s{sT2}, s{sP}, 2\ns_add_u32 s{sT}, s{sT}, s{sT2}\ns_mov_b32 s44, s{sT}\ns_lshl_b32 s{sT}, s{sT}, 15\ns_lshl_b32 s{sT2}, s{sW}, 13\ns_add_u32 s{sT}, s{sT}, s{sT2}\ns_add_u32 s40, s{sT}, {WS_OBUF}')
    Lp=A.newlabel('Lh2_poll'); Lpd=A.newlabel('Lh2_done')
    A(f's_mov_b32 s{sCNT}, 0')
    A.label(Lp)
    for m in range(8):
        A(f's_add_u32 s{sT}, s40, {(m//4)*4096}')
        A(f'buffer_load_dwordx4 {vr(72+4*m,4)}, v{vL16}, {sr(S_WS,4)}, s{sT} offen offset:{(m%4)*1024} sc1')
    A('s_waitcnt vmcnt(0)')
    A('v_max3_u32 v10, v72, v73, v74')
    for k in range(75,103,2): A(f'v_max3_u32 v10, v10, v{k}, v{k+1}')
    A('v_max_u32 v10, v10, v103\nv_cmp_eq_u32 vcc, -1, v10')
    A(f's_cbranch_vccz {Lpd}')
    A(f's_add_u32 s{sCNT}, s{sCNT}, 1\ns_cmp_lt_u32 s{sCNT}, {SPIN}\ns_cbranch_scc1 {Lp}')
    A.label(Lpd)
    stamp('hop2 loaded')
    A('s_barrier')
    A(f's_lshl_b32 s{sT}, s{sW}, 13\nv_add_u32 v10, s{sT}, v{vL16}')
    for m in range(8): A(f'ds_write_b128 v10, {vr(72+4*m,4)} offset:{m*1024}')
    A('s_waitcnt lgkmcnt(0)\ns_barrier')
    Le=A.newlabel('LB_end')
    A(f's_cmp_eq_u32 s{sACT}, 0\ns_cbranch_scc1 {Le}')
    for g in range(4):
        for m in range(8):
            A(f'ds_read_b128 {vr(32+4*m,4)}, v{vL16} offset:{(g*8+m)*1024}')
        for m in range(8):
            f=g*8+m
            A(f's_waitcnt lgkmcnt({7-m})')
            A(f'v_mfma_f32_32x32x16_bf16 {vr(accA,16)}, {vr(XF+4*f,4)}, {vr(32+4*m,4)}, '+('0' if f==0 else vr(accA,16)))
    A.nop(16)
    for r in range(0,16,2):
        A(f'v_cvt_pk_bf16_f32 v{48+r//2}, v{accA+r}, v{accA+r+1}')
    A('s_nop 1')
    A('v_permlane32_swap_b32 v48, v50\nv_permlane32_swap_b32 v49, v51\nv_permlane32_swap_b32 v52, v54\nv_permlane32_swap_b32 v53, v55')
    A(f'v_and_b32 v10, 31, v0\ns_lshl_b32 s{sT}, s44, 5\nv_add_u32 v10, s{sT}, v10\nv_mul_u32_u24 v10, 1792, v10\nv_lshrrev_b32 v11, 5, v0\nv_lshlrev_b32 v11, 4, v11\nv_add_u32 v10, v10, v11')
    A(f's_lshl_b32 s{sT}, s{sCOL}, 1\ns_add_u32 s{sT}, s{sT}, 896')
    A(f'buffer_store_dwordx4 v[48:51], v10, {sr(S_OUT,4)}, s{sT} offen\nbuffer_store_dwordx4 v[52:55], v10, {sr(S_OUT,4)}, s{sT} offen offset:32')
    A.label(Le)
    stamp('B end')
    Lx=A.newlabel('LB_exit')
    A(f's_or_b32 s{sT}, s2, s{sW}\ns_cmp_lg_u32 s{sT}, 0\ns_cbranch_scc1 {Lx}')
    A(f's_mov_b64 exec, 0xff\nv_mov_b32 v10, s{sN}\nv_mov_b32 v11, s{sN}\nv_mov_b32 v12, s{sN}\nv_mov_b32 v13, s{sN}\ns_mov_b32 s{sT}, {WS_EPOCH}')
    A(f'buffer_store_dwordx4 v[10:13], v{vL16}, {sr(S_WS,4)}, s{sT} offen sc1\ns_mov_b64 exec, -1')
    A.label(Lx)
    prof_flush(S_WS,sW)
    A('s_endpgm')


def f32(x):
    import struct
    return '0x%08x'%struct.unpack('<I',struct.pack('<f',x))[0]
import math
aU=8; aWS=12; aOUT=16
aRE=40
aDS=56
aG=20; aTB=21; aAI=22; aWv=23; aC=24; aHF=25; aT=26; aT2=27; aWB=28; aSH=29; aLD=30; aCNT=67
KT_W=14416; KT_X=8704; KT_B=21248
LA_UIMG=0; LA_T2=8192
LA_UC=0; UC_S=4608
LA_T=17408; T_S=1536
LA_P=21248; P_C=8320; P_O=4160
LA_EX=37888; LA_Y=54272
LA_YIMG=21248; LA_UIMG2=29440
def cmul(dst,z,m):
    A(f'v_pk_mul_f32 v[62:63], {vr(z,2)}, {vr(m,2)} op_sel_hi:[1,0]')
    A(f'v_pk_fma_f32 {vr(dst,2)}, {vr(z,2)}, {vr(m,2)}, v[62:63] op_sel:[1,1,0] op_sel_hi:[0,1,1] neg_lo:[0,1,0]')
def a_flag_store(base):
    L=A.newlabel('Lafs')
    A(f's_cmp_lg_u32 s{aWv}, 0\ns_cbranch_scc1 {L}')
    A(f's_lshl_b32 s{aT}, s{aAI}, 7\ns_add_u32 s{aT}, s{aT}, {base}\nv_mov_b32 v10, s{sN}\nv_mov_b32 v11, s{sN}\nv_mov_b32 v12, s{sN}\nv_mov_b32 v13, s{sN}\ns_mov_b64 exec, 0xff')
    A(f'buffer_store_dwordx4 v[10:13], v9, {sr(aWS,4)}, s{aT} offen sc1\ns_mov_b64 exec, -1\ns_nop 1')
    A.label(L)
def a_flag_poll(base):
    L=A.newlabel('Lafp'); Ld=A.newlabel('Lafd')
    A(f's_lshl_b32 s{aT}, s{aG}, 12\ns_add_u32 s{aT}, s{aT}, {base}\nv_lshlrev_b32 v2, 7, v0\ns_mov_b32 s{aCNT}, 0\ns_mov_b32 exec_hi, 0')
    A.label(L)
    A(f'buffer_load_dword v3, v2, {sr(aWS,4)}, s{aT} offen sc1\ns_waitcnt vmcnt(0)')
    A(f'v_cmp_ne_u32 vcc, s{sN}, v3\ns_cbranch_vccz {Ld}')
    A(f's_sleep 4\ns_add_u32 s{aCNT}, s{aCNT}, 1\ns_cmp_lt_u32 s{aCNT}, {SPIN}\ns_cbranch_scc1 {L}')
    A.label(Ld)
    A('s_mov_b32 exec_hi, -1')
    A.vm=[]

def gen_A():
    A.label('L_A')
    A.vm=[]
    if ASTOP==9:
        A('s_sleep 127\ns_sleep 127\ns_sleep 127\ns_endpgm'); return
    stamp('A start')
    A('s_load_dwordx16 s[40:55], s[0:1], 0\ns_load_dwordx2 s[56:57], s[0:1], 64\ns_load_dwordx2 s[58:59], s[0:1], 104\ns_load_dwordx2 s[60:61], s[0:1], 120')
    A(f'v_lshrrev_b32 v1, 6, v0\nv_and_b32 v0, 63, v0\ns_nop 0\nv_readfirstlane_b32 s{aWv}, v1')
    A(f's_sub_u32 s{aAI}, s2, {NB}\ns_lshr_b32 s{aG}, s{aAI}, 5\ns_and_b32 s{aTB}, s{aAI}, 31\ns_lshr_b32 s{aC}, s{aWv}, 1\ns_and_b32 s{aHF}, s{aWv}, 1\ns_lshl_b32 s{aWB}, s{aWv}, 11')
    A('v_lshlrev_b32 v9, 4, v0')
    A(f'v_lshrrev_b32 v2, 3, v0\ns_lshl_b32 s{aT}, s{aWv}, 4\nv_add_u32 v2, s{aT}, v2\nv_and_b32 v3, 7, v0\nv_lshlrev_b32 v3, 4, v3')
    A('v_mul_u32_u24 v4, 896, v2\nv_add_u32 v4, v4, v3')
    A('v_lshlrev_b32 v5, 7, v2\nv_add_u32 v5, v5, v3')
    A('s_waitcnt lgkmcnt(0)')
    srd(aU,40,1835008); srd(aWS,60,WS_SIZE); srd(aOUT,58,3670016)
    A(f's_load_dword s{sN}, s[60:61], {WS_EPOCH}')
    A(f's_lshl_b32 s{aT}, s{aAI}, 2\ns_add_u32 s54, s54, s{aT}\ns_addc_u32 s55, s55, 0\ns_load_dword s{aLD}, s[54:55], 0')
    sUT=31
    A(f's_mul_i32 s{sUT}, s{aTB}, 57344\ns_lshl_b32 s{aT}, s{aG}, 7\ns_add_u32 s{sUT}, s{sUT}, s{aT}')
    for j in range(2):
        A(f's_add_u32 m0, s{aWB}, {LA_UIMG+j*1024}\ns_add_u32 s{aT}, s{sUT}, {j*7168}')
        A.vm_op(f'buffer_load_dwordx4 v4, {sr(aU,4)}, s{aT} offen lds',tag='ut')
    if ASTOP==10:
        A.vm_drain(); stamp('A x'); prof_flush(aWS,aWv); A('s_endpgm'); return
    A(f's_lshl_b32 s{aT}, s{aAI}, 1\ns_add_u32 s{aT}, s{aT}, s{aC}\ns_lshl_b32 s{aT}, s{aT}, 9\ns_lshl_b32 s{aT2}, s{aHF}, 8\ns_add_u32 s{aT}, s{aT}, s{aT2}\nv_lshlrev_b32 v6, 2, v0\nv_add_u32 v6, s{aT}, v6')
    for k in range(6):
        A.vm_op(f'global_load_dword v{32+k}, v6, s[{42+2*k}:{43+2*k}]',tag='par')
    if ASTOP==11:
        A.vm_drain(); stamp('A x'); prof_flush(aWS,aWv); A('s_endpgm'); return
    if ASTOP==12:
        A.vm_drain(); stamp('A x'); prof_flush(aWS,aWv); A('s_endpgm'); return
    A.vm_wait('ut')
    A('s_barrier')
    A('v_mov_b32 v10, -1\nv_mov_b32 v11, -1\nv_mov_b32 v12, -1\nv_mov_b32 v13, -1')
    A(f's_mov_b32 s34, s{aAI}')
    Lc=A.newlabel('Lclr'); Lcd=A.newlabel('Lclrd')
    A.label(Lc)
    if not NOCLR:
        A(f's_and_b32 s35, s34, 7\ns_lshl_b32 s35, s35, 2\ns_lshr_b32 s36, s34, 3\ns_and_b32 s36, s36, 3\ns_add_u32 s35, s35, s36\ns_lshr_b32 s36, s34, 5')
        A(f's_lshl_b32 s37, s36, 5\ns_add_u32 s37, s37, s35\ns_mul_i32 s37, s37, {PSTR}\ns_add_u32 s37, s37, s{aWB}\ns_add_u32 s37, s37, {WS_PART}')
        A(f'buffer_store_dwordx4 v[10:13], v9, {sr(aWS,4)}, s37 offen sc1\nbuffer_store_dwordx4 v[10:13], v9, {sr(aWS,4)}, s37 offen offset:1024 sc1')
        Lr=A.newlabel('Lred')
        A(f's_cmp_lg_u32 s{aWv}, 0\ns_cbranch_scc1 {Lr}')
        A(f's_lshl_b32 s37, s36, 13\ns_lshl_b32 s38, s35, 8\ns_add_u32 s37, s37, s38\ns_add_u32 s37, s37, {WS_RED}\ns_mov_b64 exec, 0xffff')
        A(f'buffer_store_dwordx4 v[10:13], v9, {sr(aWS,4)}, s37 offen sc1\ns_mov_b64 exec, -1')
        A.label(Lr)
    A(f's_add_u32 s34, s34, 224\ns_cmp_lt_u32 s34, 256\ns_cbranch_scc1 {Lc}')
    A(f'v_lshrrev_b32 v7, 4, v0\nv_lshlrev_b32 v7, 3, v7\nv_bfe_u32 v8, v0, 2, 2\nv_add_u32 v7, v7, v8\nv_lshlrev_b32 v7, 7, v7\nv_and_b32 v8, 3, v0\nv_lshlrev_b32 v8, 3, v8\nv_add_u32 v7, v7, v8\ns_lshl_b32 s{aT}, s{aWv}, 5\nv_add_u32 v7, s{aT}, v7')
    for it in range(2):
        A(f'ds_read_b64_tr_b16 {vr(64+4*it,2)}, v7 offset:{LA_UIMG+it*4096}\nds_read_b64_tr_b16 {vr(66+4*it,2)}, v7 offset:{LA_UIMG+it*4096+512}')
    A(f'v_and_b32 v8, 15, v0\ns_lshl_b32 s{aT}, s{aWv}, 4\nv_add_u32 v8, s{aT}, v8\nv_mul_u32_u24 v8, 144, v8\nv_lshrrev_b32 v14, 4, v0\nv_lshlrev_b32 v14, 4, v14\nv_add_u32 v8, v8, v14')
    A('s_waitcnt lgkmcnt(0)')
    for it in range(2): A(f'ds_write_b128 v8, {vr(64+4*it,4)} offset:{LA_T2+64*it}')
    A('v_mul_u32_u24 v8, 144, v2\nv_add_u32 v8, v8, v3\ns_waitcnt lgkmcnt(0)')
    for j in range(2): A(f'ds_read_b128 {vr(72+4*j,4)}, v8 offset:{LA_T2+j*8*144}')
    sTT=19+44
    A(f's_mul_i32 s{sTT}, s{aAI}, {TSTR}')
    A('s_waitcnt lgkmcnt(0)')
    if ASTOP==13:
        A('s_endpgm'); return
    for j in range(2):
        A(f's_add_u32 s{aT}, s{sTT}, {WS_UT+j*1024}')
        A.vm_op(f'buffer_store_dwordx4 {vr(72+4*j,4)}, v5, {sr(aWS,4)}, s{aT} offen sc1',tag='uts')
    stamp('A uT stored')
    A(f's_lshl_b32 s{aT}, s{aC}, 4\ns_lshr_b32 s{aLD}, s{aLD}, s{aT}\ns_lshl_b32 s{aLD}, s{aLD}, 16')
    A(f'v_mov_b32 v14, s{aLD}\nv_mul_f32 v14, {hex(LOG2E)}, v14\nv_exp_f32 v14, v14\ns_nop 0\nv_cvt_pk_bf16_f32 v14, v14, v14\nv_lshlrev_b32 v15, 16, v14')
    A(f's_mul_i32 s{aT}, s{aWv}, {KT_W}\ns_add_u32 s{aT}, s{aT}, {KT_B}\nv_lshlrev_b32 v57, 2, v0\nv_add_u32 v57, s{aT}, v57')
    A(f'v_and_b32 v58, 31, v0\nv_mul_u32_u24 v58, 272, v58\nv_lshrrev_b32 v59, 5, v0\nv_lshlrev_b32 v59, 4, v59\nv_add_u32 v58, v58, v59\nv_add_u32 v58, s{aT}, v58')
    A.vm_drain()
    A('s_barrier')
    if ASTOP==14:
        A('s_endpgm'); return
    A(f's_add_u32 s{sN}, s{sN}, {NONCE_C}')
    a_flag_store(WS_FLAGA1)
    if ASTOP==15:
        A('s_endpgm'); return
    stamp('A flag1 set')
    if ASTOP==1:
        prof_flush(aWS,aWv); A('s_endpgm'); return
    Lk=A.newlabel('Lkgen')
    A(f's_mov_b32 s{aSH}, 0')
    for k in range(16): A(f'v_mov_b32 v{16+k}, 0')
    A.label(Lk)
    for k in range(6):
        A(f'v_lshrrev_b32 v{38+k}, s{aSH}, v{32+k}\nv_lshlrev_b32 v{38+k}, 16, v{38+k}')
    for k in range(4): A(f'v_mul_f32 v{38+k}, v15, v{38+k}')
    A('v_mul_f32 v60, v43, v41\nv_fma_f32 v44, v42, v40, -v60\nv_mul_f32 v60, v43, v40\nv_fma_f32 v45, -v42, v41, -v60')
    for reg,k,conj in ((46,1,True),(48,8,False),(50,256,True)):
        A(f'v_mul_f32 v60, {f32(k*math.log2(math.e))}, v38\nv_mul_f32 v61, {f32(k/(2*math.pi))}, v39\nv_exp_f32 v60, v60\nv_fract_f32 v61, v61')
        A(f'v_cos_f32 v{reg}, v61\nv_sin_f32 v{reg+1}, v61\ns_nop 0')
        A(f'v_mul_f32 v{reg}, v60, v{reg}')
        A(f'v_mul_f32 v{reg+1}, v60, v{reg+1}' if not conj else f'v_mul_f32_e64 v{reg+1}, -v60, v{reg+1}')
    cmul(52,50,50)
    cmul(54,52,52)
    def wr(z,row,base):
        A(f'v_cvt_pk_bf16_f32 v61, v{z}, v{z+1}\nds_write_b32 v57, v61 offset:{base+row*272}')
    A(f'v_mov_b32 v61, 0x3f80\nds_write_b32 v57, v61 offset:0')
    wr(48,1,0)
    A('v_mov_b32 v64, v48\nv_mov_b32 v65, v49')
    for j in range(2,32):
        cmul(64,64,48); wr(64,j,0)
    wr(44,0,KT_X)
    XS={0:44}
    regs=[66,68,70,72,74,76,78]
    prev=44
    for i in range(1,8):
        cmul(regs[i-1],prev,46); prev=regs[i-1]; XS[i]=prev; wr(prev,i,KT_X)
    for r,src in enumerate((0,2,4,6)):
        cmul(80,XS[src],50); wr(80,8+r,KT_X)
    cmul(82,XS[0],52); wr(82,12,KT_X)
    cmul(84,XS[4],52); wr(84,13,KT_X)
    cmul(82,82,50); wr(82,14,KT_X)
    cmul(84,84,50); wr(84,15,KT_X)
    cmul(86,XS[0],54); wr(86,16,KT_X)
    for r in range(17,21):
        cmul(86,86,50); wr(86,r,KT_X)
    A('s_waitcnt lgkmcnt(0)')
    for kk in range(8):
        A(f'ds_read_b128 {vr(96+4*kk,4)}, v58 offset:{32*kk}\nds_read_b128 {vr(64+4*kk,4)}, v58 offset:{KT_X+32*kk}')
    for kk in range(8):
        A(f's_waitcnt lgkmcnt({14-2*kk})')
        A(f'v_mfma_f32_32x32x16_bf16 v[16:31], {vr(64+4*kk,4)}, {vr(96+4*kk,4)}, v[16:31]')
    A(f's_add_u32 s{aSH}, s{aSH}, 16\ns_cmp_lt_u32 s{aSH}, 32\ns_cbranch_scc1 {Lk}')
    A.nop(16)
    stamp('A kgen done')
    if ASTOP==2:
        prof_flush(aWS,aWv); A('s_endpgm'); return
    A(f's_or_b32 s{aT}, s{aWv}, 1\ns_mul_i32 s{aT}, s{aT}, {KT_W}\ns_add_u32 s{aT}, s{aT}, {KT_B}\nv_add_u32 v2, s{aT}, v9')
    L1=A.newlabel('Lkx')
    A(f's_cmp_eq_u32 s{aHF}, 0\ns_cbranch_scc1 {L1}')
    for k in range(3): A(f'ds_write_b128 v2, {vr(16+4*k,4)} offset:{k*1024}')
    A.label(L1)
    A('s_waitcnt lgkmcnt(0)\ns_barrier')
    L2=A.newlabel('Lkt')
    A(f's_cmp_lg_u32 s{aHF}, 0\ns_cbranch_scc1 {L2}')
    for k in range(3): A(f'ds_read_b128 {vr(64+4*k,4)}, v2 offset:{k*1024}')
    A(f's_mul_i32 s{aT}, s{aC}, {T_S}\ns_add_u32 s{aT}, s{aT}, {LA_T}')
    A('v_and_b32 v3, 31, v0\nv_lshrrev_b32 v4, 5, v0\nv_cmp_eq_u32 vcc, 1, v4')
    A('v_lshlrev_b32 v5, 4, v3\nv_lshlrev_b32 v6, 3, v4\nv_add_u32 v5, v5, v6')
    A(f'v_add_u32 v5, s{aT}, v5')
    A('v_lshlrev_b32 v6, 3, v3\nv_add_u32 v6, 512, v6\nv_lshlrev_b32 v7, 2, v3\nv_add_u32 v7, 768, v7\nv_cndmask_b32 v6, v6, v7, vcc')
    A('v_add_u32 v7, 4, v6\nv_add_u32 v8, 128, v6\nv_cndmask_b32 v7, v7, v8, vcc')
    A(f'v_add_u32 v6, s{aT}, v6\nv_add_u32 v7, s{aT}, v7')
    A('v_lshlrev_b32 v8, 1, v3\nv_add_u32 v8, 1024, v8')
    A('v_cmp_eq_u32 s[34:35], 0, v3\nv_mov_b32 v14, 1290\nv_mov_b32 v10, 1280\ns_nop 0\nv_cndmask_b32 v14, v14, v10, s[34:35]\nv_cndmask_b32 v8, v8, v14, vcc')
    A(f'v_add_u32 v8, s{aT}, v8')
    A('s_waitcnt lgkmcnt(0)')
    for k in range(0,12,2): A(f'v_pk_add_f32 {vr(16+k,2)}, {vr(16+k,2)}, {vr(64+k,2)}')
    for k in range(6): A(f'v_cvt_pk_bf16_f32 v{64+k}, v{16+2*k}, v{17+2*k}')
    A('ds_write_b64 v5, v[64:65]\nds_write_b32 v6, v66\nds_write_b32 v7, v67')
    A('ds_write_b16 v8, v68\nds_write_b16_d16_hi v8, v68 offset:64\nds_write_b16 v8, v69 offset:128\nds_write_b16_d16_hi v8, v69 offset:192')
    A(f'v_mov_b32 v10, 0\nv_mov_b32 v11, s{aT}\nds_write_b32 v11, v10 offset:1300')
    A.label(L2)
    a_flag_poll(WS_FLAGA1)
    stamp('A flag1 seen')
    A(f'v_lshrrev_b32 v2, 3, v0\nv_mul_u32_u24 v2, {TSTR}, v2\nv_and_b32 v3, 7, v0\nv_lshlrev_b32 v3, 4, v3\nv_add_u32 v60, v2, v3')
    A(f's_lshl_b32 s{aT}, s{aG}, 5\ns_lshl_b32 s{aT2}, s{aHF}, 4\ns_add_u32 s{aT}, s{aT}, s{aT2}\ns_mul_i32 s{aT}, s{aT}, {TSTR}')
    A(f's_lshl_b32 s{aT2}, s{aAI}, 1\ns_add_u32 s{aT2}, s{aT2}, s{aC}\ns_and_b32 s{aT2}, s{aT2}, 63\ns_lshl_b32 s{aT2}, s{aT2}, 7\ns_add_u32 s62, s{aT}, s{aT2}')
    A(f's_mul_i32 s35, s{aC}, {UC_S}\ns_lshl_b32 s{aT2}, s{aHF}, 11\ns_add_u32 s35, s35, s{aT2}\ns_add_u32 s35, s35, {LA_UC+512}')
    for j in range(2):
        A(f's_add_u32 m0, s35, {j*1024}\ns_add_u32 s{aT}, s62, {WS_UT+j*8*TSTR}')
        A.vm_op(f'buffer_load_dwordx4 v60, {sr(aWS,4)}, s{aT} offen sc1 lds',tag='uc')
    A('v_mov_b32 v10, 0\nv_mov_b32 v11, 0\nv_mov_b32 v12, 0\nv_mov_b32 v13, 0')
    A(f's_mul_i32 s{aT}, s{aC}, {UC_S}\ns_add_u32 s{aT}, s{aT}, {LA_UC}\nv_add_u32 v2, s{aT}, v9\ns_mov_b32 exec_hi, 0\nds_write_b128 v2, v[10:13]')
    A('s_mov_b64 exec, -1')
    A(f's_lshl_b32 s{aT}, s{aWv}, 6\nv_add_u32 v2, s{aT}, v0\nv_lshlrev_b32 v3, 3, v2')
    for i in range(9):
        r=128+i
        A(f'v_add_u32 v4, {i-1}, v3\nv_cvt_f32_u32 v5, v4\nv_cvt_pk_bf16_f32 v5, v5, v5\nv_and_b32 v5, 0xffff, v5\nv_subrev_u32 v5, 17024, v5\nv_cmp_gt_u32 vcc, 128, v4\ns_nop 1\nv_cndmask_b32 v5, v5, v4, vcc')
        if i==0:
            A('v_cmp_eq_u32 vcc, 0, v2\nv_mov_b32 v6, 650\ns_nop 0\nv_cndmask_b32 v5, v5, v6, vcc')
        A(f'v_lshlrev_b32 v{r}, 1, v5')
    A('v_lshlrev_b32 v4, 4, v2\nv_sub_u32 v4, 4080, v4')
    A('s_waitcnt lgkmcnt(0)\ns_barrier')
    A(f's_mul_i32 s{aT}, s{aC}, {P_C}\ns_mul_i32 s{aT2}, s{aHF}, {P_O}\ns_add_u32 s{aT}, s{aT}, s{aT2}\ns_add_u32 s{aT}, s{aT}, {LA_P+4096}\nv_add_u32 v2, s{aT}, v9\ns_mov_b64 exec, 15\nds_write_b128 v2, v[10:13]\ns_mov_b64 exec, -1')
    for c in range(2):
        for i in range(9): A(f'ds_read_u16 v{64+i}, v{128+i} offset:{LA_T+c*T_S}')
        A('s_waitcnt lgkmcnt(0)')
        for k,i in enumerate((6,4,2,0)): A(f'v_lshl_or_b32 v{76+k}, v{64+i}, 16, v{65+i}')
        for k,i in enumerate((7,5,3,1)): A(f'v_lshl_or_b32 v{80+k}, v{64+i}, 16, v{65+i}')
        A(f'ds_write_b128 v4, v[76:79] offset:{LA_P+c*P_C}\nds_write_b128 v4, v[80:83] offset:{LA_P+c*P_C+P_O}')
    A('v_and_b32 v2, 15, v0\nv_lshrrev_b32 v3, 4, v0\nv_and_b32 v5, 1, v3\nv_lshrrev_b32 v6, 1, v3')
    A('v_lshlrev_b32 v7, 4, v5\nv_lshlrev_b32 v8, 5, v6\nv_sub_u32 v7, v7, v8')
    A(f'v_and_b32 v8, 1, v2\nv_mul_u32_u24 v8, {P_O}, v8\nv_lshrrev_b32 v14, 1, v2\nv_lshlrev_b32 v14, 2, v14\nv_sub_u32 v8, v8, v14\nv_add_u32 v8, v8, v7')
    A(f's_mul_i32 s{aT}, s{aC}, {P_C}\ns_lshl_b32 s{aT2}, s{aHF}, 8\ns_sub_u32 s{aT}, s{aT}, s{aT2}\ns_add_u32 s{aT}, s{aT}, {LA_P+4092-192}')
    for q in range(8):
        A(f's_sub_u32 s34, s{aT}, {512*q}\nv_add_u32 v{48+q}, s34, v8')
    A(f'v_lshlrev_b32 v14, 5, v2\nv_add_u32 v14, v14, v7\ns_mul_i32 s{aT}, s{aC}, {UC_S}\ns_sub_u32 s{aT}, s{aT}, s{aT2}\ns_add_u32 s{aT}, s{aT}, {LA_UC+512-192}\nv_add_u32 v56, s{aT}, v14')
    A.vm_drain(' lgkmcnt(0)')
    A('s_barrier')
    stamp('A conv start')
    for rr in range(4):
        for w in range(8): A(f'ds_read_b128 {vr(96+4*w,4)}, v56 offset:{512*w+64*(3-rr)}')
        for q in range(8):
            o=16*(3-rr)
            A(f'ds_read2_b32 {vr(64+4*q,2)}, v{48+q} offset0:{o} offset1:{o+1}\nds_read2_b32 {vr(66+4*q,2)}, v{48+q} offset0:{o+2} offset1:{o+3}')
        for q in range(8):
            A(f's_waitcnt lgkmcnt({min(15,2*(7-q))})')
            for w in range(8-q):
                t=q+w
                cin='0' if (rr==0 and q==0) else vr(16+4*t,4)
                A(f'v_mfma_f32_16x16x32_bf16 {vr(16+4*t,4)}, {vr(64+4*q,4)}, {vr(96+4*w,4)}, {cin}')
    A.nop(10)
    stamp('A conv done')
    A(f's_lshl_b32 s{aT}, s{aWv}, 12\ns_add_u32 s{aT}, s{aT}, {LA_EX}\nv_add_u32 v2, s{aT}, v9')
    L1=A.newlabel('Lcx'); L2=A.newlabel('Lcy')
    A(f's_cmp_lg_u32 s{aHF}, 0\ns_cbranch_scc1 {L1}')
    for k in range(4): A(f'ds_write_b128 v2, {vr(32+4*k,4)} offset:{k*1024}')
    A(f's_branch {L2}')
    A.label(L1)
    for k in range(4): A(f'ds_write_b128 v2, {vr(16+4*k,4)} offset:{k*1024}')
    for k in range(16): A(f'v_mov_b32 v{16+k}, v{32+k}')
    A.label(L2)
    A('s_waitcnt lgkmcnt(0)\ns_barrier')
    A(f's_xor_b32 s{aT}, s{aWv}, 1\ns_lshl_b32 s{aT}, s{aT}, 12\ns_add_u32 s{aT}, s{aT}, {LA_EX}\nv_add_u32 v2, s{aT}, v9')
    for k in range(4): A(f'ds_read_b128 {vr(64+4*k,4)}, v2 offset:{k*1024}')
    A(f'v_and_b32 v3, 15, v0\nv_lshlrev_b32 v3, 5, v3\nv_lshrrev_b32 v4, 4, v0\nv_lshlrev_b32 v4, 3, v4\nv_add_u32 v3, v3, v4\ns_add_u32 s{aT}, s{aWB}, {LA_Y}\nv_add_u32 v3, s{aT}, v3\nv_add_u32 v4, s{aT}, v9')
    A('s_waitcnt lgkmcnt(0)')
    for k in range(0,16,2): A(f'v_pk_add_f32 {vr(16+k,2)}, {vr(16+k,2)}, {vr(64+k,2)}')
    for k in range(8): A(f'v_cvt_pk_bf16_f32 v{64+k}, v{16+2*k}, v{17+2*k}')
    for k in range(4): A(f'ds_write_b64 v3, {vr(64+2*k,2)} offset:{512*k}')
    A('s_waitcnt lgkmcnt(0)')
    A('ds_read_b128 v[72:75], v4\nds_read_b128 v[76:79], v4 offset:1024')
    A(f's_add_u32 s{aT}, s62, {WS_YT}\ns_add_u32 s{aT2}, s62, {WS_YT+8*TSTR}')
    A('s_waitcnt lgkmcnt(0)')
    A.vm_op(f'buffer_store_dwordx4 v[72:75], v60, {sr(aWS,4)}, s{aT} offen sc1',tag='ys')
    A.vm_op(f'buffer_store_dwordx4 v[76:79], v60, {sr(aWS,4)}, s{aT2} offen sc1',tag='ys')
    A(f'v_lshrrev_b32 v2, 3, v0\ns_lshl_b32 s{aT}, s{aWv}, 4\nv_add_u32 v2, s{aT}, v2\nv_and_b32 v3, 7, v0\nv_lshlrev_b32 v3, 4, v3')
    A('v_mul_u32_u24 v4, 896, v2\nv_add_u32 v4, v4, v3\nv_lshlrev_b32 v5, 7, v2\nv_add_u32 v5, v5, v3')
    for j in range(2):
        A(f's_add_u32 m0, s{aWB}, {LA_UIMG2+j*1024}\ns_add_u32 s{aT}, s{sUT}, {j*7168}')
        A.vm_op(f'buffer_load_dwordx4 v4, {sr(aU,4)}, s{aT} offen lds',tag='ut2')
    A(f'v_lshrrev_b32 v6, 4, v0\nv_lshlrev_b32 v6, 4, v6\ns_lshl_b32 s{aT}, s{aG}, 7\nv_add_u32 v6, s{aT}, v6')
    A.vm_op('global_load_dwordx4 v[84:87], v6, s[56:57]',tag='d'); A.vm_op('global_load_dwordx4 v[88:91], v6, s[56:57] offset:64',tag='d')
    A.vm_drain()
    A('s_barrier')
    a_flag_store(WS_FLAGA2)
    stamp('A flag2 set')
    a_flag_poll(WS_FLAGA2)
    stamp('A flag2 seen')
    for j in range(2):
        A(f's_add_u32 m0, s{aWB}, {LA_YIMG+j*1024}\ns_add_u32 s{aT}, s{sTT}, {WS_YT+j*1024}')
        A.vm_op(f'buffer_load_dwordx4 v5, {sr(aWS,4)}, s{aT} offen sc1 lds',tag='yt')
    A(f'v_lshrrev_b32 v7, 4, v0\nv_lshlrev_b32 v7, 3, v7\nv_bfe_u32 v8, v0, 2, 2\nv_add_u32 v7, v7, v8\nv_lshlrev_b32 v7, 7, v7\nv_and_b32 v8, 3, v0\nv_lshlrev_b32 v8, 3, v8\nv_add_u32 v7, v7, v8\ns_lshl_b32 s{aT}, s{aWv}, 5\nv_add_u32 v7, s{aT}, v7')
    A(f'v_and_b32 v8, 15, v0\ns_lshl_b32 s{aT}, s{aWv}, 4\nv_add_u32 v8, s{aT}, v8\nv_lshlrev_b32 v14, 7, v8\nv_lshrrev_b32 v10, 4, v0\nv_lshlrev_b32 v10, 4, v10\nv_add_u32 v14, v14, v10')
    A(f's_lshl_b32 s{aT}, s{aTB}, 6\nv_add_u32 v8, s{aT}, v8\nv_mul_u32_u24 v8, 1792, v8\nv_add_u32 v8, v8, v10\ns_lshl_b32 s34, s{aG}, 7')
    A.vm_drain()
    A('s_barrier')
    for it in range(2):
        A(f'ds_read_b64_tr_b16 {vr(64+4*it,2)}, v7 offset:{LA_YIMG+it*4096}\nds_read_b64_tr_b16 {vr(66+4*it,2)}, v7 offset:{LA_YIMG+it*4096+512}')
        A(f'ds_read_b128 {vr(72+4*it,4)}, v14 offset:{LA_UIMG2+64*it}')
    A('s_waitcnt lgkmcnt(0)')
    for it in range(2):
        for k in range(4):
            y=64+4*it+k; u=72+4*it+k; d=84+4*it+k
            A(f'v_lshlrev_b32 v96, 16, v{y}\nv_lshlrev_b32 v97, 16, v{u}\nv_lshlrev_b32 v98, 16, v{d}\nv_fmac_f32 v96, v97, v98')
            A(f'v_and_b32 v99, 0xffff0000, v{y}\nv_and_b32 v100, 0xffff0000, v{u}\nv_and_b32 v101, 0xffff0000, v{d}\nv_fmac_f32 v99, v100, v101')
            A(f'v_cvt_pk_bf16_f32 v{104+4*it+k}, v96, v99')
        A(f'buffer_store_dwordx4 {vr(104+4*it,4)}, v8, {sr(aOUT,4)}, s34 offen offset:{64*it}')
    stamp('A end')
    prof_flush(aWS,aWv)
    A('s_endpgm')

def main():
    hdr=f'''; S4 conv (A) + hedgehog linear attention (B), single launch, 256 B-workgroups + 224 A-workgroups
; @launch grid=({NB+NA},1,1) block=(256,1,1) lds={LDS_BYTES}
.amdgcn_target "amdgcn-amd-amdhsa--gfx950"
.text
.globl {KN}
.p2align 8
.type {KN},@function
{KN}:
'''
    A(f's_cmp_ge_u32 s2, {NB+NA}\ns_cbranch_scc1 L_exit\ns_cmp_ge_u32 s2, {NB}\ns_cbranch_scc1 L_A')
    if NOB: A('s_endpgm')
    else: gen_B()
    if NOA: A.label('L_A'); A('s_endpgm')
    else: gen_A()
    A.label('L_exit'); A('s_endpgm')
    tail=f'''.section .rodata,"a"
.p2align 6
.amdhsa_kernel {KN}
  .amdhsa_next_free_vgpr 256
  .amdhsa_next_free_sgpr 102
  .amdhsa_accum_offset 256
  .amdhsa_group_segment_fixed_size 0
  .amdhsa_kernarg_size 128
  .amdhsa_user_sgpr_count 2
  .amdhsa_user_sgpr_kernarg_segment_ptr 1
  .amdhsa_system_sgpr_workgroup_id_x 1
.end_amdhsa_kernel
'''
    body=A.text()
    open(OUTF,'w').write(hdr+body+tail)
    errs=lint.lint(body)
    for e in errs: print('LINT',e)
    print('wrote',OUTF,len(body.split(chr(10))),'lines;',len(errs),'lint findings')
main()
```

```python
import sys
from asmlib import Asm, vr, sr
import lint
KN='concat_heads__ssm_conv_s4__linear_kernel_hedgehog__prompt_kernel'
PROF = '--prof' in sys.argv
NOA  = '--noA' in sys.argv
NOB  = '--noB' in sys.argv
NOCLR = '--noclr' in sys.argv
KST = '--kst' in sys.argv
PST = '--pst' in sys.argv
LOC = '--loc' in sys.argv
LSC = '' if LOC else ' sc1'
BPRIO = [int(a.split('=')[1]) for a in sys.argv if a.startswith('--bprio=')]
BPRIO = BPRIO[0] if BPRIO else 2
KDEPTH = [int(a.split('=')[1]) for a in sys.argv if a.startswith('--kd=')]
KDEPTH = KDEPTH[0] if KDEPTH else 3
ASTOP = [int(a.split('=')[1]) for a in sys.argv if a.startswith('--astop=')]
ASTOP = ASTOP[0] if ASTOP else 99
OUTF = [a for a in sys.argv[1:] if not a.startswith('--')]
OUTF = OUTF[0] if OUTF else 'out.s'

WS_EPOCH=0; WS_FLAGA1=0x10000; WS_FLAGA2=0x20000; WS_FLAGB2=0x30000
PSTR=8448; TSTR=8448
WS_PART=0x100000; WS_OBUF=WS_PART+256*PSTR; WS_RED=WS_OBUF+0x200000; CLR_KB=(256*PSTR+0x200000+0x10000)//1024
WS_UT=0x600000; WS_YT=0x800000; WS_PROF=0xA00000
WS_SIZE=0xC00000
NONCE_C=0x9E3779B9
LDS_BYTES=81920
NB=256; NA=256 if '--loc' in sys.argv else 224
SPIN=20000 if '--shortspin' not in sys.argv else 20
LOG2E=0x3fb8aa3b

A=Asm()
prof_n=[0]
def stamp(name):
    if not PROF: return
    i=prof_n[0]; prof_n[0]+=1
    if PST and i>=12 : prof_n[0]-=1; return
    assert i<16, name
    A(f's_memrealtime s[{70+2*i}:{71+2*i}]')
    A.c('stamp %d %s'%(i,name))
def cstamp(name):
    if not PROF: return
    i=prof_n[0]; prof_n[0]+=1
    assert i<16, name
    A(f's_memtime s[{70+2*i}:{71+2*i}]')
    A.c('stamp %d %s'%(i,name))
def prof_flush(srd_ws, wavereg, add=0):
    if not PROF: return
    n=prof_n[0]; prof_n[0]=0
    A('s_waitcnt lgkmcnt(0) vmcnt(0)')
    A(f's_add_u32 s68, s2, {add}\ns_lshl_b32 s68, s68, 2\ns_add_u32 s68, s68, s{wavereg}\ns_lshl_b32 s68, s68, 7\ns_add_u32 s68, s68, {WS_PROF}')
    A('v_mov_b32 v10, 0')
    for i in range(n):
        A(f'v_writelane_b32 v10, s{70+2*i}, {i}')
    A('v_lshlrev_b32 v11, 2, v0\ns_mov_b64 exec, 0xffff')
    A(f'buffer_store_dword v10, v11, {sr(srd_ws,4)}, s68 offen')
    A('s_mov_b64 exec, -1')

def srd(dst, base, nrec):
    A(f's_mov_b32 s{dst}, s{base}\ns_and_b32 s{dst+1}, s{base+1}, 0xffff')
    if isinstance(nrec,int): A(f's_mov_b32 s{dst+2}, {nrec}')
    else: A(f's_mov_b32 s{dst+2}, {nrec}')
    A(f's_mov_b32 s{dst+3}, 0x20000')

S_X=8; S_W=12; S_WO=16; S_WP=20; S_WS=24; S_OUT=28
sN=32; sW=33; sRT=34; sA=35; sRB=36; sP=37; sT=38; sT2=39
sWB=48
sP112=49
sCP=50
sHI=58
sLO=60
sC2=62
sPART=64; sOB=65; sRED=66; sCNT=67
vXA0=1; vXA1=2; vWA=3; vXR=4; vWR=8; vL16=9
vT=10
accA=16; accB=32; wf=48; wpf=64; EP=72; EN=88; PK=104; vU=120
XF=128
SLOT=8192; NSLOT=7
L_PHI=57344; PHI_H=8704
L_WP=L_PHI
L_KVF=L_PHI

def dma(voff, srdb, soff, ldsbase_imm):
    A(f's_add_u32 m0, s{sWB}, {ldsbase_imm}')
    return f'buffer_load_dwordx4 v{voff}, {sr(srdb,4)}, s{soff} offen lds'

def slotaddr(u):
    if u<14: return ((u//2)&1)*16384 + (u&1)*8192
    c=(u-14)%7
    return 32768+c*8192 if c<3 else (c-3)*8192
def w_soff(c,sec,j):
    A(f's_mul_i32 s{sT}, s{sCP+c}, 172032')
    A(f's_add_u32 s{sT}, s{sT}, s{sP112}')
    A(f's_add_u32 s{sT}, s{sT}, {sec*896+j*21504}')
def issue_reg(c):
    for j in range(2):
        A(f's_lshl_b32 s{sT}, s{sCP+c}, 7')
        A.vm_op(f'buffer_load_dwordx4 {vr(XF+16*c+4*j,4)}, v{vXA0+j}, {sr(S_X,4)}, s{sT} offen', tag=('k',c))
    for j in range(2):
        w_soff(c,1,j)
        A.vm_op(f'buffer_load_dwordx4 {vr(XF+16*c+8+4*j,4)}, v{vWA}, {sr(S_W,4)}, s{sT} offen', tag=('k',c))
def write_k(c,vLW):
    b=(c&1)*16384
    for j in range(2):
        A(f'ds_write_b128 v{vLW}, {vr(XF+16*c+4*j,4)} offset:{b+j*1024}')
        A(f'ds_write_b128 v{vLW}, {vr(XF+16*c+8+4*j,4)} offset:{b+8192+j*1024}')
def issue_unit(u):
    slot=slotaddr(u)
    c=(u-14)%7; sec=2 if u<21 else 0
    for j in range(2):
        A(f's_add_u32 m0, s{sWB}, {slot+j*1024}')
        w_soff(c,sec,j)
        A.vm_op(f'buffer_load_dwordx4 v{vWA}, {sr(S_W,4)}, s{sT} offen lds', tag=('u',u))

def read_wfrags(u):
    slot=slotaddr(u)
    for kk in range(4):
        A(f'ds_read_b64_tr_b16 {vr(wf+4*kk,2)}, v{vWR} offset:{slot+2048*kk}')
        A(f'ds_read_b64_tr_b16 {vr(wf+4*kk+2,2)}, v{vWR} offset:{slot+2048*kk+512}')

def softmax(D, tagname, mid=None):
    t=vT
    u=vU
    A.c('softmax '+tagname)
    for r in range(12,16): A(f'v_cndmask_b32 v{D+r}, v{D+r}, v{D}, {sr(sHI,2)}')
    for op,o in (('v_max3_f32',0),('v_min3_f32',4)):
        A(f'{op} v{u+o}, v{D}, v{D+1}, v{D+2}')
        A(f'{op} v{u+o+1}, v{D+3}, v{D+4}, v{D+5}')
        A(f'{op} v{u+o+2}, v{D+6}, v{D+7}, v{D+8}')
        A(f'{op} v{u+o+3}, v{D+9}, v{D+10}, v{D+11}')
    for op,o in (('v_max3_f32',0),('v_min3_f32',4)):
        A(f'{op} v{u+o}, v{u+o}, v{D+12}, v{D+13}')
        A(f'{op} v{u+o+1}, v{u+o+1}, v{D+14}, v{D+15}')
    for op,op2,o in (('v_max3_f32','v_max_f32',0),('v_min3_f32','v_min_f32',4)):
        A(f'{op} v{u+o}, v{u+o}, v{u+o+1}, v{u+o+2}')
    A(f'v_max_f32 v{u}, v{u}, v{u+3}\nv_min_f32 v{u+4}, v{u+4}, v{u+7}')
    A(f'v_mov_b32 v{u+1}, v{u}\nv_mov_b32 v{u+5}, v{u+4}\ns_nop 1')
    A(f'v_permlane32_swap_b32 v{u}, v{u+1}\nv_permlane32_swap_b32 v{u+4}, v{u+5}')
    A(f'v_max_f32 v{u}, v{u}, v{u+1}\nv_min_f32 v{u+4}, v{u+4}, v{u+5}')
    A(f'v_mul_f32 v{t}, s{sC2}, v{u}\nv_mul_f32 v{t+2}, s{sC2}, v{u+4}')
    for r in range(12):
        A(f'v_fma_f32 v{EP+r}, v{D+r}, s{sC2}, -v{t}')
        A(f'v_fma_f32 v{EN+r}, -v{D+r}, s{sC2}, v{t+2}')
    for k in range(4):
        A(f'v_fma_f32 v{u+k}, v{D+12+k}, s{sC2}, -v{t}')
        A(f'v_fma_f32 v{u+4+k}, -v{D+12+k}, s{sC2}, v{t+2}')
    for r in range(12):
        A(f'v_exp_f32 v{EP+r}, v{EP+r}\nv_exp_f32 v{EN+r}, v{EN+r}')
    A(f's_mov_b64 exec, {sr(sLO,2)}')
    for k in range(4):
        A(f'v_exp_f32 v{EP+12+k}, v{u+k}\nv_exp_f32 v{EN+12+k}, v{u+4+k}')
    A('s_mov_b64 exec, -1')
    if mid: mid()
    for k in range(4):
        A(f'v_add_f32 v{u+k}, v{EP+k}, v{EP+4+k}\nv_add_f32 v{u+4+k}, v{EN+k}, v{EN+4+k}')
    for k in range(4):
        A(f'v_add_f32 v{u+k}, v{u+k}, v{EP+8+k}\nv_add_f32 v{u+4+k}, v{u+4+k}, v{EN+8+k}')
    for k in range(4):
        A(f'v_add_f32 v{u+k}, v{u+k}, v{EP+12+k}\nv_add_f32 v{u+4+k}, v{u+4+k}, v{EN+12+k}')
    A(f'v_add_f32 v{u}, v{u}, v{u+1}\nv_add_f32 v{u+4}, v{u+4}, v{u+5}\nv_add_f32 v{u+2}, v{u+2}, v{u+3}\nv_add_f32 v{u+6}, v{u+6}, v{u+7}')
    A(f'v_add_f32 v{u}, v{u}, v{u+2}\nv_add_f32 v{u+4}, v{u+4}, v{u+6}')
    A(f'v_mov_b32 v{u+1}, v{u}\nv_mov_b32 v{u+5}, v{u+4}\ns_nop 1')
    A(f'v_permlane32_swap_b32 v{u}, v{u+1}\nv_permlane32_swap_b32 v{u+4}, v{u+5}')
    A(f'v_add_f32 v{u}, v{u}, v{u+1}\nv_add_f32 v{u+4}, v{u+4}, v{u+5}')
    A(f'v_rcp_f32 v{u}, v{u}\nv_rcp_f32 v{u+4}, v{u+4}\ns_nop 0')
    for r in range(16):
        A(f'v_mul_f32 v{EP+r}, v{u}, v{EP+r}\nv_mul_f32 v{EN+r}, v{u+4}, v{EN+r}')
    for r in range(0,16,2):
        A(f'v_cvt_pk_bf16_f32 v{PK+r//2}, v{EP+r}, v{EP+r+1}')
        A(f'v_cvt_pk_bf16_f32 v{PK+8+r//2}, v{EN+r}, v{EN+r+1}')

def pack_and_phi(acc):
    for r in range(0,16,2):
        A(f'v_cvt_pk_bf16_f32 v{wf+r//2}, v{acc+r}, v{acc+r+1}')
    A(f'v_cndmask_b32 v{wf+6}, v{wf+6}, 0, {sr(sHI,2)}' .replace(', 0, ',', v15, ') )
    A(f'v_cndmask_b32 v{wf+7}, v{wf+7}, v15, {sr(sHI,2)}')
    A('s_nop 1')
    A(f'v_mfma_f32_32x32x16_bf16 {vr(acc,16)}, {vr(wpf,4)}, {vr(wf,4)}, 0')
    A(f'v_mfma_f32_32x32x16_bf16 {vr(acc,16)}, {vr(wpf+4,4)}, {vr(wf+4,4)}, {vr(acc,16)}')
    A.nop(16)

def poll_flags_all(nflags_bytes, base, reg, srd_ws, name):
    L=A.newlabel('Lpf'); Ld=A.newlabel('Lpfd')
    A(f's_mov_b32 s{sCNT}, 0\ns_mov_b32 s{sT}, {base}')
    A.label(L)
    A(f'buffer_load_dwordx4 {vr(reg,4)}, v{vL16}, {sr(srd_ws,4)}, s{sT} offen sc1')
    A('s_waitcnt vmcnt(0)')
    A(f'v_xor_b32 v{reg}, s{sN}, v{reg}\nv_xor_b32 v{reg+1}, s{sN}, v{reg+1}\nv_xor_b32 v{reg+2}, s{sN}, v{reg+2}\nv_xor_b32 v{reg+3}, s{sN}, v{reg+3}')
    A(f'v_or3_b32 v{reg}, v{reg}, v{reg+1}, v{reg+2}\nv_or_b32 v{reg}, v{reg}, v{reg+3}')
    A(f'v_cmp_ne_u32 vcc, 0, v{reg}')
    A(f's_cbranch_vccz {Ld}')
    A(f's_add_u32 s{sCNT}, s{sCNT}, 1\ns_cmp_lt_u32 s{sCNT}, {SPIN}\ns_cbranch_scc1 {L}')
    A.label(Ld)
    A.vm=[]

def chk_flags(reg,addr,base,srd_ws):
    Ld=A.newlabel('Lcf'); L=A.newlabel('Lcfp')
    A(f's_mov_b32 s{sCNT}, 0\ns_mov_b32 s{sT}, {base}')
    A.label(L)
    A(f'v_cmp_ne_u32 vcc, s{sN}, v{reg}')
    A(f's_cbranch_vccz {Ld}')
    A(f's_sleep 4\nbuffer_load_dword v{reg}, v{addr}, {sr(srd_ws,4)}, s{sT} offen sc1\ns_waitcnt vmcnt(0)')
    A(f's_add_u32 s{sCNT}, s{sCNT}, 1\ns_cmp_lt_u32 s{sCNT}, {SPIN}\ns_cbranch_scc1 {L}')
    A.label(Ld)

def gen_B():
    A.label('L_B')
    A(f's_setprio {BPRIO}')
    stamp('B start')
    A(f's_load_dwordx4 s[4:7], s[0:1], 72\ns_load_dwordx4 s[40:43], s[0:1], 88\ns_load_dwordx2 s[44:45], s[0:1], 104\ns_load_dwordx2 s[46:47], s[0:1], 120')
    A(f'v_lshrrev_b32 v10, 6, v0\nv_and_b32 v0, 63, v0\ns_nop 0\nv_readfirstlane_b32 s{sW}, v10')
    if LOC: A(f's_and_b32 s{sP}, s2, 7\ns_lshr_b32 s{sRB}, s2, 3\ns_and_b32 s{sT2}, s{sRB}, 3')
    else: A(f's_and_b32 s{sT}, s2, 7\ns_lshl_b32 s{sT}, s{sT}, 2\ns_lshr_b32 s{sT2}, s2, 3\ns_and_b32 s{sT2}, s{sT2}, 3\ns_add_u32 s{sRB}, s{sT}, s{sT2}\ns_lshr_b32 s{sP}, s2, 5')
    A(f's_lshr_b32 s{sRT}, s{sW}, 1\ns_and_b32 s{sA}, s{sW}, 1\ns_lshl_b32 s{sWB}, s{sW}, 11\ns_mul_i32 s{sP112}, s{sP}, 112')
    if LOC:
        A(f's_mul_i32 s{sT}, s{sRB}, 37\ns_lshr_b32 s{sT}, s{sT}, 8\ns_mul_i32 s{sT}, s{sT}, 7\ns_sub_u32 s{sCP}, s{sRB}, s{sT}')
    else:
        A(f's_lshl_b32 s{sT2}, s{sT2}, 1\ns_add_u32 s{sT}, s{sP}, s{sT2}')
        A(f's_cmp_ge_u32 s{sT}, 7\ns_cselect_b32 s{sT2}, 7, 0\ns_sub_u32 s{sCP}, s{sT}, s{sT2}')
    for c in range(1,7):
        A(f's_add_u32 s{sT}, s{sCP+c-1}, 1\ns_cmp_ge_u32 s{sT}, 7\ns_cselect_b32 s{sCP+c}, 0, s{sT}')
    A(f's_mov_b32 s{sHI}, 0\ns_mov_b32 s{sHI+1}, -1\ns_mov_b32 s{sLO}, -1\ns_mov_b32 s{sLO+1}, 0')
    A(f's_mov_b32 s{sC2}, {LOG2E}\ns_mov_b32 s{sC2+1}, {LOG2E}')
    A(f'v_lshlrev_b32 v{vL16}, 4, v0')
    A(f'v_lshrrev_b32 v10, 3, v0\nv_lshrrev_b32 v11, 4, v0\nv_and_b32 v12, 7, v0')
    A(f's_lshl_b32 s{sT}, s{sW}, 4\nv_add_u32 v13, s{sT}, v10')
    A(f'v_xor_b32 v14, v12, v11\nv_lshlrev_b32 v14, 4, v14\nv_mul_u32_u24 v{vXA0}, 896, v13\nv_add_u32 v{vXA0}, v{vXA0}, v14')
    A(f'v_add_u32 v14, 4, v11\nv_xor_b32 v14, v12, v14\nv_lshlrev_b32 v14, 4, v14\nv_add_u32 v15, 8, v13\nv_mul_u32_u24 v{vXA1}, 896, v15\nv_add_u32 v{vXA1}, v{vXA1}, v14')
    A(f'v_and_b32 v14, 1, v11\nv_lshlrev_b32 v14, 2, v14\nv_xor_b32 v14, v12, v14\nv_lshrrev_b32 v15, 2, v14\nv_sub_u32 v14, v14, v15\nv_lshlrev_b32 v14, 4, v14')
    A(f'v_mul_u32_u24 v{vWA}, 2688, v13\nv_add_u32 v{vWA}, v{vWA}, v14')
    A('s_waitcnt lgkmcnt(0)')
    stamp('kernarg loaded')
    A(f's_mul_i32 s{sT}, s{sRB}, 57344\ns_add_u32 s4, s4, s{sT}\ns_addc_u32 s5, s5, 0')
    srd(S_X,4,57344); srd(S_W,6,1204224); srd(S_WO,42,401408); srd(S_WS,46,WS_SIZE); srd(S_OUT,44,3670016)
    A(f's_lshl_b32 s{sT}, s{sP}, 1\ns_add_u32 s{sT}, s{sT}, s{sA}\ns_mul_i32 s{sT}, s{sT}, 1568\ns_add_u32 s40, s40, s{sT}\ns_addc_u32 s41, s41, 0\ns_sub_u32 s{sT2}, 25088, s{sT}')
    srd(S_WP,40,f's{sT2}')
    A(f's_load_dword s{sN}, s[46:47], {WS_EPOCH}')
    A(f's_lshl_b32 s{sT}, s{sP}, 5\ns_add_u32 s{sT}, s{sT}, s{sRB}\ns_mul_i32 s{sPART}, s{sT}, {PSTR}\ns_add_u32 s{sPART}, s{sPART}, {WS_PART}')
    A(f's_lshl_b32 s{sRED}, s{sP}, 13\ns_add_u32 s{sRED}, s{sRED}, {WS_RED}')
    A(f's_lshl_b32 s{sT}, s{sRB}, 1\ns_add_u32 s{sT}, s{sT}, s{sRT}\ns_lshl_b32 s{sT}, s{sT}, 4\ns_lshl_b32 s{sT2}, s{sP}, 1\ns_add_u32 s{sT}, s{sT}, s{sT2}\ns_add_u32 s{sT}, s{sT}, s{sA}\ns_lshl_b32 s{sOB}, s{sT}, 11\ns_add_u32 s{sOB}, s{sOB}, {WS_OBUF}')
    for c in range(KDEPTH):
        issue_reg(c)
        if PST and c in (0,1,2,3,6): stamp('chunk %d issued'%c)
    A(f's_lshl_b32 s{sT}, s{sA}, 12\ns_lshl_b32 s{sT2}, s{sRT}, 11\ns_add_u32 s{sT}, s{sT}, s{sT2}\ns_add_u32 s{sPART}, s{sPART}, s{sT}')
    A(f'v_and_b32 v10, 31, v0\nv_lshrrev_b32 v11, 5, v0\nv_lshrrev_b32 v12, 1, v10\nv_and_b32 v12, 7, v12')
    A(f's_lshl_b32 s{sT}, s{sRT}, 5\nv_add_u32 v13, s{sT}, v10\nv_lshlrev_b32 v13, 7, v13')
    for kk in range(4):
        A(f'v_add_u32 v14, {2*kk}, v11\nv_xor_b32 v14, v14, v12\nv_lshlrev_b32 v14, 4, v14\nv_add_u32 v{vXR+kk}, v13, v14')
    A(f'v_lshrrev_b32 v10, 4, v0\nv_and_b32 v10, 1, v10\nv_bfe_u32 v12, v0, 2, 2\nv_and_b32 v13, 3, v0')
    A(f'v_and_b32 v14, v13, v10\nv_lshrrev_b32 v15, 1, v13\nv_and_b32 v14, v14, v15\nv_sub_u32 v120, v13, v14')
    A(f'v_lshlrev_b32 v14, 3, v11\nv_add_u32 v14, v14, v12\nv_lshlrev_b32 v{vWR}, 7, v14')
    A(f'v_lshrrev_b32 v14, 1, v12\nv_xor_b32 v14, s{sA}, v14\nv_lshlrev_b32 v14, 6, v14\nv_add_u32 v{vWR}, v{vWR}, v14')
    A(f's_lshl_b32 s{sT}, s{sA}, 3\nv_lshlrev_b32 v14, 5, v10\nv_add_u32 v{vWR}, s{sT}, v{vWR}\nv_add_u32 v{vWR}, v{vWR}, v14\nv_lshlrev_b32 v14, 3, v120\nv_add_u32 v{vWR}, v{vWR}, v14')
    A(f'v_lshlrev_b32 v14, 2, v11\nv_add_u32 v14, v14, v12\nv_mul_u32_u24 v121, 56, v14\nv_lshlrev_b32 v14, 5, v10\nv_add_u32 v121, v121, v14\nv_lshlrev_b32 v14, 3, v13\nv_add_u32 v121, v121, v14\nv_add_u32 v121, s{sWB}, v121')
    A(f's_mul_i32 s{sT}, s{sA}, {PHI_H}\ns_add_u32 s{sT}, s{sT}, {L_PHI}')
    A(f'v_and_b32 v14, 31, v0\ns_lshl_b32 s{sT2}, s{sRT}, 5\nv_add_u32 v14, s{sT2}, v14\nv_mul_u32_u24 v122, 136, v14\nv_lshlrev_b32 v14, 3, v11\nv_add_u32 v122, v122, v14\nv_add_u32 v122, s{sT}, v122')
    A(f'v_lshlrev_b32 v14, 2, v11\nv_add_u32 v14, v14, v12\nv_mul_u32_u24 v123, 136, v14\nv_lshlrev_b32 v14, 5, v10\nv_add_u32 v123, v123, v14\nv_lshlrev_b32 v14, 3, v13\nv_add_u32 v123, v123, v14')
    A(f's_lshl_b32 s{sT2}, s{sRT}, 6\ns_add_u32 s{sT}, s{sT}, s{sT2}\nv_add_u32 v123, s{sT}, v123')
    vWPA=240; vPHW=241; vPHR=242; vFA=243; vFV=244; vF2A=4; vF2V=5; v1A=247; vSEL=248
    A(f'v_mov_b32 v{vWPA}, v121\nv_mov_b32 v{vPHW}, v122\nv_mov_b32 v{vPHR}, v123')
    A('v_mov_b32 v15, 0')
    for k in range(4): A(f'v_mov_b32 v{EP+12+k}, 0\nv_mov_b32 v{EN+12+k}, 0')
    if LOC:
        A(f'v_and_b32 v10, 31, v0\nv_lshlrev_b32 v11, 3, v10\nv_add_u32 v11, s{sP}, v11\nv_mov_b32 v12, v11')
    else:
        A(f'v_and_b32 v10, 31, v0\nv_lshrrev_b32 v11, 2, v10\nv_and_b32 v12, 3, v10\nv_lshlrev_b32 v12, 3, v12\nv_add_u32 v11, v11, v12\ns_lshl_b32 s{sT}, s{sP}, 5\nv_add_u32 v11, s{sT}, v11')
        A(f'v_and_b32 v12, 7, v0\nv_lshlrev_b32 v12, 5, v12\ns_and_b32 s{sT}, s2, 31\nv_add_u32 v12, s{sT}, v12')
    A(f'v_cndmask_b32 v11, v11, v12, {sr(sHI,2)}')
    A(f'v_subrev_u32 v12, 224, v11\nv_cmp_gt_u32 vcc, 224, v11\ns_nop 1\nv_cndmask_b32 v11, v12, v11, vcc\nv_lshlrev_b32 v{vFA}, 7, v11')
    A(f'v_lshrrev_b32 v10, 4, v0\nv_mul_u32_u24 v10, {PSTR}, v10\nv_and_b32 v11, 15, v0\nv_lshlrev_b32 v12, 4, v11\nv_add_u32 v{v1A}, v10, v12')
    A(f'v_and_b32 v12, 1, v11\nv_lshlrev_b32 v12, 4, v12\nv_mov_b32 v13, 0x3f80\nv_lshlrev_b32 v12, v12, v13\nv_lshrrev_b32 v11, 1, v11')
    for q in range(4):
        A(f'v_cmp_eq_u32 vcc, {q}, v11\ns_nop 1\nv_cndmask_b32 v{vSEL+q}, v15, v12, vcc')
    stamp('B prologue issued')
    BUF=[[wf,wf+4,wf+8,wf+12],[72,76,80,88]]
    def rd_unit(u,buf):
        slot=slotaddr(u)
        for kk in range(4):
            A(f'ds_read_b64_tr_b16 {vr(buf[kk],2)}, v{vWR} offset:{slot+2048*kk}')
            A(f'ds_read_b64_tr_b16 {vr(buf[kk]+2,2)}, v{vWR} offset:{slot+2048*kk+512}')
    def gemm_group(units,c0,acc,x_is_A,first,pre=None):
        rd_unit(units[0],BUF[0])
        if pre: pre()
        for i,u in enumerate(units):
            nxt = i+1<len(units)
            if nxt: rd_unit(units[i+1],BUF[(i+1)&1])
            c=c0+i
            for kk in range(4):
                extra = 8 if nxt else 0
                if i==0 and pre: extra += 0
                A(f's_waitcnt lgkmcnt({min(15,2*(3-kk)+extra)})')
                cin='0' if (first and i==0 and kk==0) else vr(acc,16)
                wfr=vr(BUF[i&1][kk],4); xfr=vr(XF+16*c+4*kk,4)
                A(f'v_mfma_f32_32x32x16_bf16 {vr(acc,16)}, '+(f'{xfr}, {wfr}' if x_is_A else f'{wfr}, {xfr}')+f', {cin}')
    vLW=252
    A(f'v_add_u32 v{vLW}, s{sWB}, v{vL16}')
    A.vm_wait(('k',0))
    write_k(0,vLW)
    A('s_waitcnt lgkmcnt(0)\ns_barrier')
    vleft=[14,15,16]
    for c in range(7):
        sx=(c&1)*16384
        for kk in range(4):
            A(f'ds_read_b128 {vr(XF+16*c+4*kk,4)}, v{vXR+kk} offset:{sx}')
        read_wfrags(2*c+1)
        nw=0
        if c<6:
            A.vm_wait(('k',c+1))
            write_k(c+1,vLW); nw=4
        if c+KDEPTH<=6: issue_reg(c+KDEPTH)
        if c+KDEPTH==7:
            for j in range(2):
                A(f's_add_u32 m0, s{sWB}, {L_WP+j*1024}\ns_mov_b32 s{sT}, {j*1024}')
                A.vm_op(f'buffer_load_dwordx4 v{vL16}, {sr(S_WP,4)}, s{sT} offen lds',tag='wp')
        if c+KDEPTH>=7 and vleft: issue_unit(vleft.pop(0))
        if c==5:
            while vleft: issue_unit(vleft.pop(0))
        if c==6:
            A.vm_wait('wp')
            for j in range(2):
                A(f'ds_read_b64_tr_b16 {vr(wpf+4*j,2)}, v{vWPA} offset:{L_WP+896*j}')
                A(f'ds_read_b64_tr_b16 {vr(wpf+4*j+2,2)}, v{vWPA} offset:{L_WP+896*j+448}')
            nw+=4
        for kk in range(4):
            A(f's_waitcnt lgkmcnt({min(15,2*(3-kk)+nw)})')
            cin = '0' if (c==0 and kk==0) else vr(accA,16)
            A(f'v_mfma_f32_32x32x16_bf16 {vr(accA,16)}, {vr(wf+4*kk,4)}, {vr(XF+16*c+4*kk,4)}, {cin}')
        A('s_waitcnt lgkmcnt(0)')
        if c==6:
            A(f'v_cndmask_b32 v{wpf+6}, v{wpf+6}, v15, {sr(sHI,2)}\nv_cndmask_b32 v{wpf+7}, v{wpf+7}, v15, {sr(sHI,2)}')
        A('s_barrier')
        if c==0: stamp('K0 done')
    A(f's_mov_b32 s{sT}, {WS_FLAGA1}')
    A.vm_op(f'buffer_load_dword v{vFV}, v{vFA}, {sr(S_WS,4)}, s{sT} offen sc1',tag='flagc')
    for u in (17,18,19,20): issue_unit(u)
    stamp('K phase done')
    A.nop(6)
    pack_and_phi(accA)
    softmax(accA,'k')
    for jj in range(4):
        A(f'ds_write_b64 v{vPHW}, {vr(PK+2*jj,2)} offset:{16*jj}')
        A(f'ds_write_b64 v{vPHW}, {vr(PK+8+2*jj,2)} offset:{64+16*jj}')
    stamp('softmax k done')
    AF=[PK,PK+4,PK+8,PK+12]
    A.vm_wait(('u',16),' lgkmcnt(0)')
    A('s_barrier')
    gemm_group([14,15,16],0,accB,True,True)
    for m in range(4):
        A(f'ds_read_b64_tr_b16 {vr(AF[m],2)}, v{vPHR} offset:{16*m*136}')
        A(f'ds_read_b64_tr_b16 {vr(AF[m]+2,2)}, v{vPHR} offset:{16*m*136+8*136}')
    A.vm_wait(('u',18),' lgkmcnt(0)')
    A('s_barrier')
    issue_unit(21); issue_unit(22); issue_unit(23)
    gemm_group([17,18],3,accB,True,False)
    A.vm_wait(('u',20))
    A('s_barrier')
    issue_unit(24); issue_unit(25)
    gemm_group([19,20],5,accB,True,False)
    stamp('V phase done')
    A(f'v_and_b32 v10, 31, v0\nv_cmp_eq_u32 vcc, 28, v10\nv_mov_b32 v11, 0x3f803f80')
    A(f'v_add_u32 v12, s{sWB}, v{vL16}\ns_xor_b32 s{sT}, s{sWB}, 4096\nv_add_u32 v13, s{sT}, v{vL16}')
    A(f's_waitcnt lgkmcnt(0)\ns_add_u32 s{sN}, s{sN}, {NONCE_C}')
    A.nop(6)
    for r in range(0,16,2):
        A(f'v_cvt_pk_bf16_f32 v{wf+r//2}, v{accB+r}, v{accB+r+1}')
    for k in range(8): A(f'v_cndmask_b32 v{wf+k}, v{wf+k}, v11, vcc')
    L_VX=slotaddr(19)
    A('s_barrier')
    A(f'ds_write_b128 v12, {vr(wf,4)} offset:{L_VX}\nds_write_b128 v12, {vr(wf+4,4)} offset:{L_VX+1024}')
    A('s_waitcnt lgkmcnt(0)\ns_barrier')
    A(f'ds_read_b128 {vr(wf+8,4)}, v13 offset:{L_VX}\nds_read_b128 {vr(wf+12,4)}, v13 offset:{L_VX+1024}')
    issue_unit(27)
    A.vm_wait('flagc')
    chk_flags(vFV,vFA,WS_FLAGA1,S_WS)
    Lr1=A.newlabel('Lrt1'); Lr2=A.newlabel('Lrtd')
    order0=[wf,wf+4,wf+8,wf+12]; order1=[wf+8,wf+12,wf,wf+4]
    A(f's_cmp_lg_u32 s{sRT}, 0\ns_cbranch_scc1 {Lr1}')
    for m in range(4):
        if m==2: A('s_waitcnt lgkmcnt(0)')
        A(f'v_mfma_f32_32x32x16_bf16 {vr(accA,16)}, {vr(AF[m],4)}, {vr(order0[m],4)}, '+('0' if m==0 else vr(accA,16)))
    A(f's_branch {Lr2}')
    A.label(Lr1)
    for n,m in enumerate((2,3,0,1)):
        if n==2: A('s_waitcnt lgkmcnt(0)')
        A(f'v_mfma_f32_32x32x16_bf16 {vr(accA,16)}, {vr(AF[m],4)}, {vr(order1[m],4)}, '+('0' if n==0 else vr(accA,16)))
    A.label(Lr2)
    A.nop(14)
    for r in range(0,16,2):
        A(f'v_cvt_pk_bf16_f32 v{72+r//2}, v{accA+r}, v{accA+r+1}')
    A.vm_op(f'buffer_store_dwordx4 v[72:75], v{vL16}, {sr(S_WS,4)}, s{sPART} offen'+LSC,tag='part')
    A.vm_op(f'buffer_store_dwordx4 v[76:79], v{vL16}, {sr(S_WS,4)}, s{sPART} offen offset:1024'+LSC,tag='part')
    stamp('partial published')
    if not NOCLR:
        A('v_mov_b32 v10, -1\nv_mov_b32 v11, -1\nv_mov_b32 v12, -1\nv_mov_b32 v13, -1')
        A.vm_op(f'buffer_store_dwordx4 v[10:13], v{vL16}, {sr(S_WS,4)}, s{sOB} offen sc1',tag='oclr')
        A.vm_op(f'buffer_store_dwordx4 v[10:13], v{vL16}, {sr(S_WS,4)}, s{sOB} offen offset:1024 sc1',tag='oclr')
    A.vm_wait(('u',25))
    A('s_barrier')
    issue_unit(26)
    gemm_group([21,22,23,24,25],0,accA,False,True)
    vWO=1; vWOR=2
    sWOB=41; sCOL=42; sACT=43
    A(f's_and_b32 s{sT}, s{sP}, 3\ns_lshl_b32 s45, s{sT}, 8\ns_lshl_b32 s{sT}, s{sT}, 7\ns_lshl_b32 s{sT2}, s{sW}, 5\ns_add_u32 s{sCOL}, s{sT}, s{sT2}')
    A(f's_cmp_lt_u32 s{sCOL}, 448\ns_cselect_b32 s{sACT}, 1, 0\ns_lshl_b32 s{sWOB}, s{sW}, 10')
    A(f'v_lshrrev_b32 v10, 4, v0\nv_mul_u32_u24 v{vWO}, 896, v10\nv_lshlrev_b32 v11, 2, v10\nv_and_b32 v12, 15, v0\nv_xor_b32 v11, v11, v12\nv_lshlrev_b32 v11, 4, v11\nv_add_u32 v{vWO}, v{vWO}, v11\nv_add_u32 v{vWO}, s45, v{vWO}')
    A(f'v_lshrrev_b32 v10, 5, v0\nv_lshlrev_b32 v10, 2, v10\nv_bfe_u32 v11, v0, 2, 2\nv_add_u32 v10, v10, v11\nv_lshlrev_b32 v10, 8, v10\nv_xor_b32 v11, s{sW}, v11\nv_lshlrev_b32 v11, 6, v11\nv_add_u32 v10, v10, v11')
    A(f'v_bfe_u32 v11, v0, 4, 1\nv_lshlrev_b32 v11, 5, v11\nv_add_u32 v10, v10, v11\nv_and_b32 v11, 3, v0\nv_lshlrev_b32 v11, 3, v11\nv_add_u32 v{vWOR}, v10, v11')
    A.vm_wait(('u',26))
    A('s_barrier')
    Lf2=A.newlabel('Lfb2')
    A(f's_cmp_lg_u32 s{sW}, 3\ns_cbranch_scc1 {Lf2}')
    A(f's_lshl_b32 s{sT}, s2, 7\ns_add_u32 s{sT}, s{sT}, {WS_FLAGB2}\nv_mov_b32 v10, s{sN}\nv_mov_b32 v11, s{sN}\nv_mov_b32 v12, s{sN}\nv_mov_b32 v13, s{sN}\ns_mov_b64 exec, 0xff')
    A(f'buffer_store_dwordx4 v[10:13], v{vL16}, {sr(S_WS,4)}, s{sT} offen sc1\ns_mov_b64 exec, -1\ns_nop 1')
    A.label(Lf2)
    LD=[32,36,40,44,104,108,112,116]
    def issue_1a():
        for m in range(8):
            A(f's_add_u32 s{sT}, s40, {m*4*PSTR}')
            A(f'buffer_load_dwordx4 {vr(LD[m],4)}, v{v1A}, {sr(S_WS,4)}, s{sT} offen sc1')
    L1i=A.newlabel('L1a_i')
    A(f's_cmp_lg_u32 s{sW}, 0\ns_cbranch_scc1 {L1i}')
    A(f's_mul_i32 s{sT}, s{sP}, {32*PSTR}\ns_lshl_b32 s{sT2}, s{sRB}, 8\ns_add_u32 s{sT}, s{sT}, s{sT2}\ns_add_u32 s40, s{sT}, {WS_PART}')
    issue_1a()
    A.label(L1i)
    gemm_group([26,27],5,accA,False,False)
    stamp('Q gemm done')
    A('s_waitcnt lgkmcnt(0)\ns_barrier')
    def wo_dma(row0,k0,k1):
        for k in range(k0,k1):
            A(f's_add_u32 m0, s{sWOB}, {k*4096}\ns_add_u32 s{sT}, s46, {(row0+16*k)*896}')
            A(f'buffer_load_dwordx4 v{vWO}, {sr(S_WO,4)}, s{sT} offen lds')
    def wo_frags(h0,h1,row0):
        for h in range(h0,h1):
            for j in range(2):
                b_=XF+8*h+4*j; o=(28*h-row0+16*j)*256
                if o+2048<65536:
                    A(f'ds_read_b64_tr_b16 {vr(b_,2)}, v{vWOR} offset:{o}\nds_read_b64_tr_b16 {vr(b_+2,2)}, v{vWOR} offset:{o+2048}')
                else:
                    A(f'ds_read_b64_tr_b16 {vr(b_,2)}, v6 offset:{o-32768}\nds_read_b64_tr_b16 {vr(b_+2,2)}, v6 offset:{o+2048-32768}')
    A(f's_mul_i32 s46, s{sW}, 3584\nv_add_u32 v6, 32768, v{vWOR}')
    A.nop(8)
    pack_and_phi(accA)
    L1a=A.newlabel('L1a_skip')
    A(f's_cmp_lg_u32 s{sW}, 0\ns_cbranch_scc1 {L1a}')
    A(f'v_and_b32 v10, 15, v0\nv_lshlrev_b32 v10, 4, v10\nv_lshrrev_b32 v11, 4, v0\nv_lshlrev_b32 v11, 3, v11\nv_add_u32 v10, v10, v11')
    A(f's_lshl_b32 s47, s{sRB}, 8\ns_add_u32 s47, s47, s{sRED}\ns_mov_b32 s{sCNT}, 0')
    Lp=A.newlabel('L1a_poll'); Lpd=A.newlabel('L1a_done')
    A.label(Lp)
    for m in range(8):
        A(f's_waitcnt vmcnt({7-m})')
        A(f'v_mfma_f32_16x16x32_bf16 v[48:51], {vr(vSEL,4)}, {vr(LD[m],4)}, '+('0' if m==0 else 'v[48:51]'))
    A.nop(8)
    A(f'v_cmp_u_f32 vcc, v48, v48\ns_cbranch_vccz {Lpd}')
    issue_1a()
    A(f's_add_u32 s{sCNT}, s{sCNT}, 1\ns_cmp_lt_u32 s{sCNT}, {SPIN}\ns_cbranch_scc1 {Lp}')
    A('s_waitcnt vmcnt(0)')
    A.label(Lpd)
    A('v_cvt_pk_bf16_f32 v52, v48, v49\nv_cvt_pk_bf16_f32 v53, v50, v51')
    A(f's_mov_b64 exec, {sr(sLO,2)}')
    A(f'buffer_store_dwordx2 v[52:53], v10, {sr(S_WS,4)}, s47 offen'+LSC)
    A('s_mov_b64 exec, -1')
    A.label(L1a)
    stamp('1a done')
    wo_dma(0,0,7)
    softmax(accA,'q',mid=lambda: wo_dma(0,7,14))
    wo_dma(0,14,20)
    stamp('softmax q done')
    if LOC: A(f'v_and_b32 v12, 7, v0\ns_lshl_b32 s{sT}, s{sRB}, 3\nv_add_u32 v12, s{sT}, v12\nv_lshlrev_b32 v{vF2A}, 7, v12')
    else: A(f'v_and_b32 v12, 7, v0\nv_lshlrev_b32 v12, 5, v12\ns_and_b32 s{sT}, s2, 31\nv_add_u32 v12, s{sT}, v12\nv_lshlrev_b32 v{vF2A}, 7, v12')
    A(f's_mov_b32 s{sT}, {WS_FLAGB2}')
    A(f'buffer_load_dword v{vF2V}, v{vF2A}, {sr(S_WS,4)}, s{sT} offen sc1')
    Lp=A.newlabel('L1b_poll'); Lpd=A.newlabel('L1b_done')
    A(f's_lshl_b32 s{sT}, s{sA}, 12\ns_add_u32 s40, s{sT}, s{sRED}\ns_mov_b32 s{sCNT}, 0')
    A.label(Lp)
    for m in range(4):
        A(f'buffer_load_dwordx4 {vr(32+4*m,4)}, v{vL16}, {sr(S_WS,4)}, s40 offen offset:{m*1024} sc1')
    A('s_waitcnt vmcnt(0)')
    A('v_max3_u32 v10, v32, v33, v34')
    for k in range(35,47,2): A(f'v_max3_u32 v10, v10, v{k}, v{k+1}')
    A('v_max_u32 v10, v10, v47\nv_cmp_eq_u32 vcc, -1, v10')
    A(f's_cbranch_vccz {Lpd}')
    A(f's_add_u32 s{sCNT}, s{sCNT}, 1\ns_cmp_lt_u32 s{sCNT}, {SPIN}\ns_cbranch_scc1 {Lp}')
    A.label(Lpd)
    A.vm=[]
    stamp('1b done')
    for m in range(4):
        A(f'v_mfma_f32_32x32x16_bf16 {vr(accA,16)}, {vr(32+4*m,4)}, {vr(PK+4*m,4)}, '+('0' if m==0 else vr(accA,16)))
    A.nop(16)
    A(f'v_mov_b32 v10, v{accA+12}\nv_mov_b32 v11, v{accA+12}\ns_nop 1\nv_permlane32_swap_b32 v10, v11')
    A('v_add_f32 v11, 0x358637bd, v11\nv_rcp_f32 v12, v11\ns_nop 0')
    for r in range(16):
        A(f'v_mul_f32 v{accA+r}, v12, v{accA+r}')
    for r in range(0,16,2):
        A(f'v_cvt_pk_bf16_f32 v{48+r//2}, v{accA+r}, v{accA+r+1}')
    A(f'v_cndmask_b32 v54, v54, v15, {sr(sHI,2)}\nv_cndmask_b32 v55, v55, v15, {sr(sHI,2)}')
    A.vm_op(f'buffer_store_dwordx4 v[48:51], v{vL16}, {sr(S_WS,4)}, s{sOB} offen sc1',tag='o')
    A.vm_op(f'buffer_store_dwordx4 v[52:55], v{vL16}, {sr(S_WS,4)}, s{sOB} offen offset:1024 sc1',tag='o')
    stamp('o published')
    A(f's_lshl_b32 s{sT}, s{sRB}, 1\ns_lshr_b32 s{sT2}, s{sP}, 2\ns_add_u32 s{sT}, s{sT}, s{sT2}\ns_mov_b32 s44, s{sT}\ns_lshl_b32 s{sT}, s{sT}, 15\ns_lshl_b32 s{sT2}, s{sW}, 13\ns_add_u32 s{sT}, s{sT}, s{sT2}\ns_add_u32 s40, s{sT}, {WS_OBUF}')
    A('s_barrier')
    Lw2=A.newlabel('Lwo2')
    A(f's_cmp_eq_u32 s{sACT}, 0\ns_cbranch_scc1 {Lw2}')
    wo_frags(0,11,0)
    A.label(Lw2)
    A('s_waitcnt lgkmcnt(0)\ns_barrier')
    wo_dma(308,0,5)
    A('s_waitcnt vmcnt(5)')
    chk_flags(vF2V,vF2A,WS_FLAGB2,S_WS)
    def issue_h2():
        for m in range(8):
            A(f's_add_u32 s{sT}, s40, {(m//4)*4096}')
            A(f'buffer_load_dwordx4 {vr(72+4*m,4)}, v{vL16}, {sr(S_WS,4)}, s{sT} offen offset:{(m%4)*1024} sc1')
    issue_h2()
    wo_dma(308,5,9)
    L_O=36864; L_OUT=69632
    A(f's_lshl_b32 s{sT}, s{sW}, 13\ns_add_u32 s{sT}, s{sT}, {L_O}\nv_add_u32 v7, s{sT}, v{vL16}\nv_add_u32 v8, {L_O}, v{vL16}')
    Lp=A.newlabel('Lh2_poll'); Lpd=A.newlabel('Lh2_done')
    A(f's_mov_b32 s{sCNT}, 0')
    A.label(Lp)
    A('s_waitcnt vmcnt(0)')
    A('v_max3_u32 v10, v72, v73, v74')
    for k in range(75,103,2): A(f'v_max3_u32 v10, v10, v{k}, v{k+1}')
    A('v_max_u32 v10, v10, v103\nv_cmp_eq_u32 vcc, -1, v10')
    A(f's_cbranch_vccz {Lpd}')
    issue_h2()
    A(f's_add_u32 s{sCNT}, s{sCNT}, 1\ns_cmp_lt_u32 s{sCNT}, {SPIN}\ns_cbranch_scc1 {Lp}')
    A('s_waitcnt vmcnt(0)')
    A.label(Lpd)
    stamp('hop2 loaded')
    for m in range(8): A(f'ds_write_b128 v7, {vr(72+4*m,4)} offset:{m*1024}')
    A('s_waitcnt lgkmcnt(0)\ns_barrier')
    Le=A.newlabel('LB_s3skip')
    A(f's_cmp_eq_u32 s{sACT}, 0\ns_cbranch_scc1 {Le}')
    wo_frags(11,16,308)
    OB=[[32,36,40,44],[48,52,56,60]]
    def rdo(g):
        for m in range(4): A(f'ds_read_b128 {vr(OB[g&1][m],4)}, v8 offset:{(g*4+m)*1024}')
    rdo(0)
    for g in range(8):
        if g+1<8: rdo(g+1)
        for m in range(4):
            f=g*4+m
            A(f's_waitcnt lgkmcnt({(3-m)+(4 if g+1<8 else 0)})')
            A(f'v_mfma_f32_32x32x16_bf16 {vr(accA,16)}, {vr(XF+4*f,4)}, {vr(OB[g&1][m],4)}, '+('0' if f==0 else vr(accA,16)))
    A(f'v_and_b32 v10, 31, v0\nv_mul_u32_u24 v10, 272, v10\nv_lshrrev_b32 v11, 5, v0\nv_lshlrev_b32 v11, 4, v11\nv_add_u32 v10, v10, v11\ns_lshl_b32 s{sT}, s{sW}, 6\ns_add_u32 s{sT}, s{sT}, {L_OUT}\nv_add_u32 v10, s{sT}, v10')
    A.nop(6)
    for r in range(0,16,2):
        A(f'v_cvt_pk_bf16_f32 v{64+r//2}, v{accA+r}, v{accA+r+1}')
    A('s_nop 1')
    A('v_permlane32_swap_b32 v64, v66\nv_permlane32_swap_b32 v65, v67\nv_permlane32_swap_b32 v68, v70\nv_permlane32_swap_b32 v69, v71')
    A('s_nop 0\nds_write_b128 v10, v[64:67]\nds_write_b128 v10, v[68:71] offset:32')
    A.label(Le)
    A(f'v_lshrrev_b32 v10, 4, v0\ns_lshl_b32 s{sT}, s{sW}, 3\nv_add_u32 v10, s{sT}, v10\nv_and_b32 v11, 15, v0\nv_lshlrev_b32 v11, 4, v11')
    A(f'v_mul_u32_u24 v12, 272, v10\nv_add_u32 v12, v12, v11\nv_add_u32 v12, {L_OUT}, v12')
    A(f's_lshl_b32 s{sT}, s44, 5\nv_add_u32 v10, s{sT}, v10\nv_mul_u32_u24 v10, 1792, v10\nv_add_u32 v10, v10, v11\ns_add_u32 s{sT}, s45, 896')
    A('s_waitcnt lgkmcnt(0)\ns_barrier')
    A('ds_read_b128 v[64:67], v12\nds_read_b128 v[68:71], v12 offset:1088')
    Lm=A.newlabel('Lmask')
    A(f's_cmp_lg_u32 s45, 768\ns_cbranch_scc1 {Lm}\ns_mov_b32 exec_lo, 0x00ff00ff\ns_mov_b32 exec_hi, 0x00ff00ff')
    A.label(Lm)
    A('s_waitcnt lgkmcnt(0)')
    A(f'buffer_store_dwordx4 v[64:67], v10, {sr(S_OUT,4)}, s{sT} offen')
    A(f's_add_u32 s{sT}, s{sT}, {4*1792}')
    A(f'buffer_store_dwordx4 v[68:71], v10, {sr(S_OUT,4)}, s{sT} offen\ns_mov_b64 exec, -1')
    stamp('B end')
    Lx=A.newlabel('LB_exit')
    A(f's_or_b32 s{sT}, s2, s{sW}\ns_cmp_lg_u32 s{sT}, 0\ns_cbranch_scc1 {Lx}')
    if not NOA:
        for k in range(4):
            L=A.newlabel('Lep'); Ld=A.newlabel('Lepd')
            A(f'v_lshlrev_b32 v10, 7, v0\ns_mov_b32 s{sT}, {WS_FLAGA1+k*64*128}\ns_mov_b32 s{sCNT}, 0')
            if k==3: A('s_mov_b32 exec_hi, 0')
            A.label(L)
            A(f'buffer_load_dword v11, v10, {sr(S_WS,4)}, s{sT} offen sc1\ns_waitcnt vmcnt(0)\nv_cmp_ne_u32 vcc, s{sN}, v11\ns_cbranch_vccz {Ld}')
            A(f's_add_u32 s{sCNT}, s{sCNT}, 1\ns_cmp_lt_u32 s{sCNT}, {SPIN}\ns_cbranch_scc1 {L}')
            A.label(Ld)
    A(f's_mov_b64 exec, 0xff\nv_mov_b32 v10, s{sN}\nv_mov_b32 v11, s{sN}\nv_mov_b32 v12, s{sN}\nv_mov_b32 v13, s{sN}\ns_mov_b32 s{sT}, {WS_EPOCH}')
    A(f'buffer_store_dwordx4 v[10:13], v{vL16}, {sr(S_WS,4)}, s{sT} offen sc1\ns_mov_b64 exec, -1')
    A.label(Lx)
    prof_flush(S_WS,sW)
    A('s_endpgm')

def f32(x):
    import struct
    return '0x%08x'%struct.unpack('<I',struct.pack('<f',x))[0]
import math
aU=8; aWS=12; aOUT=16
aRE=40
aDS=56
aG=20; aTB=21; aAI=22; aWv=23; aC=24; aHF=25; aT=26; aT2=27; aWB=28; aSH=29; aLD=30; aCNT=67
KT_W=16880; KT_R=528
LA_UIMG=0; LA_T2=8192
LA_UC=67520; UC_S=4576; UPAD=480
LA_T=76672; T_S=2624
LA_C=16384; C_CH=16640; C_M=4160
LA_UIMG2=0; LA_YIMG=8192
LA_EX=16384; LA_Y=32768
XB=2047
def a_flag_store(base):
    L=A.newlabel('Lafs')
    A(f's_cmp_lg_u32 s{aWv}, 0\ns_cbranch_scc1 {L}')
    A(f's_lshl_b32 s{aT}, s{aAI}, 7\ns_add_u32 s{aT}, s{aT}, {base}\nv_mov_b32 v10, s{sN}\nv_mov_b32 v11, s{sN}\nv_mov_b32 v12, s{sN}\nv_mov_b32 v13, s{sN}\ns_mov_b64 exec, 0xff')
    A(f'buffer_store_dwordx4 v[10:13], v9, {sr(aWS,4)}, s{aT} offen sc1\ns_mov_b64 exec, -1\ns_nop 1')
    A.label(L)
def a_flag_poll(base):
    L=A.newlabel('Lafp'); Ld=A.newlabel('Lafd')
    A(f's_cmp_lg_u32 s{aWv}, 0\ns_cbranch_scc1 {Ld}')
    A(f's_lshl_b32 s{aT}, s{aG}, 12\ns_add_u32 s{aT}, s{aT}, {base}\nv_lshlrev_b32 v2, 7, v0\ns_mov_b32 s{aCNT}, 0\ns_mov_b32 exec_hi, 0')
    A.label(L)
    A(f'buffer_load_dword v3, v2, {sr(aWS,4)}, s{aT} offen sc1\ns_waitcnt vmcnt(0)')
    A(f'v_cmp_ne_u32 vcc, s{sN}, v3\ns_cbranch_vccz {Ld}')
    A(f's_sleep 2\ns_add_u32 s{aCNT}, s{aCNT}, 1\ns_cmp_lt_u32 s{aCNT}, {SPIN}\ns_cbranch_scc1 {L}')
    A.label(Ld)
    A('s_mov_b64 exec, -1\ns_waitcnt lgkmcnt(0)\ns_barrier')
    A.vm=[]

def gen_A():
    A.label('L_A')
    A.vm=[]
    if ASTOP==9:
        A('s_sleep 127\ns_sleep 127\ns_sleep 127\ns_endpgm'); return
    if '--aprio' in sys.argv: A('s_setprio 3')
    stamp('A start')
    A('s_load_dwordx16 s[40:55], s[0:1], 0\ns_load_dwordx2 s[56:57], s[0:1], 64\ns_load_dwordx2 s[58:59], s[0:1], 104\ns_load_dwordx2 s[60:61], s[0:1], 120')
    A(f'v_lshrrev_b32 v1, 6, v0\nv_and_b32 v0, 63, v0\ns_nop 0\nv_readfirstlane_b32 s{aWv}, v1')
    A((f's_and_b32 s{aT}, s2, 7\ns_cmp_eq_u32 s{aT}, 7\ns_cbranch_scc1 L_exit\ns_lshl_b32 s{aT}, s{aT}, 5\ns_lshr_b32 s{aAI}, s2, 3\ns_add_u32 s{aAI}, s{aAI}, s{aT}\n' if LOC else f's_mov_b32 s{aAI}, s2\n')+f's_lshr_b32 s{aG}, s{aAI}, 5\ns_and_b32 s{aTB}, s{aAI}, 31\nv_lshlrev_b32 v9, 4, v0\nv_lshrrev_b32 v2, 3, v0\nv_and_b32 v3, 7, v0\nv_lshlrev_b32 v3, 4, v3')
    A(f's_lshr_b32 s{aC}, s{aWv}, 1\ns_and_b32 s{aHF}, s{aWv}, 1\ns_lshl_b32 s{aWB}, s{aWv}, 11\ns_lshl_b32 s{aT}, s{aWv}, 4\nv_add_u32 v2, s{aT}, v2')
    A('v_mul_u32_u24 v4, 896, v2\nv_add_u32 v4, v4, v3')
    A('v_lshlrev_b32 v5, 7, v2\nv_add_u32 v5, v5, v3')
    sUT=31
    A(f's_mul_i32 s{sUT}, s{aTB}, 57344\ns_lshl_b32 s{aT}, s{aG}, 7\ns_add_u32 s{sUT}, s{sUT}, s{aT}')
    A(f's_lshl_b32 s{aT}, s{aAI}, 1\ns_add_u32 s{aT}, s{aT}, s{aC}\ns_lshl_b32 s{aT}, s{aT}, 9\ns_lshl_b32 s{aT2}, s{aHF}, 8\ns_add_u32 s{aT}, s{aT}, s{aT2}\nv_lshlrev_b32 v6, 2, v0\nv_add_u32 v6, s{aT}, v6')
    A('s_waitcnt lgkmcnt(0)')
    srd(aU,40,1835008)
    for j in range(2):
        A(f's_add_u32 m0, s{aWB}, {LA_UIMG+j*1024}\ns_add_u32 s{aT}, s{sUT}, {j*7168}')
        A.vm_op(f'buffer_load_dwordx4 v4, {sr(aU,4)}, s{aT} offen lds',tag='ut')
    for k in range(6):
        A.vm_op(f'global_load_dword v{32+k}, v6, s[{42+2*k}:{43+2*k}]',tag='par')
    A('s_getpc_b64 s[64:65]')
    A.label('L_pc')
    A('s_add_u32 s64, s64, L_tab-L_pc\ns_addc_u32 s65, s65, 0')
    A(f's_lshl_b32 s{aT}, s{aWv}, 6\nv_add_u32 v10, s{aT}, v0\nv_lshlrev_b32 v11, 4, v10\nv_lshlrev_b32 v10, 3, v10\nv_add_u32 v10, {256*16}, v10')
    A.vm_op('global_load_dwordx4 v[172:175], v11, s[64:65]',tag='tab'); A.vm_op('global_load_dwordx2 v[176:177], v10, s[64:65]',tag='tab')
    srd(aWS,60,WS_SIZE); srd(aOUT,58,3670016)
    A(f's_load_dword s{sN}, s[60:61], {WS_EPOCH}')
    A(f's_lshl_b32 s{aT}, s{aAI}, 2\ns_add_u32 s54, s54, s{aT}\ns_addc_u32 s55, s55, 0\ns_load_dword s{aLD}, s[54:55], 0')
    A('v_mov_b32 v10, -1\nv_mov_b32 v11, -1\nv_mov_b32 v12, -1\nv_mov_b32 v13, -1')
    if LOC: A(f's_and_b32 s34, s{aAI}, 31\ns_lshl_b32 s34, s34, 3\ns_add_u32 s34, s34, s{aG}')
    else: A(f's_mov_b32 s34, s{aAI}')
    Lc=A.newlabel('Lclr')
    def clears():
        A.label(Lc)
        if not NOCLR:
            if LOC: A('s_lshr_b32 s35, s34, 3\ns_and_b32 s36, s34, 7')
            else: A(f's_and_b32 s35, s34, 7\ns_lshl_b32 s35, s35, 2\ns_lshr_b32 s36, s34, 3\ns_and_b32 s36, s36, 3\ns_add_u32 s35, s35, s36\ns_lshr_b32 s36, s34, 5')
            A(f's_lshl_b32 s37, s36, 5\ns_add_u32 s37, s37, s35\ns_mul_i32 s37, s37, {PSTR}\ns_add_u32 s37, s37, s{aWB}\ns_add_u32 s37, s37, {WS_PART}')
            A(f'buffer_store_dwordx4 v[10:13], v9, {sr(aWS,4)}, s37 offen{LSC}\nbuffer_store_dwordx4 v[10:13], v9, {sr(aWS,4)}, s37 offen offset:1024{LSC}')
            Lr=A.newlabel('Lred')
            A(f's_cmp_lg_u32 s{aWv}, 0\ns_cbranch_scc1 {Lr}')
            A(f's_lshl_b32 s37, s36, 13\ns_lshl_b32 s38, s35, 8\ns_add_u32 s37, s37, s38\ns_add_u32 s37, s37, {WS_RED}\ns_mov_b64 exec, 0xffff')
            A(f'buffer_store_dwordx4 v[10:13], v9, {sr(aWS,4)}, s37 offen{LSC}\ns_mov_b64 exec, -1')
            A.label(Lr)
        if not LOC: A(f's_add_u32 s34, s34, 224\ns_cmp_lt_u32 s34, 256\ns_cbranch_scc1 {Lc}')
    A(f'v_lshrrev_b32 v7, 4, v0\nv_lshlrev_b32 v7, 3, v7\nv_bfe_u32 v8, v0, 2, 2\nv_add_u32 v7, v7, v8\nv_lshlrev_b32 v7, 7, v7\nv_and_b32 v8, 3, v0\nv_lshlrev_b32 v8, 3, v8\nv_add_u32 v7, v7, v8\ns_lshl_b32 s{aT}, s{aWv}, 5\nv_add_u32 v7, s{aT}, v7')
    A(f'v_and_b32 v8, 15, v0\ns_lshl_b32 s{aT}, s{aWv}, 4\nv_add_u32 v8, s{aT}, v8\nv_mul_u32_u24 v8, 144, v8\nv_lshrrev_b32 v14, 4, v0\nv_lshlrev_b32 v14, 4, v14\nv_add_u32 v8, v8, v14')
    A('v_mul_u32_u24 v14, 144, v2\nv_add_u32 v14, v14, v3')
    sTT=63
    A(f's_mul_i32 s{sTT}, s{aAI}, {TSTR}')
    A(f's_mul_i32 s{aT}, s{aWv}, {KT_W}\nv_lshlrev_b32 v57, 3, v0\nv_add_u32 v57, s{aT}, v57')
    A(f'v_and_b32 v58, 31, v0\nv_mul_u32_u24 v58, {KT_R}, v58\nv_lshrrev_b32 v59, 5, v0\nv_lshlrev_b32 v59, 4, v59\nv_add_u32 v58, v58, v59\nv_add_u32 v58, s{aT}, v58')
    A(f'v_mul_u32_u24 v1, {T_S}, v0\nv_add_u32 v1, {LA_T+2600}, v1\nv_mov_b32 v14, 0\ns_mov_b64 exec, 3\nds_write_b32 v1, v14\ns_mov_b64 exec, -1')
    A('v_mul_u32_u24 v14, 144, v2\nv_add_u32 v14, v14, v3')
    A.vm_wait('par')
    A('s_barrier')
    for it in range(2):
        A(f'ds_read_b64_tr_b16 {vr(64+4*it,2)}, v7 offset:{LA_UIMG+it*4096}\nds_read_b64_tr_b16 {vr(66+4*it,2)}, v7 offset:{LA_UIMG+it*4096+512}')
    A('s_waitcnt lgkmcnt(0)')
    for it in range(2): A(f'ds_write_b128 v8, {vr(64+4*it,4)} offset:{LA_T2+64*it}')
    for j in range(2): A(f'ds_read_b128 {vr(72+4*j,4)}, v14 offset:{LA_T2+j*8*144}')
    A('s_waitcnt lgkmcnt(0)')
    for j in range(2):
        A(f's_add_u32 s{aT}, s{sTT}, {WS_UT+j*1024}')
        A.vm_op(f'buffer_store_dwordx4 {vr(72+4*j,4)}, v5, {sr(aWS,4)}, s{aT} offen'+LSC,tag='uts')
    clears()
    stamp('A uT stored')
    if '--aprio' in sys.argv: A('s_setprio 0')
    A(f's_lshl_b32 s{aT}, s{aC}, 4\ns_lshr_b32 s{aLD}, s{aLD}, s{aT}\ns_lshl_b32 s{aLD}, s{aLD}, 16')
    A(f'v_mov_b32 v14, s{aLD}\nv_mul_f32 v14, {hex(LOG2E)}, v14\nv_exp_f32 v14, v14\ns_nop 0\nv_cvt_pk_bf16_f32 v14, v14, v14\nv_lshlrev_b32 v15, 16, v14')
    BS=[192,224]
    for st in range(2):
        B_=BS[st]
        for k in range(6):
            if st==0: A(f'v_lshlrev_b32 v{B_+k}, 16, v{32+k}')
            else: A(f'v_and_b32 v{B_+k}, 0xffff0000, v{32+k}')
        for k in range(4): A(f'v_mul_f32 v{B_+k}, v15, v{B_+k}')
    for st in range(2):
        B_=BS[st]
        A(f'v_mul_f32 v60, v{B_+5}, v{B_+3}\nv_mul_f32 v61, v{B_+5}, v{B_+2}\nv_fma_f32 v{B_+6}, v{B_+4}, v{B_+2}, -v60\nv_fma_f32 v{B_+7}, -v{B_+4}, v{B_+3}, -v61')
    for off,k,conj in ((10,8,False),(8,1,True),(12,256,True)):
        for st in range(2):
            B_=BS[st]; t=60+2*st
            A(f'v_mul_f32 v{t}, {f32(k*math.log2(math.e))}, v{B_}\nv_mul_f32 v{t+1}, {f32(k/(2*math.pi))}, v{B_+1}')
        for st in range(2):
            t=60+2*st
            A(f'v_exp_f32 v{t}, v{t}\nv_fract_f32 v{t+1}, v{t+1}')
        for st in range(2):
            B_=BS[st]; t=60+2*st
            A(f'v_cos_f32 v{B_+off}, v{t+1}\nv_sin_f32 v{B_+off+1}, v{t+1}')
        for st in range(2):
            B_=BS[st]; t=60+2*st
            A(f'v_mul_f32 v{B_+off}, v{t}, v{B_+off}')
            A(f'v_mul_f32 v{B_+off+1}, v{t}, v{B_+off+1}' if not conj else f'v_mul_f32_e64 v{B_+off+1}, -v{t}, v{B_+off+1}')
    def cm2(d,z,m):
        for st in range(2):
            B_=BS[st]
            A(f'v_mul_f32 v{B_+30}, v{B_+z+1}, v{B_+m+1}\nv_mul_f32 v{B_+d+1}, v{B_+z+1}, v{B_+m}')
        for st in range(2):
            B_=BS[st]
            A(f'v_fmac_f32 v{B_+d+1}, v{B_+z}, v{B_+m+1}\nv_fma_f32 v{B_+d}, v{B_+z}, v{B_+m}, -v{B_+30}')
    cm2(14,12,12)
    cm2(16,14,14)
    A.vm_drain()
    A('s_barrier')
    A(f's_add_u32 s{sN}, s{sN}, {NONCE_C}')
    a_flag_store(WS_FLAGA1)
    stamp('A flag1 set')
    if ASTOP==1:
        prof_flush(aWS,aWv,256); A('s_endpgm'); return
    rot=[0]
    WT=[40,42,44,46,48,50,52,54]
    def wr2(offs,row):
        t=WT[rot[0]%len(WT)]; rot[0]+=1
        A(f'v_cvt_pk_bf16_f32 v{t}, v{BS[0]+offs}, v{BS[0]+offs+1}\nv_cvt_pk_bf16_f32 v{t+1}, v{BS[1]+offs}, v{BS[1]+offs+1}')
        A(f'ds_write_b64 v57, {vr(t,2)} offset:{row*KT_R}')
    A('v_mov_b32 v54, 0x3f80\nv_mov_b32 v55, 0x3f80\nds_write_b64 v57, v[54:55] offset:0')
    wr2(10,1)
    cm2(18,10,10); wr2(18,2)
    for j in range(3,32):
        cm2(18,18,10); wr2(18,j)
    A('s_waitcnt lgkmcnt(0)')
    for kk in range(16): A(f'ds_read_b128 {vr(64+4*kk,4)}, v58 offset:{32*kk}')
    stamp('A E done')
    if ASTOP==2:
        prof_flush(aWS,aWv,256); A('s_endpgm'); return
    A('s_waitcnt lgkmcnt(0)')
    wr2(6,0)
    cm2(18,6,8); wr2(18,1)
    cm2(20,18,8); wr2(20,2)
    cm2(18,20,8); wr2(18,3)
    cm2(22,18,8); wr2(22,4)
    cm2(18,22,8); wr2(18,5)
    cm2(24,18,8); wr2(24,6)
    cm2(18,24,8); wr2(18,7)
    for r,src in enumerate((6,20,22,24)):
        cm2(18,src,12); wr2(18,8+r)
    cm2(26,6,14); wr2(26,12)
    cm2(28,22,14); wr2(28,13)
    cm2(26,26,12); wr2(26,14)
    cm2(28,28,12); wr2(28,15)
    cm2(18,6,16); wr2(18,16)
    for r in range(17,21):
        cm2(18,18,12); wr2(18,r)
    a_flag_poll(WS_FLAGA1)
    A(f'v_lshrrev_b32 v2, 3, v0\nv_mul_u32_u24 v2, {TSTR}, v2\nv_and_b32 v3, 7, v0\nv_lshlrev_b32 v3, 4, v3\nv_add_u32 v60, v2, v3')
    A(f's_lshl_b32 s{aT}, s{aG}, 5\ns_lshl_b32 s{aT2}, s{aHF}, 4\ns_add_u32 s{aT}, s{aT}, s{aT2}\ns_mul_i32 s{aT}, s{aT}, {TSTR}')
    A(f's_lshl_b32 s{aT2}, s{aAI}, 1\ns_add_u32 s{aT2}, s{aT2}, s{aC}\ns_and_b32 s{aT2}, s{aT2}, 63\ns_lshl_b32 s{aT2}, s{aT2}, 7\ns_add_u32 s62, s{aT}, s{aT2}')
    A(f's_mul_i32 s35, s{aC}, {UC_S}\ns_lshl_b32 s{aT2}, s{aHF}, 11\ns_add_u32 s35, s35, s{aT2}\ns_add_u32 s35, s35, {LA_UC+UPAD}')
    for j in range(2):
        A(f's_add_u32 m0, s35, {j*1024}\ns_add_u32 s{aT}, s62, {WS_UT+j*8*TSTR}')
        A.vm_op(f'buffer_load_dwordx4 v60, {sr(aWS,4)}, s{aT} offen sc1 lds',tag='uc')
    A('v_mov_b32 v10, 0\nv_mov_b32 v11, 0\nv_mov_b32 v12, 0\nv_mov_b32 v13, 0')
    A(f's_mul_i32 s{aT}, s{aC}, {UC_S}\ns_add_u32 s{aT}, s{aT}, {LA_UC}\nv_add_u32 v2, s{aT}, v9\ns_mov_b32 exec_lo, 0x3fffffff\ns_mov_b32 exec_hi, 0\nds_write_b128 v2, v[10:13]\ns_mov_b64 exec, -1')
    A('s_waitcnt lgkmcnt(0)')
    for g in range(4):
        for k in range(4): A(f'ds_read_b128 {vr(128+16*(g&1)+4*k,4)}, v58 offset:{32*(4*g+k)}')
        if g>=1:
            for k in range(4):
                kk=4*(g-1)+k
                A(f's_waitcnt lgkmcnt({7-k})')
                A(f'v_mfma_f32_32x32x16_bf16 v[16:31], {vr(128+16*((g-1)&1)+4*k,4)}, {vr(64+4*kk,4)}, '+('0' if kk==0 else 'v[16:31]'))
    for k in range(4):
        kk=12+k
        A(f's_waitcnt lgkmcnt({3-k})')
        A(f'v_mfma_f32_32x32x16_bf16 v[16:31], {vr(128+16+4*k,4)}, {vr(64+4*kk,4)}, v[16:31]')
    A.vm_wait('tab')
    A(f'v_mov_b32 v1, {LA_T}')
    for i in range(11):
        r=172+i//2 if i<8 else 176+(i-8)//2
        A(f'v_add_u32_sdwa v{160+i}, v1, v{r} dst_sel:DWORD dst_unused:UNUSED_PAD src0_sel:DWORD src1_sel:WORD_{i%2}')
    A(f's_mul_i32 s{aT}, s{aC}, {T_S}\ns_add_u32 s{aT}, s{aT}, {LA_T}')
    A('v_and_b32 v3, 31, v0\nv_lshrrev_b32 v4, 5, v0\nv_cmp_eq_u32 vcc, 1, v4')
    A(f'v_lshlrev_b32 v10, 5, v3\nv_lshlrev_b32 v6, 4, v4\nv_add_u32 v10, v10, v6\nv_add_u32 v10, s{aT}, v10')
    A('v_lshlrev_b32 v6, 4, v3\nv_add_u32 v6, 1024, v6\nv_lshlrev_b32 v7, 3, v3\nv_add_u32 v7, 1536, v7\nv_cndmask_b32 v6, v6, v7, vcc')
    A('v_add_u32 v7, 8, v6\nv_add_u32 v8, 256, v6\nv_cndmask_b32 v7, v7, v8, vcc')
    A(f'v_add_u32 v6, s{aT}, v6\nv_add_u32 v7, s{aT}, v7')
    A('v_lshlrev_b32 v8, 2, v3\nv_add_u32 v8, 2048, v8\nv_mov_b32 v14, 2560\nv_cndmask_b32 v8, v8, v14, vcc')
    A(f'v_add_u32 v8, s{aT}, v8')
    A(f'v_lshrrev_b32 v3, 3, v0\ns_lshl_b32 s{aT}, s{aWv}, 4\nv_add_u32 v3, s{aT}, v3\nv_and_b32 v4, 7, v0\nv_lshlrev_b32 v4, 4, v4')
    A('v_mul_u32_u24 v5, 896, v3\nv_add_u32 v5, v5, v4\nv_lshlrev_b32 v61, 7, v3\nv_add_u32 v61, v61, v4')
    A.nop(2)
    stamp('A kgen done')
    A(f's_mul_i32 s{aT}, s{aWv}, {KT_W}\nv_add_u32 v2, s{aT}, v9\ns_xor_b32 s{aT}, s{aWv}, 1\ns_mul_i32 s{aT}, s{aT}, {KT_W}\nv_add_u32 v12, s{aT}, v9')
    Lh1=A.newlabel('Lkh1'); Lh2=A.newlabel('Lkh2')
    A(f's_cmp_lg_u32 s{aHF}, 0\ns_cbranch_scc1 {Lh1}')
    A('ds_write_b128 v2, v[24:27]\ns_waitcnt lgkmcnt(0)\ns_barrier')
    A('ds_read_b128 v[64:67], v12\nds_read_b128 v[68:71], v12 offset:1024\ns_waitcnt lgkmcnt(0)')
    for k in range(8): A(f'v_add_f32 v{16+k}, v{16+k}, v{64+k}')
    A('ds_write_b128 v10, v[16:19]\nds_write_b64 v6, v[20:21]\nds_write_b64 v7, v[22:23]')
    A(f's_branch {Lh2}')
    A.label(Lh1)
    A('ds_write_b128 v2, v[16:19]\nds_write_b128 v2, v[20:23] offset:1024\ns_waitcnt lgkmcnt(0)\ns_barrier')
    A('ds_read_b128 v[64:67], v12\ns_waitcnt lgkmcnt(0)')
    A('v_add_f32 v24, v24, v64\nv_add_f32 v25, v25, v65\nv_add_f32 v26, v26, v66\nv_add_f32 v27, v27, v67')
    A('s_mov_b32 exec_hi, 1\nds_write_b32 v8, v24\ns_mov_b32 exec_hi, 0')
    A('ds_write_b32 v8, v25 offset:128\nds_write_b32 v8, v26 offset:256\nds_write_b32 v8, v27 offset:384\ns_mov_b32 exec_hi, -1')
    A.label(Lh2)
    A(f's_lshl_b32 s{aT}, s{aWv}, 6\nv_add_u32 v2, s{aT}, v0\nv_lshlrev_b32 v4, 4, v2')
    A('s_waitcnt lgkmcnt(0)')
    stamp('A adds done')
    A('s_barrier')
    for c in range(2):
        for i in range(11): A(f'ds_read_b32 v{64+16*c+i}, v{160+i} offset:{c*T_S}')
    for j in range(2):
        A(f's_add_u32 m0, s{aWB}, {LA_UIMG2+j*1024}\ns_add_u32 s{aT}, s{sUT}, {j*7168}')
        A.vm_op(f'buffer_load_dwordx4 v5, {sr(aU,4)}, s{aT} offen lds',tag='ut2')
    A(f'v_lshrrev_b32 v6, 4, v0\nv_lshlrev_b32 v6, 4, v6\ns_lshl_b32 s{aT}, s{aG}, 7\nv_add_u32 v6, s{aT}, v6')
    A.vm_op('global_load_dwordx4 v[184:187], v6, s[56:57]',tag='d'); A.vm_op('global_load_dwordx4 v[188:191], v6, s[56:57] offset:64',tag='d')
    A(f'v_lshrrev_b32 v7, 1, v0\nv_and_b32 v8, 3, v7\nv_mul_u32_u24 v8, {C_M}, v8\nv_lshrrev_b32 v7, 2, v7\nv_mul_u32_u24 v7, {C_CH}, v7\nv_add_u32 v8, v8, v7\nv_and_b32 v7, 1, v0\nv_lshlrev_b32 v7, 4, v7\nv_add_u32 v8, v8, v7')
    A('v_mov_b32 v10, 0\nv_mov_b32 v11, 0\nv_mov_b32 v12, 0\nv_mov_b32 v13, 0\ns_mov_b64 exec, 0xffff')
    A(f'ds_write_b128 v8, v[10:13] offset:{LA_C+4096}\ns_mov_b64 exec, -1')
    for c in range(2):
        A(f's_waitcnt lgkmcnt({12 if c==0 else 4})')
        g=64+16*c
        for m in range(4):
            for d in range(4): A(f'v_cvt_pk_bf16_f32 v{96+4*m+d}, v{g+m+2*d}, v{g+m+2*d+1}')
        for m in range(4): A(f'ds_write_b128 v4, {vr(96+4*m,4)} offset:{LA_C+c*C_CH+m*C_M}')
    stamp('A copies issued')
    A('v_and_b32 v2, 15, v0\nv_lshrrev_b32 v3, 4, v0\nv_and_b32 v5, 1, v3\nv_lshrrev_b32 v6, 1, v3')
    A(f'v_sub_u32 v7, 3, v2\nv_and_b32 v7, 3, v7')
    A(f'v_lshlrev_b32 v8, 4, v6\nv_add_u32 v8, v8, v2\nv_lshlrev_b32 v14, 3, v5\nv_sub_u32 v8, v8, v14\nv_add_u32 v8, v8, v7')
    A(f'v_sub_u32 v8, {XB}, v8\nv_lshlrev_b32 v8, 1, v8\nv_mul_u32_u24 v14, {C_M}, v7\nv_add_u32 v8, v8, v14')
    A(f's_mul_i32 s{aT}, s{aC}, {C_CH}\ns_lshl_b32 s{aT2}, s{aHF}, 8\ns_sub_u32 s{aT}, s{aT}, s{aT2}\ns_add_u32 s{aT}, s{aT}, {LA_C-64*59}\nv_add_u32 v48, s{aT}, v8')
    A('v_lshlrev_b32 v7, 4, v5\nv_lshlrev_b32 v8, 5, v6\nv_sub_u32 v7, v7, v8\nv_lshlrev_b32 v14, 5, v2\nv_add_u32 v14, v14, v7')
    A(f's_mul_i32 s{aT}, s{aC}, {UC_S}\ns_sub_u32 s{aT}, s{aT}, s{aT2}\ns_add_u32 s{aT}, s{aT}, {LA_UC+UPAD-192}\nv_add_u32 v56, s{aT}, v14')
    A.vm_wait('uc',' lgkmcnt(0)')
    A('s_barrier')
    stamp('A conv start')
    AB=[64,128]; BB=[96,192]
    def rdconv(rr):
        s_=rr&1
        for w in range(8): A(f'ds_read_b128 {vr(BB[s_]+4*w,4)}, v56 offset:{512*w+64*(3-rr)}')
        for q in range(8):
            o=64*(59-(8*q+rr))
            A(f'ds_read_b64 {vr(AB[s_]+4*q,2)}, v48 offset:{o}\nds_read_b64 {vr(AB[s_]+4*q+2,2)}, v48 offset:{o+8}')
    def rdlist(rr):
        s_=rr&1; L=[]
        for w in range(8): L.append(f'ds_read_b128 {vr(BB[s_]+4*w,4)}, v56 offset:{512*w+64*(3-rr)}')
        for q in range(8):
            o=64*(59-(8*q+rr))
            L.append(f'ds_read_b64 {vr(AB[s_]+4*q,2)}, v48 offset:{o}'); L.append(f'ds_read_b64 {vr(AB[s_]+4*q+2,2)}, v48 offset:{o+8}')
        return L
    for x in rdlist(0): A(x)
    for rr in range(4):
        s_=rr&1
        A('s_waitcnt lgkmcnt(0)')
        nxt=rdlist(rr+1) if rr<3 else []
        n=0
        for q in range(8):
            for w in range(8-q):
                t=q+w
                cin='0' if (rr==0 and q==0) else vr(16+4*t,4)
                A(f'v_mfma_f32_16x16x32_bf16 {vr(16+4*t,4)}, {vr(AB[s_]+4*q,4)}, {vr(BB[s_]+4*w,4)}, {cin}')
                n+=1
                if nxt and n>=2: A(nxt.pop(0))
        assert not nxt
    stamp('A conv done')
    A('s_barrier')
    A(f's_lshl_b32 s{aT}, s{aWv}, 12\ns_add_u32 s{aT}, s{aT}, {LA_EX}\nv_add_u32 v2, s{aT}, v9')
    A(f's_xor_b32 s{aT}, s{aWv}, 1\ns_lshl_b32 s{aT}, s{aT}, 12\ns_add_u32 s{aT}, s{aT}, {LA_EX}\nv_add_u32 v5, s{aT}, v9')
    A(f'v_and_b32 v3, 15, v0\nv_lshlrev_b32 v3, 5, v3\nv_lshrrev_b32 v4, 4, v0\nv_lshlrev_b32 v4, 3, v4\nv_add_u32 v3, v3, v4\ns_add_u32 s{aT}, s{aWB}, {LA_Y}\nv_add_u32 v3, s{aT}, v3\nv_add_u32 v4, s{aT}, v9')
    L1=A.newlabel('Lcx'); L2=A.newlabel('Lcy')
    def fin(keep,send):
        for k in range(4): A(f'ds_write_b128 v2, {vr(send+4*k,4)} offset:{k*1024}')
        A('s_waitcnt lgkmcnt(0)\ns_barrier')
        for k in range(4): A(f'ds_read_b128 {vr(64+4*k,4)}, v5 offset:{k*1024}')
        A('s_waitcnt lgkmcnt(0)')
        for k in range(16): A(f'v_add_f32 v{keep+k}, v{keep+k}, v{64+k}')
        for k in range(8): A(f'v_cvt_pk_bf16_f32 v{64+k}, v{keep+2*k}, v{keep+1+2*k}')
    A(f's_cmp_lg_u32 s{aHF}, 0\ns_cbranch_scc1 {L1}')
    fin(16,32)
    A(f's_branch {L2}')
    A.label(L1)
    fin(32,16)
    A.label(L2)
    for k in range(4): A(f'ds_write_b64 v3, {vr(64+2*k,2)} offset:{512*k}')
    A('ds_read_b128 v[72:75], v4\nds_read_b128 v[76:79], v4 offset:1024')
    A(f's_add_u32 s{aT}, s62, {WS_YT}\ns_add_u32 s{aT2}, s62, {WS_YT+8*TSTR}')
    A('s_waitcnt lgkmcnt(0)')
    A.vm_op(f'buffer_store_dwordx4 v[72:75], v60, {sr(aWS,4)}, s{aT} offen'+LSC,tag='ys')
    A.vm_op(f'buffer_store_dwordx4 v[76:79], v60, {sr(aWS,4)}, s{aT2} offen'+LSC,tag='ys')
    A(f'v_lshrrev_b32 v7, 4, v0\nv_lshlrev_b32 v7, 3, v7\nv_bfe_u32 v8, v0, 2, 2\nv_add_u32 v7, v7, v8\nv_lshlrev_b32 v7, 7, v7\nv_and_b32 v8, 3, v0\nv_lshlrev_b32 v8, 3, v8\nv_add_u32 v7, v7, v8\ns_lshl_b32 s{aT}, s{aWv}, 5\nv_add_u32 v7, s{aT}, v7')
    A(f'v_and_b32 v8, 15, v0\ns_lshl_b32 s{aT}, s{aWv}, 4\nv_add_u32 v8, s{aT}, v8\nv_lshlrev_b32 v14, 7, v8\nv_lshrrev_b32 v6, 4, v0\nv_lshlrev_b32 v6, 4, v6\nv_add_u32 v14, v14, v6')
    A(f's_lshl_b32 s{aT}, s{aTB}, 6\nv_add_u32 v8, s{aT}, v8\nv_mul_u32_u24 v8, 1792, v8\nv_add_u32 v8, v8, v6\ns_lshl_b32 s34, s{aG}, 7')
    A.vm_wait('d')
    for it in range(2):
        for k in range(4):
            A(f'v_lshlrev_b32 v{192+8*it+2*k}, 16, v{184+4*it+k}\nv_and_b32 v{193+8*it+2*k}, 0xffff0000, v{184+4*it+k}')
    A.vm_drain()
    A('s_barrier')
    a_flag_store(WS_FLAGA2)
    stamp('A flag2 set')
    for it in range(2): A(f'ds_read_b128 {vr(72+4*it,4)}, v14 offset:{LA_UIMG2+64*it}')
    A('s_waitcnt lgkmcnt(0)')
    for it in range(2):
        for k in range(4):
            A(f'v_lshlrev_b32 v{208+8*it+2*k}, 16, v{72+4*it+k}\nv_and_b32 v{209+8*it+2*k}, 0xffff0000, v{72+4*it+k}')
    for k in range(16): A(f'v_mul_f32 v{208+k}, v{208+k}, v{192+k}')
    a_flag_poll(WS_FLAGA2)
    stamp('A flag2 seen')
    for j in range(2):
        A(f's_add_u32 m0, s{aWB}, {LA_YIMG+j*1024}\ns_add_u32 s{aT}, s{sTT}, {WS_YT+j*1024}')
        A.vm_op(f'buffer_load_dwordx4 v61, {sr(aWS,4)}, s{aT} offen sc1 lds',tag='yt')
    A.vm_drain()
    A('s_barrier')
    for it in range(2):
        A(f'ds_read_b64_tr_b16 {vr(64+4*it,2)}, v7 offset:{LA_YIMG+it*4096}\nds_read_b64_tr_b16 {vr(66+4*it,2)}, v7 offset:{LA_YIMG+it*4096+512}')
    for it in range(2):
        A(f's_waitcnt lgkmcnt({2*(1-it)})')
        for k in range(4):
            y=64+4*it+k
            A(f'v_lshlrev_b32 v96, 16, v{y}\nv_and_b32 v97, 0xffff0000, v{y}')
            A(f'v_add_f32 v96, v96, v{208+8*it+2*k}\nv_add_f32 v97, v97, v{209+8*it+2*k}')
            A(f'v_cvt_pk_bf16_f32 v{104+4*it+k}, v96, v97')
        A(f'buffer_store_dwordx4 {vr(104+4*it,4)}, v8, {sr(aOUT,4)}, s34 offen offset:{64*it}')
    stamp('A end')
    prof_flush(aWS,aWv,256)
    A('s_endpgm')

def main():
    hdr=f'''; S4 conv (A) + hedgehog linear attention (B), single launch, 256 B-workgroups + 224 A-workgroups
; @launch grid=({NB+NA},1,1) block=(256,1,1) lds={LDS_BYTES}
.amdgcn_target "amdgcn-amd-amdhsa--gfx950"
.text
.globl {KN}
.p2align 8
.type {KN},@function
{KN}:
'''
    A(f's_cmp_ge_u32 s2, {NB+NA}\ns_cbranch_scc1 L_exit\ns_cmp_lt_u32 s2, {NA}\ns_cbranch_scc1 L_A\ns_sub_u32 s2, s2, {NA}')
    if NOB: A('s_endpgm')
    else: gen_B()
    if NOA: A.label('L_A'); A('s_endpgm')
    else: gen_A()
    A.label('L_exit'); A('s_endpgm')
    tail=f'''.section .rodata,"a"
.p2align 6
.amdhsa_kernel {KN}
  .amdhsa_next_free_vgpr 256
  .amdhsa_next_free_sgpr 102
  .amdhsa_accum_offset 256
  .amdhsa_group_segment_fixed_size 0
  .amdhsa_kernarg_size 128
  .amdhsa_user_sgpr_count 2
  .amdhsa_user_sgpr_kernarg_segment_ptr 1
  .amdhsa_system_sgpr_workgroup_id_x 1
.end_amdhsa_kernel
'''
    body=A.text()
    data=''
    if not NOA:
        import numpy as np
        def idx(l):
            if l<0 or l>2047: return 650
            u=np.array([float(l)],np.float32).view(np.uint32)[0]
            bits=int((int(u)+0x7FFF+((int(u)>>16)&1))>>16)
            return l if l<128 else bits-17024
        t4=[];t2=[]
        for t in range(256):
            g=[4*idx(2047-8*t-i) for i in range(11)]+[0]
            t4+=g[:8]; t2+=g[8:12]
        data='.p2align 4\nL_tab:\n'
        for arr in (t4,t2):
            for i in range(0,len(arr),16): data+='  .short '+', '.join(str(x) for x in arr[i:i+16])+'\n'
    open(OUTF,'w').write(hdr+body+data+tail)
    import subprocess
    r=subprocess.run(['clang','-x','assembler','-target','amdgcn-amd-amdhsa','-mcpu=gfx950','-c',OUTF,'-o','chk.o'],capture_output=True,text=True)
    if r.returncode: print('ASM ERRORS:\n'+r.stderr[:3000])
    errs=lint.lint(body)
    for e in errs: print('LINT',e)
    print('wrote',OUTF,len(body.split(chr(10))),'lines;',len(errs),'lint findings')
main()
```

```python
import sys
from asmlib import Asm, vr, sr
import lint
KN='concat_heads__ssm_conv_s4__linear_kernel_hedgehog__prompt_kernel'
PROF = '--prof' in sys.argv
NOA  = '--noA' in sys.argv
NOB  = '--noB' in sys.argv
NOCLR = '--noclr' in sys.argv
KST = '--kst' in sys.argv
PST = '--pst' in sys.argv
KDMA = '--kdma' in sys.argv
LOC = '--loc' in sys.argv
LSC = '' if LOC else ' sc1'
BPRIO = [int(a.split('=')[1]) for a in sys.argv if a.startswith('--bprio=')]
BPRIO = BPRIO[0] if BPRIO else 2
KDEPTH = [int(a.split('=')[1]) for a in sys.argv if a.startswith('--kd=')]
KDEPTH = KDEPTH[0] if KDEPTH else 3
ASTOP = [int(a.split('=')[1]) for a in sys.argv if a.startswith('--astop=')]
ASTOP = ASTOP[0] if ASTOP else 99
OUTF = [a for a in sys.argv[1:] if not a.startswith('--')]
OUTF = OUTF[0] if OUTF else 'out.s'

WS_EPOCH=0; WS_FLAGA1=0x10000; WS_FLAGA2=0x20000; WS_FLAGB2=0x30000
PSTR=8448; TSTR=8448
WS_PART=0x100000; WS_OBUF=WS_PART+256*PSTR; WS_RED=WS_OBUF+0x200000; CLR_KB=(256*PSTR+0x200000+0x10000)//1024
WS_UT=0x600000; WS_YT=0x800000; WS_PROF=0xA00000
WS_SIZE=0xC00000
NONCE_C=0x9E3779B9
LDS_BYTES=81920
NB=256; NA=256 if '--loc' in sys.argv else 224
SPIN=20000 if '--shortspin' not in sys.argv else 20
LOG2E=0x3fb8aa3b

A=Asm()
prof_n=[0]
def stamp(name):
    if not PROF: return
    i=prof_n[0]; prof_n[0]+=1
    if PST and i>=12 : prof_n[0]-=1; return
    assert i<16, name
    A(f's_memrealtime s[{70+2*i}:{71+2*i}]')
    A.c('stamp %d %s'%(i,name))
def cstamp(name):
    if not PROF: return
    i=prof_n[0]; prof_n[0]+=1
    assert i<16, name
    A(f's_memtime s[{70+2*i}:{71+2*i}]')
    A.c('stamp %d %s'%(i,name))
def prof_flush(srd_ws, wavereg, add=0):
    if not PROF: return
    n=prof_n[0]; prof_n[0]=0
    A('s_waitcnt lgkmcnt(0) vmcnt(0)')
    A(f's_add_u32 s68, s2, {add}\ns_lshl_b32 s68, s68, 2\ns_add_u32 s68, s68, s{wavereg}\ns_lshl_b32 s68, s68, 7\ns_add_u32 s68, s68, {WS_PROF}')
    A('v_mov_b32 v10, 0')
    for i in range(n):
        A(f'v_writelane_b32 v10, s{70+2*i}, {i}')
    A('v_lshlrev_b32 v11, 2, v0\ns_mov_b64 exec, 0xffff')
    A(f'buffer_store_dword v10, v11, {sr(srd_ws,4)}, s68 offen')
    A('s_mov_b64 exec, -1')

def srd(dst, base, nrec):
    A(f's_mov_b32 s{dst}, s{base}\ns_and_b32 s{dst+1}, s{base+1}, 0xffff')
    if isinstance(nrec,int): A(f's_mov_b32 s{dst+2}, {nrec}')
    else: A(f's_mov_b32 s{dst+2}, {nrec}')
    A(f's_mov_b32 s{dst+3}, 0x20000')

S_X=8; S_W=12; S_WO=16; S_WP=20; S_WS=24; S_OUT=28
sN=32; sW=33; sRT=34; sA=35; sRB=36; sP=37; sT=38; sT2=39
sWB=48
sP112=49
sCP=50
sHI=58
sLO=60
sC2=62
sPART=64; sOB=65; sRED=66; sCNT=67
vXA0=1; vXA1=2; vWA=3; vXR=4; vWR=8; vL16=9
vT=10
accA=16; accB=32; wf=48; wpf=64; EP=72; EN=88; PK=104; vU=120
XF=128
SLOT=8192; NSLOT=7
L_PHI=57344; PHI_H=8704
L_WP=L_PHI
L_KVF=L_PHI

def dma(voff, srdb, soff, ldsbase_imm):
    A(f's_add_u32 m0, s{sWB}, {ldsbase_imm}')
    return f'buffer_load_dwordx4 v{voff}, {sr(srdb,4)}, s{soff} offen lds'

def slotaddr(u):
    if KDMA: return (u%7)*8192
    if u<14: return ((u//2)&1)*16384 + (u&1)*8192
    c=(u-14)%7
    return 32768+c*8192 if c<3 else (c-3)*8192
def w_soff(c,sec,j):
    A(f's_mul_i32 s{sT}, s{sCP+c}, 172032')
    A(f's_add_u32 s{sT}, s{sT}, s{sP112}')
    A(f's_add_u32 s{sT}, s{sT}, {sec*896+j*21504}')
def issue_reg(c):
    for j in range(2):
        A(f's_lshl_b32 s{sT}, s{sCP+c}, 7')
        A.vm_op(f'buffer_load_dwordx4 {vr(XF+16*c+4*j,4)}, v{vXA0+j}, {sr(S_X,4)}, s{sT} offen', tag=('k',c))
    for j in range(2):
        w_soff(c,1,j)
        A.vm_op(f'buffer_load_dwordx4 {vr(XF+16*c+8+4*j,4)}, v{vWA}, {sr(S_W,4)}, s{sT} offen', tag=('k',c))
def write_k(c,vLW):
    b=(c&1)*16384
    for j in range(2):
        A(f'ds_write_b128 v{vLW}, {vr(XF+16*c+4*j,4)} offset:{b+j*1024}')
        A(f'ds_write_b128 v{vLW}, {vr(XF+16*c+8+4*j,4)} offset:{b+8192+j*1024}')
def issue_unit(u):
    slot=slotaddr(u)
    if u<14:
        c=u//2
        for j in range(2):
            A(f's_add_u32 m0, s{sWB}, {slot+j*1024}')
            if u&1:
                w_soff(c,1,j)
                A.vm_op(f'buffer_load_dwordx4 v{vWA}, {sr(S_W,4)}, s{sT} offen lds', tag=('u',u))
            else:
                A(f's_lshl_b32 s{sT}, s{sCP+c}, 7')
                A.vm_op(f'buffer_load_dwordx4 v{vXA0+j}, {sr(S_X,4)}, s{sT} offen lds', tag=('u',u))
        return
    c=(u-14)%7; sec=2 if u<21 else 0
    for j in range(2):
        A(f's_add_u32 m0, s{sWB}, {slot+j*1024}')
        w_soff(c,sec,j)
        A.vm_op(f'buffer_load_dwordx4 v{vWA}, {sr(S_W,4)}, s{sT} offen lds', tag=('u',u))

def read_wfrags(u):
    slot=slotaddr(u)
    for kk in range(4):
        A(f'ds_read_b64_tr_b16 {vr(wf+4*kk,2)}, v{vWR} offset:{slot+2048*kk}')
        A(f'ds_read_b64_tr_b16 {vr(wf+4*kk+2,2)}, v{vWR} offset:{slot+2048*kk+512}')

def softmax(D, tagname, mid=None):
    t=vT
    u=vU
    A.c('softmax '+tagname)
    for r in range(12,16): A(f'v_cndmask_b32 v{D+r}, v{D+r}, v{D}, {sr(sHI,2)}')
    for op,o in (('v_max3_f32',0),('v_min3_f32',4)):
        A(f'{op} v{u+o}, v{D}, v{D+1}, v{D+2}')
        A(f'{op} v{u+o+1}, v{D+3}, v{D+4}, v{D+5}')
        A(f'{op} v{u+o+2}, v{D+6}, v{D+7}, v{D+8}')
        A(f'{op} v{u+o+3}, v{D+9}, v{D+10}, v{D+11}')
    for op,o in (('v_max3_f32',0),('v_min3_f32',4)):
        A(f'{op} v{u+o}, v{u+o}, v{D+12}, v{D+13}')
        A(f'{op} v{u+o+1}, v{u+o+1}, v{D+14}, v{D+15}')
    for op,op2,o in (('v_max3_f32','v_max_f32',0),('v_min3_f32','v_min_f32',4)):
        A(f'{op} v{u+o}, v{u+o}, v{u+o+1}, v{u+o+2}')
    A(f'v_max_f32 v{u}, v{u}, v{u+3}\nv_min_f32 v{u+4}, v{u+4}, v{u+7}')
    A(f'v_mov_b32 v{u+1}, v{u}\nv_mov_b32 v{u+5}, v{u+4}\ns_nop 1')
    A(f'v_permlane32_swap_b32 v{u}, v{u+1}\nv_permlane32_swap_b32 v{u+4}, v{u+5}')
    A(f'v_max_f32 v{u}, v{u}, v{u+1}\nv_min_f32 v{u+4}, v{u+4}, v{u+5}')
    A(f'v_mul_f32 v{t}, s{sC2}, v{u}\nv_mul_f32 v{t+2}, s{sC2}, v{u+4}')
    for r in range(12):
        A(f'v_fma_f32 v{EP+r}, v{D+r}, s{sC2}, -v{t}')
        A(f'v_fma_f32 v{EN+r}, -v{D+r}, s{sC2}, v{t+2}')
    for k in range(4):
        A(f'v_fma_f32 v{u+k}, v{D+12+k}, s{sC2}, -v{t}')
        A(f'v_fma_f32 v{u+4+k}, -v{D+12+k}, s{sC2}, v{t+2}')
    for r in range(12):
        A(f'v_exp_f32 v{EP+r}, v{EP+r}\nv_exp_f32 v{EN+r}, v{EN+r}')
    A(f's_mov_b64 exec, {sr(sLO,2)}')
    for k in range(4):
        A(f'v_exp_f32 v{EP+12+k}, v{u+k}\nv_exp_f32 v{EN+12+k}, v{u+4+k}')
    A('s_mov_b64 exec, -1')
    if mid: mid()
    for k in range(4):
        A(f'v_add_f32 v{u+k}, v{EP+k}, v{EP+4+k}\nv_add_f32 v{u+4+k}, v{EN+k}, v{EN+4+k}')
    for k in range(4):
        A(f'v_add_f32 v{u+k}, v{u+k}, v{EP+8+k}\nv_add_f32 v{u+4+k}, v{u+4+k}, v{EN+8+k}')
    for k in range(4):
        A(f'v_add_f32 v{u+k}, v{u+k}, v{EP+12+k}\nv_add_f32 v{u+4+k}, v{u+4+k}, v{EN+12+k}')
    A(f'v_add_f32 v{u}, v{u}, v{u+1}\nv_add_f32 v{u+4}, v{u+4}, v{u+5}\nv_add_f32 v{u+2}, v{u+2}, v{u+3}\nv_add_f32 v{u+6}, v{u+6}, v{u+7}')
    A(f'v_add_f32 v{u}, v{u}, v{u+2}\nv_add_f32 v{u+4}, v{u+4}, v{u+6}')
    A(f'v_mov_b32 v{u+1}, v{u}\nv_mov_b32 v{u+5}, v{u+4}\ns_nop 1')
    A(f'v_permlane32_swap_b32 v{u}, v{u+1}\nv_permlane32_swap_b32 v{u+4}, v{u+5}')
    A(f'v_add_f32 v{u}, v{u}, v{u+1}\nv_add_f32 v{u+4}, v{u+4}, v{u+5}')
    A(f'v_rcp_f32 v{u}, v{u}\nv_rcp_f32 v{u+4}, v{u+4}\ns_nop 0')
    for r in range(16):
        A(f'v_mul_f32 v{EP+r}, v{u}, v{EP+r}\nv_mul_f32 v{EN+r}, v{u+4}, v{EN+r}')
    for r in range(0,16,2):
        A(f'v_cvt_pk_bf16_f32 v{PK+r//2}, v{EP+r}, v{EP+r+1}')
        A(f'v_cvt_pk_bf16_f32 v{PK+8+r//2}, v{EN+r}, v{EN+r+1}')

def pack_and_phi(acc):
    for r in range(0,16,2):
        A(f'v_cvt_pk_bf16_f32 v{wf+r//2}, v{acc+r}, v{acc+r+1}')
    A(f'v_cndmask_b32 v{wf+6}, v{wf+6}, 0, {sr(sHI,2)}' .replace(', 0, ',', v15, ') )
    A(f'v_cndmask_b32 v{wf+7}, v{wf+7}, v15, {sr(sHI,2)}')
    A('s_nop 1')
    A(f'v_mfma_f32_32x32x16_bf16 {vr(acc,16)}, {vr(wpf,4)}, {vr(wf,4)}, 0')
    A(f'v_mfma_f32_32x32x16_bf16 {vr(acc,16)}, {vr(wpf+4,4)}, {vr(wf+4,4)}, {vr(acc,16)}')
    A.nop(16)

def poll_flags_all(nflags_bytes, base, reg, srd_ws, name):
    L=A.newlabel('Lpf'); Ld=A.newlabel('Lpfd')
    A(f's_mov_b32 s{sCNT}, 0\ns_mov_b32 s{sT}, {base}')
    A.label(L)
    A(f'buffer_load_dwordx4 {vr(reg,4)}, v{vL16}, {sr(srd_ws,4)}, s{sT} offen sc1')
    A('s_waitcnt vmcnt(0)')
    A(f'v_xor_b32 v{reg}, s{sN}, v{reg}\nv_xor_b32 v{reg+1}, s{sN}, v{reg+1}\nv_xor_b32 v{reg+2}, s{sN}, v{reg+2}\nv_xor_b32 v{reg+3}, s{sN}, v{reg+3}')
    A(f'v_or3_b32 v{reg}, v{reg}, v{reg+1}, v{reg+2}\nv_or_b32 v{reg}, v{reg}, v{reg+3}')
    A(f'v_cmp_ne_u32 vcc, 0, v{reg}')
    A(f's_cbranch_vccz {Ld}')
    A(f's_add_u32 s{sCNT}, s{sCNT}, 1\ns_cmp_lt_u32 s{sCNT}, {SPIN}\ns_cbranch_scc1 {L}')
    A.label(Ld)
    A.vm=[]

def chk_flags(reg,addr,base,srd_ws):
    Ld=A.newlabel('Lcf'); L=A.newlabel('Lcfp')
    A(f's_mov_b32 s{sCNT}, 0\ns_mov_b32 s{sT}, {base}')
    A.label(L)
    A(f'v_cmp_ne_u32 vcc, s{sN}, v{reg}')
    A(f's_cbranch_vccz {Ld}')
    A(f's_sleep 4\nbuffer_load_dword v{reg}, v{addr}, {sr(srd_ws,4)}, s{sT} offen sc1\ns_waitcnt vmcnt(0)')
    A(f's_add_u32 s{sCNT}, s{sCNT}, 1\ns_cmp_lt_u32 s{sCNT}, {SPIN}\ns_cbranch_scc1 {L}')
    A.label(Ld)

def gen_B():
    A.label('L_B')
    A(f's_setprio {BPRIO}')
    stamp('B start')
    A(f's_load_dwordx4 s[4:7], s[0:1], 72\ns_load_dwordx4 s[40:43], s[0:1], 88\ns_load_dwordx2 s[44:45], s[0:1], 104\ns_load_dwordx2 s[46:47], s[0:1], 120')
    A(f'v_lshrrev_b32 v10, 6, v0\nv_and_b32 v0, 63, v0\ns_nop 0\nv_readfirstlane_b32 s{sW}, v10')
    if LOC: A(f's_and_b32 s{sP}, s2, 7\ns_lshr_b32 s{sRB}, s2, 3\ns_and_b32 s{sT2}, s{sRB}, 3')
    else: A(f's_and_b32 s{sT}, s2, 7\ns_lshl_b32 s{sT}, s{sT}, 2\ns_lshr_b32 s{sT2}, s2, 3\ns_and_b32 s{sT2}, s{sT2}, 3\ns_add_u32 s{sRB}, s{sT}, s{sT2}\ns_lshr_b32 s{sP}, s2, 5')
    A(f's_lshr_b32 s{sRT}, s{sW}, 1\ns_and_b32 s{sA}, s{sW}, 1\ns_lshl_b32 s{sWB}, s{sW}, 11\ns_mul_i32 s{sP112}, s{sP}, 112')
    if LOC:
        A(f's_mul_i32 s{sT}, s{sRB}, 37\ns_lshr_b32 s{sT}, s{sT}, 8\ns_mul_i32 s{sT}, s{sT}, 7\ns_sub_u32 s{sCP}, s{sRB}, s{sT}')
    else:
        A(f's_lshl_b32 s{sT2}, s{sT2}, 1\ns_add_u32 s{sT}, s{sP}, s{sT2}')
        A(f's_cmp_ge_u32 s{sT}, 7\ns_cselect_b32 s{sT2}, 7, 0\ns_sub_u32 s{sCP}, s{sT}, s{sT2}')
    for c in range(1,7):
        A(f's_add_u32 s{sT}, s{sCP+c-1}, 1\ns_cmp_ge_u32 s{sT}, 7\ns_cselect_b32 s{sCP+c}, 0, s{sT}')
    A(f's_mov_b32 s{sHI}, 0\ns_mov_b32 s{sHI+1}, -1\ns_mov_b32 s{sLO}, -1\ns_mov_b32 s{sLO+1}, 0')
    A(f's_mov_b32 s{sC2}, {LOG2E}\ns_mov_b32 s{sC2+1}, {LOG2E}')
    A(f'v_lshlrev_b32 v{vL16}, 4, v0')
    A(f'v_lshrrev_b32 v10, 3, v0\nv_lshrrev_b32 v11, 4, v0\nv_and_b32 v12, 7, v0')
    A(f's_lshl_b32 s{sT}, s{sW}, 4\nv_add_u32 v13, s{sT}, v10')
    A(f'v_xor_b32 v14, v12, v11\nv_lshlrev_b32 v14, 4, v14\nv_mul_u32_u24 v{vXA0}, 896, v13\nv_add_u32 v{vXA0}, v{vXA0}, v14')
    A(f'v_add_u32 v14, 4, v11\nv_xor_b32 v14, v12, v14\nv_lshlrev_b32 v14, 4, v14\nv_add_u32 v15, 8, v13\nv_mul_u32_u24 v{vXA1}, 896, v15\nv_add_u32 v{vXA1}, v{vXA1}, v14')
    A(f'v_and_b32 v14, 1, v11\nv_lshlrev_b32 v14, 2, v14\nv_xor_b32 v14, v12, v14\nv_lshrrev_b32 v15, 2, v14\nv_sub_u32 v14, v14, v15\nv_lshlrev_b32 v14, 4, v14')
    A(f'v_mul_u32_u24 v{vWA}, 2688, v13\nv_add_u32 v{vWA}, v{vWA}, v14')
    A('s_waitcnt lgkmcnt(0)')
    stamp('kernarg loaded')
    A(f's_mul_i32 s{sT}, s{sRB}, 57344\ns_add_u32 s4, s4, s{sT}\ns_addc_u32 s5, s5, 0')
    srd(S_X,4,57344); srd(S_W,6,1204224); srd(S_WO,42,401408); srd(S_WS,46,WS_SIZE); srd(S_OUT,44,3670016)
    A(f's_lshl_b32 s{sT}, s{sP}, 1\ns_add_u32 s{sT}, s{sT}, s{sA}\ns_mul_i32 s{sT}, s{sT}, 1568\ns_add_u32 s40, s40, s{sT}\ns_addc_u32 s41, s41, 0\ns_sub_u32 s{sT2}, 25088, s{sT}')
    srd(S_WP,40,f's{sT2}')
    A(f's_load_dword s{sN}, s[46:47], {WS_EPOCH}')
    A(f's_lshl_b32 s{sT}, s{sP}, 5\ns_add_u32 s{sT}, s{sT}, s{sRB}\ns_mul_i32 s{sPART}, s{sT}, {PSTR}\ns_add_u32 s{sPART}, s{sPART}, {WS_PART}')
    A(f's_lshl_b32 s{sRED}, s{sP}, 13\ns_add_u32 s{sRED}, s{sRED}, {WS_RED}')
    A(f's_lshl_b32 s{sT}, s{sRB}, 1\ns_add_u32 s{sT}, s{sT}, s{sRT}\ns_lshl_b32 s{sT}, s{sT}, 4\ns_lshl_b32 s{sT2}, s{sP}, 1\ns_add_u32 s{sT}, s{sT}, s{sT2}\ns_add_u32 s{sT}, s{sT}, s{sA}\ns_lshl_b32 s{sOB}, s{sT}, 11\ns_add_u32 s{sOB}, s{sOB}, {WS_OBUF}')
    if KDMA:
        for u in range(4): issue_unit(u)
    else:
        for c in range(KDEPTH):
            issue_reg(c)
            if PST and c in (0,1,2,3,6): stamp('chunk %d issued'%c)
    A(f's_lshl_b32 s{sT}, s{sA}, 12\ns_lshl_b32 s{sT2}, s{sRT}, 11\ns_add_u32 s{sT}, s{sT}, s{sT2}\ns_add_u32 s{sPART}, s{sPART}, s{sT}')
    A(f'v_and_b32 v10, 31, v0\nv_lshrrev_b32 v11, 5, v0\nv_lshrrev_b32 v12, 1, v10\nv_and_b32 v12, 7, v12')
    A(f's_lshl_b32 s{sT}, s{sRT}, 5\nv_add_u32 v13, s{sT}, v10\nv_lshlrev_b32 v13, 7, v13')
    for kk in range(4):
        A(f'v_add_u32 v14, {2*kk}, v11\nv_xor_b32 v14, v14, v12\nv_lshlrev_b32 v14, 4, v14\nv_add_u32 v{vXR+kk}, v13, v14')
    A(f'v_lshrrev_b32 v10, 4, v0\nv_and_b32 v10, 1, v10\nv_bfe_u32 v12, v0, 2, 2\nv_and_b32 v13, 3, v0')
    A(f'v_and_b32 v14, v13, v10\nv_lshrrev_b32 v15, 1, v13\nv_and_b32 v14, v14, v15\nv_sub_u32 v120, v13, v14')
    A(f'v_lshlrev_b32 v14, 3, v11\nv_add_u32 v14, v14, v12\nv_lshlrev_b32 v{vWR}, 7, v14')
    A(f'v_lshrrev_b32 v14, 1, v12\nv_xor_b32 v14, s{sA}, v14\nv_lshlrev_b32 v14, 6, v14\nv_add_u32 v{vWR}, v{vWR}, v14')
    A(f's_lshl_b32 s{sT}, s{sA}, 3\nv_lshlrev_b32 v14, 5, v10\nv_add_u32 v{vWR}, s{sT}, v{vWR}\nv_add_u32 v{vWR}, v{vWR}, v14\nv_lshlrev_b32 v14, 3, v120\nv_add_u32 v{vWR}, v{vWR}, v14')
    A(f'v_lshlrev_b32 v14, 2, v11\nv_add_u32 v14, v14, v12\nv_mul_u32_u24 v121, 56, v14\nv_lshlrev_b32 v14, 5, v10\nv_add_u32 v121, v121, v14\nv_lshlrev_b32 v14, 3, v13\nv_add_u32 v121, v121, v14\nv_add_u32 v121, s{sWB}, v121')
    A(f's_mul_i32 s{sT}, s{sA}, {PHI_H}\ns_add_u32 s{sT}, s{sT}, {L_PHI}')
    A(f'v_and_b32 v14, 31, v0\ns_lshl_b32 s{sT2}, s{sRT}, 5\nv_add_u32 v14, s{sT2}, v14\nv_mul_u32_u24 v122, 136, v14\nv_lshlrev_b32 v14, 3, v11\nv_add_u32 v122, v122, v14\nv_add_u32 v122, s{sT}, v122')
    A(f'v_lshlrev_b32 v14, 2, v11\nv_add_u32 v14, v14, v12\nv_mul_u32_u24 v123, 136, v14\nv_lshlrev_b32 v14, 5, v10\nv_add_u32 v123, v123, v14\nv_lshlrev_b32 v14, 3, v13\nv_add_u32 v123, v123, v14')
    A(f's_lshl_b32 s{sT2}, s{sRT}, 6\ns_add_u32 s{sT}, s{sT}, s{sT2}\nv_add_u32 v123, s{sT}, v123')
    vWPA=240; vPHW=241; vPHR=242; vFA=243; vFV=244; vF2A=4; vF2V=5; v1A=247; vSEL=248
    A(f'v_mov_b32 v{vWPA}, v121\nv_mov_b32 v{vPHW}, v122\nv_mov_b32 v{vPHR}, v123')
    A('v_mov_b32 v15, 0')
    for k in range(4): A(f'v_mov_b32 v{EP+12+k}, 0\nv_mov_b32 v{EN+12+k}, 0')
    if LOC:
        A(f'v_and_b32 v10, 31, v0\nv_lshlrev_b32 v11, 3, v10\nv_add_u32 v11, s{sP}, v11\nv_mov_b32 v12, v11')
    else:
        A(f'v_and_b32 v10, 31, v0\nv_lshrrev_b32 v11, 2, v10\nv_and_b32 v12, 3, v10\nv_lshlrev_b32 v12, 3, v12\nv_add_u32 v11, v11, v12\ns_lshl_b32 s{sT}, s{sP}, 5\nv_add_u32 v11, s{sT}, v11')
        A(f'v_and_b32 v12, 7, v0\nv_lshlrev_b32 v12, 5, v12\ns_and_b32 s{sT}, s2, 31\nv_add_u32 v12, s{sT}, v12')
    A(f'v_cndmask_b32 v11, v11, v12, {sr(sHI,2)}')
    A(f'v_subrev_u32 v12, 224, v11\nv_cmp_gt_u32 vcc, 224, v11\ns_nop 1\nv_cndmask_b32 v11, v12, v11, vcc\nv_lshlrev_b32 v{vFA}, 7, v11')
    A(f'v_lshrrev_b32 v10, 4, v0\nv_mul_u32_u24 v10, {PSTR}, v10\nv_and_b32 v11, 15, v0\nv_lshlrev_b32 v12, 4, v11\nv_add_u32 v{v1A}, v10, v12')
    A(f'v_and_b32 v12, 1, v11\nv_lshlrev_b32 v12, 4, v12\nv_mov_b32 v13, 0x3f80\nv_lshlrev_b32 v12, v12, v13\nv_lshrrev_b32 v11, 1, v11')
    for q in range(4):
        A(f'v_cmp_eq_u32 vcc, {q}, v11\ns_nop 1\nv_cndmask_b32 v{vSEL+q}, v15, v12, vcc')
    stamp('B prologue issued')
    BUF=[[wf,wf+4,wf+8,wf+12],[72,76,80,88]]
    def rd_unit(u,buf):
        slot=slotaddr(u)
        for kk in range(4):
            A(f'ds_read_b64_tr_b16 {vr(buf[kk],2)}, v{vWR} offset:{slot+2048*kk}')
            A(f'ds_read_b64_tr_b16 {vr(buf[kk]+2,2)}, v{vWR} offset:{slot+2048*kk+512}')
    def gemm_group(units,c0,acc,x_is_A,first,pre=None):
        rd_unit(units[0],BUF[0])
        if pre: pre()
        for i,u in enumerate(units):
            nxt = i+1<len(units)
            if nxt: rd_unit(units[i+1],BUF[(i+1)&1])
            c=c0+i
            for kk in range(4):
                extra = 8 if nxt else 0
                if i==0 and pre: extra += 0
                A(f's_waitcnt lgkmcnt({min(15,2*(3-kk)+extra)})')
                cin='0' if (first and i==0 and kk==0) else vr(acc,16)
                wfr=vr(BUF[i&1][kk],4); xfr=vr(XF+16*c+4*kk,4)
                A(f'v_mfma_f32_32x32x16_bf16 {vr(acc,16)}, '+(f'{xfr}, {wfr}' if x_is_A else f'{wfr}, {xfr}')+f', {cin}')
    if KDMA:
        for u in (4,5,6): issue_unit(u)
        for j in range(2):
            A(f's_add_u32 m0, s{sWB}, {L_WP+j*1024}\ns_mov_b32 s{sT}, {j*1024}')
            A.vm_op(f'buffer_load_dwordx4 v{vL16}, {sr(S_WP,4)}, s{sT} offen lds',tag='wp')
        for c in range(7):
            A.vm_wait(('u',2*c+1))
            A('s_barrier')
            if c>=1:
                issue_unit(2*c+5); issue_unit(2*c+6)
            sx=slotaddr(2*c)
            for kk in range(4):
                A(f'ds_read_b128 {vr(XF+16*c+4*kk,4)}, v{vXR+kk} offset:{sx}')
            read_wfrags(2*c+1)
            if c==4:
                for j in range(2):
                    A(f'ds_read_b64_tr_b16 {vr(wpf+4*j,2)}, v{vWPA} offset:{L_WP+896*j}')
                    A(f'ds_read_b64_tr_b16 {vr(wpf+4*j+2,2)}, v{vWPA} offset:{L_WP+896*j+448}')
            ex = 4 if c==4 else 0
            for kk in range(4):
                A(f's_waitcnt lgkmcnt({2*(3-kk)+ex})')
                cin = '0' if (c==0 and kk==0) else vr(accA,16)
                A(f'v_mfma_f32_32x32x16_bf16 {vr(accA,16)}, {vr(wf+4*kk,4)}, {vr(XF+16*c+4*kk,4)}, {cin}')
            if c==4:
                A('s_waitcnt lgkmcnt(0)')
                A(f'v_cndmask_b32 v{wpf+6}, v{wpf+6}, v15, {sr(sHI,2)}\nv_cndmask_b32 v{wpf+7}, v{wpf+7}, v15, {sr(sHI,2)}')
            if c==0: stamp('K0 done')
        A('s_barrier')
        A(f's_mov_b32 s{sT}, {WS_FLAGA1}')
        A.vm_op(f'buffer_load_dword v{vFV}, v{vFA}, {sr(S_WS,4)}, s{sT} offen sc1',tag='flagc')
        issue_unit(19); issue_unit(20)
    else:
        vLW=252
        A(f'v_add_u32 v{vLW}, s{sWB}, v{vL16}')
        A.vm_wait(('k',0))
        write_k(0,vLW)
        A('s_waitcnt lgkmcnt(0)\ns_barrier')
        vleft=[14,15,16]
        for c in range(7):
            sx=(c&1)*16384
            for kk in range(4):
                A(f'ds_read_b128 {vr(XF+16*c+4*kk,4)}, v{vXR+kk} offset:{sx}')
            read_wfrags(2*c+1)
            nw=0
            if c<6:
                A.vm_wait(('k',c+1))
                write_k(c+1,vLW); nw=4
            if c+KDEPTH<=6: issue_reg(c+KDEPTH)
            if c+KDEPTH==7:
                for j in range(2):
                    A(f's_add_u32 m0, s{sWB}, {L_WP+j*1024}\ns_mov_b32 s{sT}, {j*1024}')
                    A.vm_op(f'buffer_load_dwordx4 v{vL16}, {sr(S_WP,4)}, s{sT} offen lds',tag='wp')
            if c+KDEPTH>=7 and vleft: issue_unit(vleft.pop(0))
            if c==5:
                while vleft: issue_unit(vleft.pop(0))
            if c==6:
                A.vm_wait('wp')
                for j in range(2):
                    A(f'ds_read_b64_tr_b16 {vr(wpf+4*j,2)}, v{vWPA} offset:{L_WP+896*j}')
                    A(f'ds_read_b64_tr_b16 {vr(wpf+4*j+2,2)}, v{vWPA} offset:{L_WP+896*j+448}')
                nw+=4
            for kk in range(4):
                A(f's_waitcnt lgkmcnt({min(15,2*(3-kk)+nw)})')
                cin = '0' if (c==0 and kk==0) else vr(accA,16)
                A(f'v_mfma_f32_32x32x16_bf16 {vr(accA,16)}, {vr(wf+4*kk,4)}, {vr(XF+16*c+4*kk,4)}, {cin}')
            A('s_waitcnt lgkmcnt(0)')
            if c==6:
                A(f'v_cndmask_b32 v{wpf+6}, v{wpf+6}, v15, {sr(sHI,2)}\nv_cndmask_b32 v{wpf+7}, v{wpf+7}, v15, {sr(sHI,2)}')
            A('s_barrier')
            if c==0: stamp('K0 done')
        A(f's_mov_b32 s{sT}, {WS_FLAGA1}')
        A.vm_op(f'buffer_load_dword v{vFV}, v{vFA}, {sr(S_WS,4)}, s{sT} offen sc1',tag='flagc')
        for u in (17,18,19,20): issue_unit(u)
    stamp('K phase done')
    A.nop(6)
    pack_and_phi(accA)
    softmax(accA,'k')
    for jj in range(4):
        A(f'ds_write_b64 v{vPHW}, {vr(PK+2*jj,2)} offset:{16*jj}')
        A(f'ds_write_b64 v{vPHW}, {vr(PK+8+2*jj,2)} offset:{64+16*jj}')
    stamp('softmax k done')
    AF=[PK,PK+4,PK+8,PK+12]
    A.vm_wait(('u',16),' lgkmcnt(0)')
    A('s_barrier')
    gemm_group([14,15,16],0,accB,True,True)
    for m in range(4):
        A(f'ds_read_b64_tr_b16 {vr(AF[m],2)}, v{vPHR} offset:{16*m*136}')
        A(f'ds_read_b64_tr_b16 {vr(AF[m]+2,2)}, v{vPHR} offset:{16*m*136+8*136}')
    A.vm_wait(('u',18),' lgkmcnt(0)')
    A('s_barrier')
    issue_unit(21); issue_unit(22); issue_unit(23)
    gemm_group([17,18],3,accB,True,False)
    A.vm_wait(('u',20))
    A('s_barrier')
    issue_unit(24); issue_unit(25)
    gemm_group([19,20],5,accB,True,False)
    stamp('V phase done')
    A(f'v_and_b32 v10, 31, v0\nv_cmp_eq_u32 vcc, 28, v10\nv_mov_b32 v11, 0x3f803f80')
    A(f'v_add_u32 v12, s{sWB}, v{vL16}\ns_xor_b32 s{sT}, s{sWB}, 4096\nv_add_u32 v13, s{sT}, v{vL16}')
    A(f's_waitcnt lgkmcnt(0)\ns_add_u32 s{sN}, s{sN}, {NONCE_C}')
    A.nop(6)
    for r in range(0,16,2):
        A(f'v_cvt_pk_bf16_f32 v{wf+r//2}, v{accB+r}, v{accB+r+1}')
    for k in range(8): A(f'v_cndmask_b32 v{wf+k}, v{wf+k}, v11, vcc')
    L_VX=slotaddr(19)
    A('s_barrier')
    A(f'ds_write_b128 v12, {vr(wf,4)} offset:{L_VX}\nds_write_b128 v12, {vr(wf+4,4)} offset:{L_VX+1024}')
    A('s_waitcnt lgkmcnt(0)\ns_barrier')
    A(f'ds_read_b128 {vr(wf+8,4)}, v13 offset:{L_VX}\nds_read_b128 {vr(wf+12,4)}, v13 offset:{L_VX+1024}')
    issue_unit(27)
    A.vm_wait('flagc')
    chk_flags(vFV,vFA,WS_FLAGA1,S_WS)
    Lr1=A.newlabel('Lrt1'); Lr2=A.newlabel('Lrtd')
    order0=[wf,wf+4,wf+8,wf+12]; order1=[wf+8,wf+12,wf,wf+4]
    A(f's_cmp_lg_u32 s{sRT}, 0\ns_cbranch_scc1 {Lr1}')
    for m in range(4):
        if m==2: A('s_waitcnt lgkmcnt(0)')
        A(f'v_mfma_f32_32x32x16_bf16 {vr(accA,16)}, {vr(AF[m],4)}, {vr(order0[m],4)}, '+('0' if m==0 else vr(accA,16)))
    A(f's_branch {Lr2}')
    A.label(Lr1)
    for n,m in enumerate((2,3,0,1)):
        if n==2: A('s_waitcnt lgkmcnt(0)')
        A(f'v_mfma_f32_32x32x16_bf16 {vr(accA,16)}, {vr(AF[m],4)}, {vr(order1[m],4)}, '+('0' if n==0 else vr(accA,16)))
    A.label(Lr2)
    A.nop(14)
    for r in range(0,16,2):
        A(f'v_cvt_pk_bf16_f32 v{72+r//2}, v{accA+r}, v{accA+r+1}')
    A.vm_op(f'buffer_store_dwordx4 v[72:75], v{vL16}, {sr(S_WS,4)}, s{sPART} offen'+LSC,tag='part')
    A.vm_op(f'buffer_store_dwordx4 v[76:79], v{vL16}, {sr(S_WS,4)}, s{sPART} offen offset:1024'+LSC,tag='part')
    stamp('partial published')
    if not NOCLR:
        A('v_mov_b32 v10, -1\nv_mov_b32 v11, -1\nv_mov_b32 v12, -1\nv_mov_b32 v13, -1')
        A.vm_op(f'buffer_store_dwordx4 v[10:13], v{vL16}, {sr(S_WS,4)}, s{sOB} offen sc1',tag='oclr')
        A.vm_op(f'buffer_store_dwordx4 v[10:13], v{vL16}, {sr(S_WS,4)}, s{sOB} offen offset:1024 sc1',tag='oclr')
    A.vm_wait(('u',25))
    A('s_barrier')
    issue_unit(26)
    gemm_group([21,22,23,24,25],0,accA,False,True)
    vWO=1; vWOR=2
    sWOB=41; sCOL=42; sACT=43
    A(f's_and_b32 s{sT}, s{sP}, 3\ns_lshl_b32 s45, s{sT}, 8\ns_lshl_b32 s{sT}, s{sT}, 7\ns_lshl_b32 s{sT2}, s{sW}, 5\ns_add_u32 s{sCOL}, s{sT}, s{sT2}')
    A(f's_cmp_lt_u32 s{sCOL}, 448\ns_cselect_b32 s{sACT}, 1, 0\ns_lshl_b32 s{sWOB}, s{sW}, 10')
    A(f'v_lshrrev_b32 v10, 4, v0\nv_mul_u32_u24 v{vWO}, 896, v10\nv_lshlrev_b32 v11, 2, v10\nv_and_b32 v12, 15, v0\nv_xor_b32 v11, v11, v12\nv_lshlrev_b32 v11, 4, v11\nv_add_u32 v{vWO}, v{vWO}, v11\nv_add_u32 v{vWO}, s45, v{vWO}')
    A(f'v_lshrrev_b32 v10, 5, v0\nv_lshlrev_b32 v10, 2, v10\nv_bfe_u32 v11, v0, 2, 2\nv_add_u32 v10, v10, v11\nv_lshlrev_b32 v10, 8, v10\nv_xor_b32 v11, s{sW}, v11\nv_lshlrev_b32 v11, 6, v11\nv_add_u32 v10, v10, v11')
    A(f'v_bfe_u32 v11, v0, 4, 1\nv_lshlrev_b32 v11, 5, v11\nv_add_u32 v10, v10, v11\nv_and_b32 v11, 3, v0\nv_lshlrev_b32 v11, 3, v11\nv_add_u32 v{vWOR}, v10, v11')
    A.vm_wait(('u',26))
    A('s_barrier')
    Lf2=A.newlabel('Lfb2')
    A(f's_cmp_lg_u32 s{sW}, 3\ns_cbranch_scc1 {Lf2}')
    A(f's_lshl_b32 s{sT}, s2, 7\ns_add_u32 s{sT}, s{sT}, {WS_FLAGB2}\nv_mov_b32 v10, s{sN}\nv_mov_b32 v11, s{sN}\nv_mov_b32 v12, s{sN}\nv_mov_b32 v13, s{sN}\ns_mov_b64 exec, 0xff')
    A(f'buffer_store_dwordx4 v[10:13], v{vL16}, {sr(S_WS,4)}, s{sT} offen sc1\ns_mov_b64 exec, -1\ns_nop 1')
    A.label(Lf2)
    LD=[32,36,40,44,104,108,112,116]
    def issue_1a():
        for m in range(8):
            A(f's_add_u32 s{sT}, s40, {m*4*PSTR}')
            A(f'buffer_load_dwordx4 {vr(LD[m],4)}, v{v1A}, {sr(S_WS,4)}, s{sT} offen sc1')
    L1i=A.newlabel('L1a_i')
    A(f's_cmp_lg_u32 s{sW}, 0\ns_cbranch_scc1 {L1i}')
    A(f's_mul_i32 s{sT}, s{sP}, {32*PSTR}\ns_lshl_b32 s{sT2}, s{sRB}, 8\ns_add_u32 s{sT}, s{sT}, s{sT2}\ns_add_u32 s40, s{sT}, {WS_PART}')
    issue_1a()
    A.label(L1i)
    gemm_group([26,27],5,accA,False,False)
    stamp('Q gemm done')
    A('s_waitcnt lgkmcnt(0)\ns_barrier')
    def wo_dma(row0,k0,k1):
        for k in range(k0,k1):
            A(f's_add_u32 m0, s{sWOB}, {k*4096}\ns_add_u32 s{sT}, s46, {(row0+16*k)*896}')
            A(f'buffer_load_dwordx4 v{vWO}, {sr(S_WO,4)}, s{sT} offen lds')
    def wo_frags(h0,h1,row0):
        for h in range(h0,h1):
            for j in range(2):
                b_=XF+8*h+4*j; o=(28*h-row0+16*j)*256
                if o+2048<65536:
                    A(f'ds_read_b64_tr_b16 {vr(b_,2)}, v{vWOR} offset:{o}\nds_read_b64_tr_b16 {vr(b_+2,2)}, v{vWOR} offset:{o+2048}')
                else:
                    A(f'ds_read_b64_tr_b16 {vr(b_,2)}, v6 offset:{o-32768}\nds_read_b64_tr_b16 {vr(b_+2,2)}, v6 offset:{o+2048-32768}')
    A(f's_mul_i32 s46, s{sW}, 3584\nv_add_u32 v6, 32768, v{vWOR}')
    A.nop(8)
    pack_and_phi(accA)
    L1a=A.newlabel('L1a_skip')
    A(f's_cmp_lg_u32 s{sW}, 0\ns_cbranch_scc1 {L1a}')
    A(f'v_and_b32 v10, 15, v0\nv_lshlrev_b32 v10, 4, v10\nv_lshrrev_b32 v11, 4, v0\nv_lshlrev_b32 v11, 3, v11\nv_add_u32 v10, v10, v11')
    A(f's_lshl_b32 s47, s{sRB}, 8\ns_add_u32 s47, s47, s{sRED}\ns_mov_b32 s{sCNT}, 0')
    Lp=A.newlabel('L1a_poll'); Lpd=A.newlabel('L1a_done')
    A.label(Lp)
    for m in range(8):
        A(f's_waitcnt vmcnt({7-m})')
        A(f'v_mfma_f32_16x16x32_bf16 v[48:51], {vr(vSEL,4)}, {vr(LD[m],4)}, '+('0' if m==0 else 'v[48:51]'))
    A.nop(8)
    A(f'v_cmp_u_f32 vcc, v48, v48\ns_cbranch_vccz {Lpd}')
    issue_1a()
    A(f's_add_u32 s{sCNT}, s{sCNT}, 1\ns_cmp_lt_u32 s{sCNT}, {SPIN}\ns_cbranch_scc1 {Lp}')
    A('s_waitcnt vmcnt(0)')
    A.label(Lpd)
    A('v_cvt_pk_bf16_f32 v52, v48, v49\nv_cvt_pk_bf16_f32 v53, v50, v51')
    A(f's_mov_b64 exec, {sr(sLO,2)}')
    A(f'buffer_store_dwordx2 v[52:53], v10, {sr(S_WS,4)}, s47 offen'+LSC)
    A('s_mov_b64 exec, -1')
    A.label(L1a)
    stamp('1a done')
    wo_dma(0,0,7)
    softmax(accA,'q',mid=lambda: wo_dma(0,7,14))
    wo_dma(0,14,20)
    stamp('softmax q done')
    if LOC: A(f'v_and_b32 v12, 7, v0\ns_lshl_b32 s{sT}, s{sRB}, 3\nv_add_u32 v12, s{sT}, v12\nv_lshlrev_b32 v{vF2A}, 7, v12')
    else: A(f'v_and_b32 v12, 7, v0\nv_lshlrev_b32 v12, 5, v12\ns_and_b32 s{sT}, s2, 31\nv_add_u32 v12, s{sT}, v12\nv_lshlrev_b32 v{vF2A}, 7, v12')
    A(f's_mov_b32 s{sT}, {WS_FLAGB2}')
    A(f'buffer_load_dword v{vF2V}, v{vF2A}, {sr(S_WS,4)}, s{sT} offen sc1')
    Lp=A.newlabel('L1b_poll'); Lpd=A.newlabel('L1b_done')
    A(f's_lshl_b32 s{sT}, s{sA}, 12\ns_add_u32 s40, s{sT}, s{sRED}\ns_mov_b32 s{sCNT}, 0')
    A.label(Lp)
    for m in range(4):
        A(f'buffer_load_dwordx4 {vr(32+4*m,4)}, v{vL16}, {sr(S_WS,4)}, s40 offen offset:{m*1024} sc1')
    A('s_waitcnt vmcnt(0)')
    A('v_max3_u32 v10, v32, v33, v34')
    for k in range(35,47,2): A(f'v_max3_u32 v10, v10, v{k}, v{k+1}')
    A('v_max_u32 v10, v10, v47\nv_cmp_eq_u32 vcc, -1, v10')
    A(f's_cbranch_vccz {Lpd}')
    A(f's_add_u32 s{sCNT}, s{sCNT}, 1\ns_cmp_lt_u32 s{sCNT}, {SPIN}\ns_cbranch_scc1 {Lp}')
    A.label(Lpd)
    A.vm=[]
    stamp('1b done')
    for m in range(4):
        A(f'v_mfma_f32_32x32x16_bf16 {vr(accA,16)}, {vr(32+4*m,4)}, {vr(PK+4*m,4)}, '+('0' if m==0 else vr(accA,16)))
    A.nop(16)
    A(f'v_mov_b32 v10, v{accA+12}\nv_mov_b32 v11, v{accA+12}\ns_nop 1\nv_permlane32_swap_b32 v10, v11')
    A('v_add_f32 v11, 0x358637bd, v11\nv_rcp_f32 v12, v11\ns_nop 0')
    for r in range(16):
        A(f'v_mul_f32 v{accA+r}, v12, v{accA+r}')
    for r in range(0,16,2):
        A(f'v_cvt_pk_bf16_f32 v{48+r//2}, v{accA+r}, v{accA+r+1}')
    A(f'v_cndmask_b32 v54, v54, v15, {sr(sHI,2)}\nv_cndmask_b32 v55, v55, v15, {sr(sHI,2)}')
    A.vm_op(f'buffer_store_dwordx4 v[48:51], v{vL16}, {sr(S_WS,4)}, s{sOB} offen sc1',tag='o')
    A.vm_op(f'buffer_store_dwordx4 v[52:55], v{vL16}, {sr(S_WS,4)}, s{sOB} offen offset:1024 sc1',tag='o')
    stamp('o published')
    A(f's_lshl_b32 s{sT}, s{sRB}, 1\ns_lshr_b32 s{sT2}, s{sP}, 2\ns_add_u32 s{sT}, s{sT}, s{sT2}\ns_mov_b32 s44, s{sT}\ns_lshl_b32 s{sT}, s{sT}, 15\ns_lshl_b32 s{sT2}, s{sW}, 13\ns_add_u32 s{sT}, s{sT}, s{sT2}\ns_add_u32 s40, s{sT}, {WS_OBUF}')
    A('s_barrier')
    Lw2=A.newlabel('Lwo2')
    A(f's_cmp_eq_u32 s{sACT}, 0\ns_cbranch_scc1 {Lw2}')
    wo_frags(0,11,0)
    A.label(Lw2)
    A('s_waitcnt lgkmcnt(0)\ns_barrier')
    wo_dma(308,0,5)
    A('s_waitcnt vmcnt(5)')
    chk_flags(vF2V,vF2A,WS_FLAGB2,S_WS)
    def issue_h2():
        for m in range(8):
            A(f's_add_u32 s{sT}, s40, {(m//4)*4096}')
            A(f'buffer_load_dwordx4 {vr(72+4*m,4)}, v{vL16}, {sr(S_WS,4)}, s{sT} offen offset:{(m%4)*1024} sc1')
    issue_h2()
    wo_dma(308,5,9)
    L_O=36864; L_OUT=69632
    A(f's_lshl_b32 s{sT}, s{sW}, 13\ns_add_u32 s{sT}, s{sT}, {L_O}\nv_add_u32 v7, s{sT}, v{vL16}\nv_add_u32 v8, {L_O}, v{vL16}')
    Lp=A.newlabel('Lh2_poll'); Lpd=A.newlabel('Lh2_done')
    A(f's_mov_b32 s{sCNT}, 0')
    A.label(Lp)
    A('s_waitcnt vmcnt(0)')
    A('v_max3_u32 v10, v72, v73, v74')
    for k in range(75,103,2): A(f'v_max3_u32 v10, v10, v{k}, v{k+1}')
    A('v_max_u32 v10, v10, v103\nv_cmp_eq_u32 vcc, -1, v10')
    A(f's_cbranch_vccz {Lpd}')
    issue_h2()
    A(f's_add_u32 s{sCNT}, s{sCNT}, 1\ns_cmp_lt_u32 s{sCNT}, {SPIN}\ns_cbranch_scc1 {Lp}')
    A('s_waitcnt vmcnt(0)')
    A.label(Lpd)
    stamp('hop2 loaded')
    for m in range(8): A(f'ds_write_b128 v7, {vr(72+4*m,4)} offset:{m*1024}')
    A('s_waitcnt lgkmcnt(0)\ns_barrier')
    Le=A.newlabel('LB_s3skip')
    A(f's_cmp_eq_u32 s{sACT}, 0\ns_cbranch_scc1 {Le}')
    wo_frags(11,16,308)
    OB=[[32,36,40,44],[48,52,56,60]]
    def rdo(g):
        for m in range(4): A(f'ds_read_b128 {vr(OB[g&1][m],4)}, v8 offset:{(g*4+m)*1024}')
    rdo(0)
    for g in range(8):
        if g+1<8: rdo(g+1)
        for m in range(4):
            f=g*4+m
            A(f's_waitcnt lgkmcnt({(3-m)+(4 if g+1<8 else 0)})')
            A(f'v_mfma_f32_32x32x16_bf16 {vr(accA,16)}, {vr(XF+4*f,4)}, {vr(OB[g&1][m],4)}, '+('0' if f==0 else vr(accA,16)))
    A(f'v_and_b32 v10, 31, v0\nv_mul_u32_u24 v10, 272, v10\nv_lshrrev_b32 v11, 5, v0\nv_lshlrev_b32 v11, 4, v11\nv_add_u32 v10, v10, v11\ns_lshl_b32 s{sT}, s{sW}, 6\ns_add_u32 s{sT}, s{sT}, {L_OUT}\nv_add_u32 v10, s{sT}, v10')
    A.nop(6)
    for r in range(0,16,2):
        A(f'v_cvt_pk_bf16_f32 v{64+r//2}, v{accA+r}, v{accA+r+1}')
    A('s_nop 1')
    A('v_permlane32_swap_b32 v64, v66\nv_permlane32_swap_b32 v65, v67\nv_permlane32_swap_b32 v68, v70\nv_permlane32_swap_b32 v69, v71')
    A('s_nop 0\nds_write_b128 v10, v[64:67]\nds_write_b128 v10, v[68:71] offset:32')
    A.label(Le)
    A(f'v_lshrrev_b32 v10, 4, v0\ns_lshl_b32 s{sT}, s{sW}, 3\nv_add_u32 v10, s{sT}, v10\nv_and_b32 v11, 15, v0\nv_lshlrev_b32 v11, 4, v11')
    A(f'v_mul_u32_u24 v12, 272, v10\nv_add_u32 v12, v12, v11\nv_add_u32 v12, {L_OUT}, v12')
    A(f's_lshl_b32 s{sT}, s44, 5\nv_add_u32 v10, s{sT}, v10\nv_mul_u32_u24 v10, 1792, v10\nv_add_u32 v10, v10, v11\ns_add_u32 s{sT}, s45, 896')
    A('s_waitcnt lgkmcnt(0)\ns_barrier')
    A('ds_read_b128 v[64:67], v12\nds_read_b128 v[68:71], v12 offset:1088')
    Lm=A.newlabel('Lmask')
    A(f's_cmp_lg_u32 s45, 768\ns_cbranch_scc1 {Lm}\ns_mov_b32 exec_lo, 0x00ff00ff\ns_mov_b32 exec_hi, 0x00ff00ff')
    A.label(Lm)
    A('s_waitcnt lgkmcnt(0)')
    A(f'buffer_store_dwordx4 v[64:67], v10, {sr(S_OUT,4)}, s{sT} offen')
    A(f's_add_u32 s{sT}, s{sT}, {4*1792}')
    A(f'buffer_store_dwordx4 v[68:71], v10, {sr(S_OUT,4)}, s{sT} offen\ns_mov_b64 exec, -1')
    stamp('B end')
    Lx=A.newlabel('LB_exit')
    A(f's_or_b32 s{sT}, s2, s{sW}\ns_cmp_lg_u32 s{sT}, 0\ns_cbranch_scc1 {Lx}')
    if not NOA:
        for k in range(4):
            L=A.newlabel('Lep'); Ld=A.newlabel('Lepd')
            A(f'v_lshlrev_b32 v10, 7, v0\ns_mov_b32 s{sT}, {WS_FLAGA1+k*64*128}\ns_mov_b32 s{sCNT}, 0')
            if k==3: A('s_mov_b32 exec_hi, 0')
            A.label(L)
            A(f'buffer_load_dword v11, v10, {sr(S_WS,4)}, s{sT} offen sc1\ns_waitcnt vmcnt(0)\nv_cmp_ne_u32 vcc, s{sN}, v11\ns_cbranch_vccz {Ld}')
            A(f's_add_u32 s{sCNT}, s{sCNT}, 1\ns_cmp_lt_u32 s{sCNT}, {SPIN}\ns_cbranch_scc1 {L}')
            A.label(Ld)
    A(f's_mov_b64 exec, 0xff\nv_mov_b32 v10, s{sN}\nv_mov_b32 v11, s{sN}\nv_mov_b32 v12, s{sN}\nv_mov_b32 v13, s{sN}\ns_mov_b32 s{sT}, {WS_EPOCH}')
    A(f'buffer_store_dwordx4 v[10:13], v{vL16}, {sr(S_WS,4)}, s{sT} offen sc1\ns_mov_b64 exec, -1')
    A.label(Lx)
    prof_flush(S_WS,sW)
    A('s_endpgm')

def f32(x):
    import struct
    return '0x%08x'%struct.unpack('<I',struct.pack('<f',x))[0]
import math
aU=8; aWS=12; aOUT=16
aRE=40
aDS=56
aG=20; aTB=21; aAI=22; aWv=23; aC=24; aHF=25; aT=26; aT2=27; aWB=28; aSH=29; aLD=30; aCNT=67
KT_W=16880; KT_R=528
LA_UIMG=0; LA_T2=8192
LA_UC=67520; UC_S=4576; UPAD=480
LA_T=76672; T_S=2624
LA_C=16384; C_CH=16640; C_M=4160
LA_UIMG2=0; LA_YIMG=8192
LA_EX=16384; LA_Y=32768
XB=2047
def a_flag_store(base):
    L=A.newlabel('Lafs')
    A(f's_cmp_lg_u32 s{aWv}, 0\ns_cbranch_scc1 {L}')
    A(f's_lshl_b32 s{aT}, s{aAI}, 7\ns_add_u32 s{aT}, s{aT}, {base}\nv_mov_b32 v10, s{sN}\nv_mov_b32 v11, s{sN}\nv_mov_b32 v12, s{sN}\nv_mov_b32 v13, s{sN}\ns_mov_b64 exec, 0xff')
    A(f'buffer_store_dwordx4 v[10:13], v9, {sr(aWS,4)}, s{aT} offen sc1\ns_mov_b64 exec, -1\ns_nop 1')
    A.label(L)
def a_flag_poll(base):
    L=A.newlabel('Lafp'); Ld=A.newlabel('Lafd')
    A(f's_cmp_lg_u32 s{aWv}, 0\ns_cbranch_scc1 {Ld}')
    A(f's_lshl_b32 s{aT}, s{aG}, 12\ns_add_u32 s{aT}, s{aT}, {base}\nv_lshlrev_b32 v2, 7, v0\ns_mov_b32 s{aCNT}, 0\ns_mov_b32 exec_hi, 0')
    A.label(L)
    A(f'buffer_load_dword v3, v2, {sr(aWS,4)}, s{aT} offen sc1\ns_waitcnt vmcnt(0)')
    A(f'v_cmp_ne_u32 vcc, s{sN}, v3\ns_cbranch_vccz {Ld}')
    A(f's_sleep 2\ns_add_u32 s{aCNT}, s{aCNT}, 1\ns_cmp_lt_u32 s{aCNT}, {SPIN}\ns_cbranch_scc1 {L}')
    A.label(Ld)
    A('s_mov_b64 exec, -1\ns_waitcnt lgkmcnt(0)\ns_barrier')
    A.vm=[]

def gen_A():
    A.label('L_A')
    A.vm=[]
    if ASTOP==9:
        A('s_sleep 127\ns_sleep 127\ns_sleep 127\ns_endpgm'); return
    if '--aprio' in sys.argv: A('s_setprio 3')
    stamp('A start')
    A('s_load_dwordx16 s[40:55], s[0:1], 0\ns_load_dwordx2 s[56:57], s[0:1], 64\ns_load_dwordx2 s[58:59], s[0:1], 104\ns_load_dwordx2 s[60:61], s[0:1], 120')
    A(f'v_lshrrev_b32 v1, 6, v0\nv_and_b32 v0, 63, v0\ns_nop 0\nv_readfirstlane_b32 s{aWv}, v1')
    A((f's_and_b32 s{aT}, s2, 7\ns_cmp_eq_u32 s{aT}, 7\ns_cbranch_scc1 L_exit\ns_lshl_b32 s{aT}, s{aT}, 5\ns_lshr_b32 s{aAI}, s2, 3\ns_add_u32 s{aAI}, s{aAI}, s{aT}\n' if LOC else f's_mov_b32 s{aAI}, s2\n')+f's_lshr_b32 s{aG}, s{aAI}, 5\ns_and_b32 s{aTB}, s{aAI}, 31\nv_lshlrev_b32 v9, 4, v0\nv_lshrrev_b32 v2, 3, v0\nv_and_b32 v3, 7, v0\nv_lshlrev_b32 v3, 4, v3')
    A(f's_lshr_b32 s{aC}, s{aWv}, 1\ns_and_b32 s{aHF}, s{aWv}, 1\ns_lshl_b32 s{aWB}, s{aWv}, 11\ns_lshl_b32 s{aT}, s{aWv}, 4\nv_add_u32 v2, s{aT}, v2')
    A('v_mul_u32_u24 v4, 896, v2\nv_add_u32 v4, v4, v3')
    A('v_lshlrev_b32 v5, 7, v2\nv_add_u32 v5, v5, v3')
    sUT=31
    A(f's_mul_i32 s{sUT}, s{aTB}, 57344\ns_lshl_b32 s{aT}, s{aG}, 7\ns_add_u32 s{sUT}, s{sUT}, s{aT}')
    A(f's_lshl_b32 s{aT}, s{aAI}, 1\ns_add_u32 s{aT}, s{aT}, s{aC}\ns_lshl_b32 s{aT}, s{aT}, 9\ns_lshl_b32 s{aT2}, s{aHF}, 8\ns_add_u32 s{aT}, s{aT}, s{aT2}\nv_lshlrev_b32 v6, 2, v0\nv_add_u32 v6, s{aT}, v6')
    A('s_waitcnt lgkmcnt(0)')
    srd(aU,40,1835008)
    for j in range(2):
        A(f's_add_u32 m0, s{aWB}, {LA_UIMG+j*1024}\ns_add_u32 s{aT}, s{sUT}, {j*7168}')
        A.vm_op(f'buffer_load_dwordx4 v4, {sr(aU,4)}, s{aT} offen lds',tag='ut')
    for k in range(6):
        A.vm_op(f'global_load_dword v{32+k}, v6, s[{42+2*k}:{43+2*k}]',tag='par')
    A('s_getpc_b64 s[64:65]')
    A.label('L_pc')
    A('s_add_u32 s64, s64, L_tab-L_pc\ns_addc_u32 s65, s65, 0')
    A(f's_lshl_b32 s{aT}, s{aWv}, 6\nv_add_u32 v10, s{aT}, v0\nv_lshlrev_b32 v11, 4, v10\nv_lshlrev_b32 v10, 3, v10\nv_add_u32 v10, {256*16}, v10')
    A.vm_op('global_load_dwordx4 v[172:175], v11, s[64:65]',tag='tab'); A.vm_op('global_load_dwordx2 v[176:177], v10, s[64:65]',tag='tab')
    srd(aWS,60,WS_SIZE); srd(aOUT,58,3670016)
    A(f's_load_dword s{sN}, s[60:61], {WS_EPOCH}')
    A(f's_lshl_b32 s{aT}, s{aAI}, 2\ns_add_u32 s54, s54, s{aT}\ns_addc_u32 s55, s55, 0\ns_load_dword s{aLD}, s[54:55], 0')
    A('v_mov_b32 v10, -1\nv_mov_b32 v11, -1\nv_mov_b32 v12, -1\nv_mov_b32 v13, -1')
    if LOC: A(f's_and_b32 s34, s{aAI}, 31\ns_lshl_b32 s34, s34, 3\ns_add_u32 s34, s34, s{aG}')
    else: A(f's_mov_b32 s34, s{aAI}')
    Lc=A.newlabel('Lclr')
    def clears():
        A.label(Lc)
        if not NOCLR:
            if LOC: A('s_lshr_b32 s35, s34, 3\ns_and_b32 s36, s34, 7')
            else: A(f's_and_b32 s35, s34, 7\ns_lshl_b32 s35, s35, 2\ns_lshr_b32 s36, s34, 3\ns_and_b32 s36, s36, 3\ns_add_u32 s35, s35, s36\ns_lshr_b32 s36, s34, 5')
            A(f's_lshl_b32 s37, s36, 5\ns_add_u32 s37, s37, s35\ns_mul_i32 s37, s37, {PSTR}\ns_add_u32 s37, s37, s{aWB}\ns_add_u32 s37, s37, {WS_PART}')
            A(f'buffer_store_dwordx4 v[10:13], v9, {sr(aWS,4)}, s37 offen{LSC}\nbuffer_store_dwordx4 v[10:13], v9, {sr(aWS,4)}, s37 offen offset:1024{LSC}')
            Lr=A.newlabel('Lred')
            A(f's_cmp_lg_u32 s{aWv}, 0\ns_cbranch_scc1 {Lr}')
            A(f's_lshl_b32 s37, s36, 13\ns_lshl_b32 s38, s35, 8\ns_add_u32 s37, s37, s38\ns_add_u32 s37, s37, {WS_RED}\ns_mov_b64 exec, 0xffff')
            A(f'buffer_store_dwordx4 v[10:13], v9, {sr(aWS,4)}, s37 offen{LSC}\ns_mov_b64 exec, -1')
            A.label(Lr)
        if not LOC: A(f's_add_u32 s34, s34, 224\ns_cmp_lt_u32 s34, 256\ns_cbranch_scc1 {Lc}')
    A(f'v_lshrrev_b32 v7, 4, v0\nv_lshlrev_b32 v7, 3, v7\nv_bfe_u32 v8, v0, 2, 2\nv_add_u32 v7, v7, v8\nv_lshlrev_b32 v7, 7, v7\nv_and_b32 v8, 3, v0\nv_lshlrev_b32 v8, 3, v8\nv_add_u32 v7, v7, v8\ns_lshl_b32 s{aT}, s{aWv}, 5\nv_add_u32 v7, s{aT}, v7')
    A(f'v_and_b32 v8, 15, v0\ns_lshl_b32 s{aT}, s{aWv}, 4\nv_add_u32 v8, s{aT}, v8\nv_mul_u32_u24 v8, 144, v8\nv_lshrrev_b32 v14, 4, v0\nv_lshlrev_b32 v14, 4, v14\nv_add_u32 v8, v8, v14')
    A('v_mul_u32_u24 v14, 144, v2\nv_add_u32 v14, v14, v3')
    sTT=63
    A(f's_mul_i32 s{sTT}, s{aAI}, {TSTR}')
    A(f's_mul_i32 s{aT}, s{aWv}, {KT_W}\nv_lshlrev_b32 v57, 3, v0\nv_add_u32 v57, s{aT}, v57')
    A(f'v_and_b32 v58, 31, v0\nv_mul_u32_u24 v58, {KT_R}, v58\nv_lshrrev_b32 v59, 5, v0\nv_lshlrev_b32 v59, 4, v59\nv_add_u32 v58, v58, v59\nv_add_u32 v58, s{aT}, v58')
    A(f'v_mul_u32_u24 v1, {T_S}, v0\nv_add_u32 v1, {LA_T+2600}, v1\nv_mov_b32 v14, 0\ns_mov_b64 exec, 3\nds_write_b32 v1, v14\ns_mov_b64 exec, -1')
    A('v_mul_u32_u24 v14, 144, v2\nv_add_u32 v14, v14, v3')
    A.vm_wait('par')
    A('s_barrier')
    for it in range(2):
        A(f'ds_read_b64_tr_b16 {vr(64+4*it,2)}, v7 offset:{LA_UIMG+it*4096}\nds_read_b64_tr_b16 {vr(66+4*it,2)}, v7 offset:{LA_UIMG+it*4096+512}')
    A('s_waitcnt lgkmcnt(0)')
    for it in range(2): A(f'ds_write_b128 v8, {vr(64+4*it,4)} offset:{LA_T2+64*it}')
    for j in range(2): A(f'ds_read_b128 {vr(72+4*j,4)}, v14 offset:{LA_T2+j*8*144}')
    A('s_waitcnt lgkmcnt(0)')
    for j in range(2):
        A(f's_add_u32 s{aT}, s{sTT}, {WS_UT+j*1024}')
        A.vm_op(f'buffer_store_dwordx4 {vr(72+4*j,4)}, v5, {sr(aWS,4)}, s{aT} offen'+LSC,tag='uts')
    clears()
    stamp('A uT stored')
    if '--aprio' in sys.argv: A('s_setprio 0')
    A(f's_lshl_b32 s{aT}, s{aC}, 4\ns_lshr_b32 s{aLD}, s{aLD}, s{aT}\ns_lshl_b32 s{aLD}, s{aLD}, 16')
    A(f'v_mov_b32 v14, s{aLD}\nv_mul_f32 v14, {hex(LOG2E)}, v14\nv_exp_f32 v14, v14\ns_nop 0\nv_cvt_pk_bf16_f32 v14, v14, v14\nv_lshlrev_b32 v15, 16, v14')
    BS=[192,224]
    for st in range(2):
        B_=BS[st]
        for k in range(6):
            if st==0: A(f'v_lshlrev_b32 v{B_+k}, 16, v{32+k}')
            else: A(f'v_and_b32 v{B_+k}, 0xffff0000, v{32+k}')
        for k in range(4): A(f'v_mul_f32 v{B_+k}, v15, v{B_+k}')
    for st in range(2):
        B_=BS[st]
        A(f'v_mul_f32 v60, v{B_+5}, v{B_+3}\nv_mul_f32 v61, v{B_+5}, v{B_+2}\nv_fma_f32 v{B_+6}, v{B_+4}, v{B_+2}, -v60\nv_fma_f32 v{B_+7}, -v{B_+4}, v{B_+3}, -v61')
    for off,k,conj in ((10,8,False),(8,1,True),(12,256,True)):
        for st in range(2):
            B_=BS[st]; t=60+2*st
            A(f'v_mul_f32 v{t}, {f32(k*math.log2(math.e))}, v{B_}\nv_mul_f32 v{t+1}, {f32(k/(2*math.pi))}, v{B_+1}')
        for st in range(2):
            t=60+2*st
            A(f'v_exp_f32 v{t}, v{t}\nv_fract_f32 v{t+1}, v{t+1}')
        for st in range(2):
            B_=BS[st]; t=60+2*st
            A(f'v_cos_f32 v{B_+off}, v{t+1}\nv_sin_f32 v{B_+off+1}, v{t+1}')
        for st in range(2):
            B_=BS[st]; t=60+2*st
            A(f'v_mul_f32 v{B_+off}, v{t}, v{B_+off}')
            A(f'v_mul_f32 v{B_+off+1}, v{t}, v{B_+off+1}' if not conj else f'v_mul_f32_e64 v{B_+off+1}, -v{t}, v{B_+off+1}')
    def cm2(d,z,m):
        for st in range(2):
            B_=BS[st]
            A(f'v_mul_f32 v{B_+30}, v{B_+z+1}, v{B_+m+1}\nv_mul_f32 v{B_+d+1}, v{B_+z+1}, v{B_+m}')
        for st in range(2):
            B_=BS[st]
            A(f'v_fmac_f32 v{B_+d+1}, v{B_+z}, v{B_+m+1}\nv_fma_f32 v{B_+d}, v{B_+z}, v{B_+m}, -v{B_+30}')
    cm2(14,12,12)
    cm2(16,14,14)
    A.vm_drain()
    A('s_barrier')
    A(f's_add_u32 s{sN}, s{sN}, {NONCE_C}')
    a_flag_store(WS_FLAGA1)
    stamp('A flag1 set')
    if ASTOP==1:
        prof_flush(aWS,aWv,256); A('s_endpgm'); return
    rot=[0]
    WT=[40,42,44,46,48,50,52,54]
    def wr2(offs,row):
        t=WT[rot[0]%len(WT)]; rot[0]+=1
        A(f'v_cvt_pk_bf16_f32 v{t}, v{BS[0]+offs}, v{BS[0]+offs+1}\nv_cvt_pk_bf16_f32 v{t+1}, v{BS[1]+offs}, v{BS[1]+offs+1}')
        A(f'ds_write_b64 v57, {vr(t,2)} offset:{row*KT_R}')
    A('v_mov_b32 v54, 0x3f80\nv_mov_b32 v55, 0x3f80\nds_write_b64 v57, v[54:55] offset:0')
    wr2(10,1)
    cm2(18,10,10); wr2(18,2)
    for j in range(3,32):
        cm2(18,18,10); wr2(18,j)
    A('s_waitcnt lgkmcnt(0)')
    for kk in range(16): A(f'ds_read_b128 {vr(64+4*kk,4)}, v58 offset:{32*kk}')
    stamp('A E done')
    if ASTOP==2:
        prof_flush(aWS,aWv,256); A('s_endpgm'); return
    A('s_waitcnt lgkmcnt(0)')
    wr2(6,0)
    cm2(18,6,8); wr2(18,1)
    cm2(20,18,8); wr2(20,2)
    cm2(18,20,8); wr2(18,3)
    cm2(22,18,8); wr2(22,4)
    cm2(18,22,8); wr2(18,5)
    cm2(24,18,8); wr2(24,6)
    cm2(18,24,8); wr2(18,7)
    for r,src in enumerate((6,20,22,24)):
        cm2(18,src,12); wr2(18,8+r)
    cm2(26,6,14); wr2(26,12)
    cm2(28,22,14); wr2(28,13)
    cm2(26,26,12); wr2(26,14)
    cm2(28,28,12); wr2(28,15)
    cm2(18,6,16); wr2(18,16)
    for r in range(17,21):
        cm2(18,18,12); wr2(18,r)
    a_flag_poll(WS_FLAGA1)
    A(f'v_lshrrev_b32 v2, 3, v0\nv_mul_u32_u24 v2, {TSTR}, v2\nv_and_b32 v3, 7, v0\nv_lshlrev_b32 v3, 4, v3\nv_add_u32 v60, v2, v3')
    A(f's_lshl_b32 s{aT}, s{aG}, 5\ns_lshl_b32 s{aT2}, s{aHF}, 4\ns_add_u32 s{aT}, s{aT}, s{aT2}\ns_mul_i32 s{aT}, s{aT}, {TSTR}')
    A(f's_lshl_b32 s{aT2}, s{aAI}, 1\ns_add_u32 s{aT2}, s{aT2}, s{aC}\ns_and_b32 s{aT2}, s{aT2}, 63\ns_lshl_b32 s{aT2}, s{aT2}, 7\ns_add_u32 s62, s{aT}, s{aT2}')
    A(f's_mul_i32 s35, s{aC}, {UC_S}\ns_lshl_b32 s{aT2}, s{aHF}, 11\ns_add_u32 s35, s35, s{aT2}\ns_add_u32 s35, s35, {LA_UC+UPAD}')
    for j in range(2):
        A(f's_add_u32 m0, s35, {j*1024}\ns_add_u32 s{aT}, s62, {WS_UT+j*8*TSTR}')
        A.vm_op(f'buffer_load_dwordx4 v60, {sr(aWS,4)}, s{aT} offen sc1 lds',tag='uc')
    A('v_mov_b32 v10, 0\nv_mov_b32 v11, 0\nv_mov_b32 v12, 0\nv_mov_b32 v13, 0')
    A(f's_mul_i32 s{aT}, s{aC}, {UC_S}\ns_add_u32 s{aT}, s{aT}, {LA_UC}\nv_add_u32 v2, s{aT}, v9\ns_mov_b32 exec_lo, 0x3fffffff\ns_mov_b32 exec_hi, 0\nds_write_b128 v2, v[10:13]\ns_mov_b64 exec, -1')
    A('s_waitcnt lgkmcnt(0)')
    for g in range(4):
        for k in range(4): A(f'ds_read_b128 {vr(128+16*(g&1)+4*k,4)}, v58 offset:{32*(4*g+k)}')
        if g>=1:
            for k in range(4):
                kk=4*(g-1)+k
                A(f's_waitcnt lgkmcnt({7-k})')
                A(f'v_mfma_f32_32x32x16_bf16 v[16:31], {vr(128+16*((g-1)&1)+4*k,4)}, {vr(64+4*kk,4)}, '+('0' if kk==0 else 'v[16:31]'))
    for k in range(4):
        kk=12+k
        A(f's_waitcnt lgkmcnt({3-k})')
        A(f'v_mfma_f32_32x32x16_bf16 v[16:31], {vr(128+16+4*k,4)}, {vr(64+4*kk,4)}, v[16:31]')
    A.vm_wait('tab')
    A(f'v_mov_b32 v1, {LA_T}')
    for i in range(11):
        r=172+i//2 if i<8 else 176+(i-8)//2
        A(f'v_add_u32_sdwa v{160+i}, v1, v{r} dst_sel:DWORD dst_unused:UNUSED_PAD src0_sel:DWORD src1_sel:WORD_{i%2}')
    A(f's_mul_i32 s{aT}, s{aC}, {T_S}\ns_add_u32 s{aT}, s{aT}, {LA_T}')
    A('v_and_b32 v3, 31, v0\nv_lshrrev_b32 v4, 5, v0\nv_cmp_eq_u32 vcc, 1, v4')
    A(f'v_lshlrev_b32 v10, 5, v3\nv_lshlrev_b32 v6, 4, v4\nv_add_u32 v10, v10, v6\nv_add_u32 v10, s{aT}, v10')
    A('v_lshlrev_b32 v6, 4, v3\nv_add_u32 v6, 1024, v6\nv_lshlrev_b32 v7, 3, v3\nv_add_u32 v7, 1536, v7\nv_cndmask_b32 v6, v6, v7, vcc')
    A('v_add_u32 v7, 8, v6\nv_add_u32 v8, 256, v6\nv_cndmask_b32 v7, v7, v8, vcc')
    A(f'v_add_u32 v6, s{aT}, v6\nv_add_u32 v7, s{aT}, v7')
    A('v_lshlrev_b32 v8, 2, v3\nv_add_u32 v8, 2048, v8\nv_mov_b32 v14, 2560\nv_cndmask_b32 v8, v8, v14, vcc')
    A(f'v_add_u32 v8, s{aT}, v8')
    A(f'v_lshrrev_b32 v3, 3, v0\ns_lshl_b32 s{aT}, s{aWv}, 4\nv_add_u32 v3, s{aT}, v3\nv_and_b32 v4, 7, v0\nv_lshlrev_b32 v4, 4, v4')
    A('v_mul_u32_u24 v5, 896, v3\nv_add_u32 v5, v5, v4\nv_lshlrev_b32 v61, 7, v3\nv_add_u32 v61, v61, v4')
    A.nop(2)
    stamp('A kgen done')
    A(f's_mul_i32 s{aT}, s{aWv}, {KT_W}\nv_add_u32 v2, s{aT}, v9\ns_xor_b32 s{aT}, s{aWv}, 1\ns_mul_i32 s{aT}, s{aT}, {KT_W}\nv_add_u32 v12, s{aT}, v9')
    Lh1=A.newlabel('Lkh1'); Lh2=A.newlabel('Lkh2')
    A(f's_cmp_lg_u32 s{aHF}, 0\ns_cbranch_scc1 {Lh1}')
    A('ds_write_b128 v2, v[24:27]\ns_waitcnt lgkmcnt(0)\ns_barrier')
    A('ds_read_b128 v[64:67], v12\nds_read_b128 v[68:71], v12 offset:1024\ns_waitcnt lgkmcnt(0)')
    for k in range(8): A(f'v_add_f32 v{16+k}, v{16+k}, v{64+k}')
    A('ds_write_b128 v10, v[16:19]\nds_write_b64 v6, v[20:21]\nds_write_b64 v7, v[22:23]')
    A(f's_branch {Lh2}')
    A.label(Lh1)
    A('ds_write_b128 v2, v[16:19]\nds_write_b128 v2, v[20:23] offset:1024\ns_waitcnt lgkmcnt(0)\ns_barrier')
    A('ds_read_b128 v[64:67], v12\ns_waitcnt lgkmcnt(0)')
    A('v_add_f32 v24, v24, v64\nv_add_f32 v25, v25, v65\nv_add_f32 v26, v26, v66\nv_add_f32 v27, v27, v67')
    A('s_mov_b32 exec_hi, 1\nds_write_b32 v8, v24\ns_mov_b32 exec_hi, 0')
    A('ds_write_b32 v8, v25 offset:128\nds_write_b32 v8, v26 offset:256\nds_write_b32 v8, v27 offset:384\ns_mov_b32 exec_hi, -1')
    A.label(Lh2)
    A(f's_lshl_b32 s{aT}, s{aWv}, 6\nv_add_u32 v2, s{aT}, v0\nv_lshlrev_b32 v4, 4, v2')
    A('s_waitcnt lgkmcnt(0)')
    stamp('A adds done')
    A('s_barrier')
    for c in range(2):
        for i in range(11): A(f'ds_read_b32 v{64+16*c+i}, v{160+i} offset:{c*T_S}')
    for j in range(2):
        A(f's_add_u32 m0, s{aWB}, {LA_UIMG2+j*1024}\ns_add_u32 s{aT}, s{sUT}, {j*7168}')
        A.vm_op(f'buffer_load_dwordx4 v5, {sr(aU,4)}, s{aT} offen lds',tag='ut2')
    A(f'v_lshrrev_b32 v6, 4, v0\nv_lshlrev_b32 v6, 4, v6\ns_lshl_b32 s{aT}, s{aG}, 7\nv_add_u32 v6, s{aT}, v6')
    A.vm_op('global_load_dwordx4 v[184:187], v6, s[56:57]',tag='d'); A.vm_op('global_load_dwordx4 v[188:191], v6, s[56:57] offset:64',tag='d')
    A(f'v_lshrrev_b32 v7, 1, v0\nv_and_b32 v8, 3, v7\nv_mul_u32_u24 v8, {C_M}, v8\nv_lshrrev_b32 v7, 2, v7\nv_mul_u32_u24 v7, {C_CH}, v7\nv_add_u32 v8, v8, v7\nv_and_b32 v7, 1, v0\nv_lshlrev_b32 v7, 4, v7\nv_add_u32 v8, v8, v7')
    A('v_mov_b32 v10, 0\nv_mov_b32 v11, 0\nv_mov_b32 v12, 0\nv_mov_b32 v13, 0\ns_mov_b64 exec, 0xffff')
    A(f'ds_write_b128 v8, v[10:13] offset:{LA_C+4096}\ns_mov_b64 exec, -1')
    for c in range(2):
        A(f's_waitcnt lgkmcnt({12 if c==0 else 4})')
        g=64+16*c
        for m in range(4):
            for d in range(4): A(f'v_cvt_pk_bf16_f32 v{96+4*m+d}, v{g+m+2*d}, v{g+m+2*d+1}')
        for m in range(4): A(f'ds_write_b128 v4, {vr(96+4*m,4)} offset:{LA_C+c*C_CH+m*C_M}')
    stamp('A copies issued')
    A('v_and_b32 v2, 15, v0\nv_lshrrev_b32 v3, 4, v0\nv_and_b32 v5, 1, v3\nv_lshrrev_b32 v6, 1, v3')
    A(f'v_sub_u32 v7, 3, v2\nv_and_b32 v7, 3, v7')
    A(f'v_lshlrev_b32 v8, 4, v6\nv_add_u32 v8, v8, v2\nv_lshlrev_b32 v14, 3, v5\nv_sub_u32 v8, v8, v14\nv_add_u32 v8, v8, v7')
    A(f'v_sub_u32 v8, {XB}, v8\nv_lshlrev_b32 v8, 1, v8\nv_mul_u32_u24 v14, {C_M}, v7\nv_add_u32 v8, v8, v14')
    A(f's_mul_i32 s{aT}, s{aC}, {C_CH}\ns_lshl_b32 s{aT2}, s{aHF}, 8\ns_sub_u32 s{aT}, s{aT}, s{aT2}\ns_add_u32 s{aT}, s{aT}, {LA_C-64*59}\nv_add_u32 v48, s{aT}, v8')
    A('v_lshlrev_b32 v7, 4, v5\nv_lshlrev_b32 v8, 5, v6\nv_sub_u32 v7, v7, v8\nv_lshlrev_b32 v14, 5, v2\nv_add_u32 v14, v14, v7')
    A(f's_mul_i32 s{aT}, s{aC}, {UC_S}\ns_sub_u32 s{aT}, s{aT}, s{aT2}\ns_add_u32 s{aT}, s{aT}, {LA_UC+UPAD-192}\nv_add_u32 v56, s{aT}, v14')
    A.vm_wait('uc',' lgkmcnt(0)')
    A('s_barrier')
    stamp('A conv start')
    AB=[64,128]; BB=[96,192]
    def rdconv(rr):
        s_=rr&1
        for w in range(8): A(f'ds_read_b128 {vr(BB[s_]+4*w,4)}, v56 offset:{512*w+64*(3-rr)}')
        for q in range(8):
            o=64*(59-(8*q+rr))
            A(f'ds_read_b64 {vr(AB[s_]+4*q,2)}, v48 offset:{o}\nds_read_b64 {vr(AB[s_]+4*q+2,2)}, v48 offset:{o+8}')
    def rdlist(rr):
        s_=rr&1; L=[]
        for w in range(8): L.append(f'ds_read_b128 {vr(BB[s_]+4*w,4)}, v56 offset:{512*w+64*(3-rr)}')
        for q in range(8):
            o=64*(59-(8*q+rr))
            L.append(f'ds_read_b64 {vr(AB[s_]+4*q,2)}, v48 offset:{o}'); L.append(f'ds_read_b64 {vr(AB[s_]+4*q+2,2)}, v48 offset:{o+8}')
        return L
    for x in rdlist(0): A(x)
    for rr in range(4):
        s_=rr&1
        A('s_waitcnt lgkmcnt(0)')
        nxt=rdlist(rr+1) if rr<3 else []
        n=0
        for q in range(8):
            for w in range(8-q):
                t=q+w
                cin='0' if (rr==0 and q==0) else vr(16+4*t,4)
                A(f'v_mfma_f32_16x16x32_bf16 {vr(16+4*t,4)}, {vr(AB[s_]+4*q,4)}, {vr(BB[s_]+4*w,4)}, {cin}')
                n+=1
                if nxt and n>=2: A(nxt.pop(0))
        assert not nxt
    stamp('A conv done')
    A('s_barrier')
    A(f's_lshl_b32 s{aT}, s{aWv}, 12\ns_add_u32 s{aT}, s{aT}, {LA_EX}\nv_add_u32 v2, s{aT}, v9')
    A(f's_xor_b32 s{aT}, s{aWv}, 1\ns_lshl_b32 s{aT}, s{aT}, 12\ns_add_u32 s{aT}, s{aT}, {LA_EX}\nv_add_u32 v5, s{aT}, v9')
    A(f'v_and_b32 v3, 15, v0\nv_lshlrev_b32 v3, 5, v3\nv_lshrrev_b32 v4, 4, v0\nv_lshlrev_b32 v4, 3, v4\nv_add_u32 v3, v3, v4\ns_add_u32 s{aT}, s{aWB}, {LA_Y}\nv_add_u32 v3, s{aT}, v3\nv_add_u32 v4, s{aT}, v9')
    L1=A.newlabel('Lcx'); L2=A.newlabel('Lcy')
    def fin(keep,send):
        for k in range(4): A(f'ds_write_b128 v2, {vr(send+4*k,4)} offset:{k*1024}')
        A('s_waitcnt lgkmcnt(0)\ns_barrier')
        for k in range(4): A(f'ds_read_b128 {vr(64+4*k,4)}, v5 offset:{k*1024}')
        A('s_waitcnt lgkmcnt(0)')
        for k in range(16): A(f'v_add_f32 v{keep+k}, v{keep+k}, v{64+k}')
        for k in range(8): A(f'v_cvt_pk_bf16_f32 v{64+k}, v{keep+2*k}, v{keep+1+2*k}')
    A(f's_cmp_lg_u32 s{aHF}, 0\ns_cbranch_scc1 {L1}')
    fin(16,32)
    A(f's_branch {L2}')
    A.label(L1)
    fin(32,16)
    A.label(L2)
    for k in range(4): A(f'ds_write_b64 v3, {vr(64+2*k,2)} offset:{512*k}')
    A('ds_read_b128 v[72:75], v4\nds_read_b128 v[76:79], v4 offset:1024')
    A(f's_add_u32 s{aT}, s62, {WS_YT}\ns_add_u32 s{aT2}, s62, {WS_YT+8*TSTR}')
    A('s_waitcnt lgkmcnt(0)')
    A.vm_op(f'buffer_store_dwordx4 v[72:75], v60, {sr(aWS,4)}, s{aT} offen'+LSC,tag='ys')
    A.vm_op(f'buffer_store_dwordx4 v[76:79], v60, {sr(aWS,4)}, s{aT2} offen'+LSC,tag='ys')
    A(f'v_lshrrev_b32 v7, 4, v0\nv_lshlrev_b32 v7, 3, v7\nv_bfe_u32 v8, v0, 2, 2\nv_add_u32 v7, v7, v8\nv_lshlrev_b32 v7, 7, v7\nv_and_b32 v8, 3, v0\nv_lshlrev_b32 v8, 3, v8\nv_add_u32 v7, v7, v8\ns_lshl_b32 s{aT}, s{aWv}, 5\nv_add_u32 v7, s{aT}, v7')
    A(f'v_and_b32 v8, 15, v0\ns_lshl_b32 s{aT}, s{aWv}, 4\nv_add_u32 v8, s{aT}, v8\nv_lshlrev_b32 v14, 7, v8\nv_lshrrev_b32 v6, 4, v0\nv_lshlrev_b32 v6, 4, v6\nv_add_u32 v14, v14, v6')
    A(f's_lshl_b32 s{aT}, s{aTB}, 6\nv_add_u32 v8, s{aT}, v8\nv_mul_u32_u24 v8, 1792, v8\nv_add_u32 v8, v8, v6\ns_lshl_b32 s34, s{aG}, 7')
    A.vm_wait('d')
    for it in range(2):
        for k in range(4):
            A(f'v_lshlrev_b32 v{192+8*it+2*k}, 16, v{184+4*it+k}\nv_and_b32 v{193+8*it+2*k}, 0xffff0000, v{184+4*it+k}')
    A.vm_drain()
    A('s_barrier')
    a_flag_store(WS_FLAGA2)
    stamp('A flag2 set')
    for it in range(2): A(f'ds_read_b128 {vr(72+4*it,4)}, v14 offset:{LA_UIMG2+64*it}')
    A('s_waitcnt lgkmcnt(0)')
    for it in range(2):
        for k in range(4):
            A(f'v_lshlrev_b32 v{208+8*it+2*k}, 16, v{72+4*it+k}\nv_and_b32 v{209+8*it+2*k}, 0xffff0000, v{72+4*it+k}')
    for k in range(16): A(f'v_mul_f32 v{208+k}, v{208+k}, v{192+k}')
    a_flag_poll(WS_FLAGA2)
    stamp('A flag2 seen')
    for j in range(2):
        A(f's_add_u32 m0, s{aWB}, {LA_YIMG+j*1024}\ns_add_u32 s{aT}, s{sTT}, {WS_YT+j*1024}')
        A.vm_op(f'buffer_load_dwordx4 v61, {sr(aWS,4)}, s{aT} offen sc1 lds',tag='yt')
    A.vm_drain()
    A('s_barrier')
    for it in range(2):
        A(f'ds_read_b64_tr_b16 {vr(64+4*it,2)}, v7 offset:{LA_YIMG+it*4096}\nds_read_b64_tr_b16 {vr(66+4*it,2)}, v7 offset:{LA_YIMG+it*4096+512}')
    for it in range(2):
        A(f's_waitcnt lgkmcnt({2*(1-it)})')
        for k in range(4):
            y=64+4*it+k
            A(f'v_lshlrev_b32 v96, 16, v{y}\nv_and_b32 v97, 0xffff0000, v{y}')
            A(f'v_add_f32 v96, v96, v{208+8*it+2*k}\nv_add_f32 v97, v97, v{209+8*it+2*k}')
            A(f'v_cvt_pk_bf16_f32 v{104+4*it+k}, v96, v97')
        A(f'buffer_store_dwordx4 {vr(104+4*it,4)}, v8, {sr(aOUT,4)}, s34 offen offset:{64*it}')
    stamp('A end')
    prof_flush(aWS,aWv,256)
    A('s_endpgm')

def main():
    hdr=f'''; S4 conv (A) + hedgehog linear attention (B), single launch, 256 B-workgroups + 224 A-workgroups
; @launch grid=({NB+NA},1,1) block=(256,1,1) lds={LDS_BYTES}
.amdgcn_target "amdgcn-amd-amdhsa--gfx950"
.text
.globl {KN}
.p2align 8
.type {KN},@function
{KN}:
'''
    A(f's_cmp_ge_u32 s2, {NB+NA}\ns_cbranch_scc1 L_exit\ns_cmp_lt_u32 s2, {NA}\ns_cbranch_scc1 L_A\ns_sub_u32 s2, s2, {NA}')
    if NOB: A('s_endpgm')
    else: gen_B()
    if NOA: A.label('L_A'); A('s_endpgm')
    else: gen_A()
    A.label('L_exit'); A('s_endpgm')
    tail=f'''.section .rodata,"a"
.p2align 6
.amdhsa_kernel {KN}
  .amdhsa_next_free_vgpr 256
  .amdhsa_next_free_sgpr 102
  .amdhsa_accum_offset 256
  .amdhsa_group_segment_fixed_size 0
  .amdhsa_kernarg_size 128
  .amdhsa_user_sgpr_count 2
  .amdhsa_user_sgpr_kernarg_segment_ptr 1
  .amdhsa_system_sgpr_workgroup_id_x 1
.end_amdhsa_kernel
'''
    body=A.text()
    data=''
    if not NOA:
        import numpy as np
        def idx(l):
            if l<0 or l>2047: return 650
            u=np.array([float(l)],np.float32).view(np.uint32)[0]
            bits=int((int(u)+0x7FFF+((int(u)>>16)&1))>>16)
            return l if l<128 else bits-17024
        t4=[];t2=[]
        for t in range(256):
            g=[4*idx(2047-8*t-i) for i in range(11)]+[0]
            t4+=g[:8]; t2+=g[8:12]
        data='.p2align 4\nL_tab:\n'
        for arr in (t4,t2):
            for i in range(0,len(arr),16): data+='  .short '+', '.join(str(x) for x in arr[i:i+16])+'\n'
    open(OUTF,'w').write(hdr+body+data+tail)
    import subprocess
    r=subprocess.run(['clang','-x','assembler','-target','amdgcn-amd-amdhsa','-mcpu=gfx950','-c',OUTF,'-o','chk.o'],capture_output=True,text=True)
    if r.returncode: print('ASM ERRORS:\n'+r.stderr[:3000])
    errs=lint.lint(body)
    for e in errs: print('LINT',e)
    print('wrote',OUTF,len(body.split(chr(10))),'lines;',len(errs),'lint findings')
main()
```

```python
import sys
from asmlib import Asm, vr, sr
import lint
KN='concat_heads__ssm_conv_s4__linear_kernel_hedgehog__prompt_kernel'
PROF = '--prof' in sys.argv
NOA  = '--noA' in sys.argv
NOB  = '--noB' in sys.argv
NOCLR = '--noclr' in sys.argv
KST = '--kst' in sys.argv
PST = '--pst' in sys.argv
KDMA = '--kdma' in sys.argv
LOC = '--loc' in sys.argv
LSC = '' if LOC else ' sc1'
BPRIO = [int(a.split('=')[1]) for a in sys.argv if a.startswith('--bprio=')]
BPRIO = BPRIO[0] if BPRIO else 2
KDEPTH = [int(a.split('=')[1]) for a in sys.argv if a.startswith('--kd=')]
KDEPTH = KDEPTH[0] if KDEPTH else 3
ASTOP = [int(a.split('=')[1]) for a in sys.argv if a.startswith('--astop=')]
ASTOP = ASTOP[0] if ASTOP else 99
OUTF = [a for a in sys.argv[1:] if not a.startswith('--')]
OUTF = OUTF[0] if OUTF else 'out.s'

WS_EPOCH=0; WS_FLAGA1=0x10000; WS_FLAGA2=0x20000; WS_FLAGB2=0x30000
PSTR=8448; TSTR=8448
WS_PART=0x100000; WS_OBUF=WS_PART+256*PSTR; WS_RED=WS_OBUF+0x200000; CLR_KB=(256*PSTR+0x200000+0x10000)//1024
WS_UT=0x600000; WS_YT=0x800000; WS_PROF=0xA00000
WS_SIZE=0xC00000
NONCE_C=0x9E3779B9
LDS_BYTES=81920
NB=256; NA=256 if '--loc' in sys.argv else 224
SPIN=20000 if '--shortspin' not in sys.argv else 20
LOG2E=0x3fb8aa3b

A=Asm()
prof_n=[0]
def stamp(name):
    if not PROF: return
    i=prof_n[0]; prof_n[0]+=1
    if PST and i>=12 : prof_n[0]-=1; return
    assert i<16, name
    A(f's_memrealtime s[{70+2*i}:{71+2*i}]')
    A.c('stamp %d %s'%(i,name))
def cstamp(name):
    if not PROF: return
    i=prof_n[0]; prof_n[0]+=1
    assert i<16, name
    A(f's_memtime s[{70+2*i}:{71+2*i}]')
    A.c('stamp %d %s'%(i,name))
def prof_flush(srd_ws, wavereg, add=0):
    if not PROF: return
    n=prof_n[0]; prof_n[0]=0
    A('s_waitcnt lgkmcnt(0) vmcnt(0)')
    A(f's_add_u32 s68, s2, {add}\ns_lshl_b32 s68, s68, 2\ns_add_u32 s68, s68, s{wavereg}\ns_lshl_b32 s68, s68, 7\ns_add_u32 s68, s68, {WS_PROF}')
    A('v_mov_b32 v10, 0')
    for i in range(n):
        A(f'v_writelane_b32 v10, s{70+2*i}, {i}')
    A('v_lshlrev_b32 v11, 2, v0\ns_mov_b64 exec, 0xffff')
    A(f'buffer_store_dword v10, v11, {sr(srd_ws,4)}, s68 offen')
    A('s_mov_b64 exec, -1')

def srd(dst, base, nrec):
    A(f's_mov_b32 s{dst}, s{base}\ns_and_b32 s{dst+1}, s{base+1}, 0xffff')
    if isinstance(nrec,int): A(f's_mov_b32 s{dst+2}, {nrec}')
    else: A(f's_mov_b32 s{dst+2}, {nrec}')
    A(f's_mov_b32 s{dst+3}, 0x20000')

S_X=8; S_W=12; S_WO=16; S_WP=20; S_WS=24; S_OUT=28
sN=32; sW=33; sRT=34; sA=35; sRB=36; sP=37; sT=38; sT2=39
sWB=48
sP112=49
sCP=50
sHI=58
sLO=60
sC2=62
sPART=64; sOB=65; sRED=66; sCNT=67
vXA0=1; vXA1=2; vWA=3; vXR=4; vWR=8; vL16=9
vT=10
accA=16; accB=32; wf=48; wpf=64; EP=72; EN=88; PK=104; vU=120
XF=128
SLOT=8192; NSLOT=7
L_PHI=57344; PHI_H=8704
L_WP=L_PHI
L_KVF=L_PHI

def dma(voff, srdb, soff, ldsbase_imm):
    A(f's_add_u32 m0, s{sWB}, {ldsbase_imm}')
    return f'buffer_load_dwordx4 v{voff}, {sr(srdb,4)}, s{soff} offen lds'

def slotaddr(u):
    if KDMA: return (u%7)*8192
    if u<14: return ((u//2)&1)*16384 + (u&1)*8192
    c=(u-14)%7
    return 32768+c*8192 if c<3 else (c-3)*8192
def w_soff(c,sec,j):
    A(f's_mul_i32 s{sT}, s{sCP+c}, 172032')
    A(f's_add_u32 s{sT}, s{sT}, s{sP112}')
    A(f's_add_u32 s{sT}, s{sT}, {sec*896+j*21504}')
def issue_reg(c):
    for j in range(2):
        A(f's_lshl_b32 s{sT}, s{sCP+c}, 7')
        A.vm_op(f'buffer_load_dwordx4 {vr(XF+16*c+4*j,4)}, v{vXA0+j}, {sr(S_X,4)}, s{sT} offen', tag=('k',c))
    for j in range(2):
        w_soff(c,1,j)
        A.vm_op(f'buffer_load_dwordx4 {vr(XF+16*c+8+4*j,4)}, v{vWA}, {sr(S_W,4)}, s{sT} offen', tag=('k',c))
def write_k(c,vLW):
    b=(c&1)*16384
    for j in range(2):
        A(f'ds_write_b128 v{vLW}, {vr(XF+16*c+4*j,4)} offset:{b+j*1024}')
        A(f'ds_write_b128 v{vLW}, {vr(XF+16*c+8+4*j,4)} offset:{b+8192+j*1024}')
def issue_unit(u):
    slot=slotaddr(u)
    if u<14:
        c=u//2
        for j in range(2):
            A(f's_add_u32 m0, s{sWB}, {slot+j*1024}')
            if u&1:
                w_soff(c,1,j)
                A.vm_op(f'buffer_load_dwordx4 v{vWA}, {sr(S_W,4)}, s{sT} offen lds', tag=('u',u))
            else:
                A(f's_lshl_b32 s{sT}, s{sCP+c}, 7')
                A.vm_op(f'buffer_load_dwordx4 v{vXA0+j}, {sr(S_X,4)}, s{sT} offen lds', tag=('u',u))
        return
    c=(u-14)%7; sec=2 if u<21 else 0
    for j in range(2):
        A(f's_add_u32 m0, s{sWB}, {slot+j*1024}')
        w_soff(c,sec,j)
        A.vm_op(f'buffer_load_dwordx4 v{vWA}, {sr(S_W,4)}, s{sT} offen lds', tag=('u',u))

def read_wfrags(u):
    slot=slotaddr(u)
    for kk in range(4):
        A(f'ds_read_b64_tr_b16 {vr(wf+4*kk,2)}, v{vWR} offset:{slot+2048*kk}')
        A(f'ds_read_b64_tr_b16 {vr(wf+4*kk+2,2)}, v{vWR} offset:{slot+2048*kk+512}')

def softmax(D, tagname, mid=None):
    t=vT
    u=vU
    A.c('softmax '+tagname)
    for r in range(12,16): A(f'v_cndmask_b32 v{D+r}, v{D+r}, v{D}, {sr(sHI,2)}')
    for op,o in (('v_max3_f32',0),('v_min3_f32',4)):
        A(f'{op} v{u+o}, v{D}, v{D+1}, v{D+2}')
        A(f'{op} v{u+o+1}, v{D+3}, v{D+4}, v{D+5}')
        A(f'{op} v{u+o+2}, v{D+6}, v{D+7}, v{D+8}')
        A(f'{op} v{u+o+3}, v{D+9}, v{D+10}, v{D+11}')
    for op,o in (('v_max3_f32',0),('v_min3_f32',4)):
        A(f'{op} v{u+o}, v{u+o}, v{D+12}, v{D+13}')
        A(f'{op} v{u+o+1}, v{u+o+1}, v{D+14}, v{D+15}')
    for op,op2,o in (('v_max3_f32','v_max_f32',0),('v_min3_f32','v_min_f32',4)):
        A(f'{op} v{u+o}, v{u+o}, v{u+o+1}, v{u+o+2}')
    A(f'v_max_f32 v{u}, v{u}, v{u+3}\nv_min_f32 v{u+4}, v{u+4}, v{u+7}')
    A(f'v_mov_b32 v{u+1}, v{u}\nv_mov_b32 v{u+5}, v{u+4}\ns_nop 1')
    A(f'v_permlane32_swap_b32 v{u}, v{u+1}\nv_permlane32_swap_b32 v{u+4}, v{u+5}')
    A(f'v_max_f32 v{u}, v{u}, v{u+1}\nv_min_f32 v{u+4}, v{u+4}, v{u+5}')
    A(f'v_mul_f32 v{t}, s{sC2}, v{u}\nv_mul_f32 v{t+2}, s{sC2}, v{u+4}')
    for r in range(12):
        A(f'v_fma_f32 v{EP+r}, v{D+r}, s{sC2}, -v{t}')
        A(f'v_fma_f32 v{EN+r}, -v{D+r}, s{sC2}, v{t+2}')
    for k in range(4):
        A(f'v_fma_f32 v{u+k}, v{D+12+k}, s{sC2}, -v{t}')
        A(f'v_fma_f32 v{u+4+k}, -v{D+12+k}, s{sC2}, v{t+2}')
    for r in range(12):
        A(f'v_exp_f32 v{EP+r}, v{EP+r}\nv_exp_f32 v{EN+r}, v{EN+r}')
    A(f's_mov_b64 exec, {sr(sLO,2)}')
    for k in range(4):
        A(f'v_exp_f32 v{EP+12+k}, v{u+k}\nv_exp_f32 v{EN+12+k}, v{u+4+k}')
    A('s_mov_b64 exec, -1')
    if mid: mid()
    for k in range(4):
        A(f'v_add_f32 v{u+k}, v{EP+k}, v{EP+4+k}\nv_add_f32 v{u+4+k}, v{EN+k}, v{EN+4+k}')
    for k in range(4):
        A(f'v_add_f32 v{u+k}, v{u+k}, v{EP+8+k}\nv_add_f32 v{u+4+k}, v{u+4+k}, v{EN+8+k}')
    for k in range(4):
        A(f'v_add_f32 v{u+k}, v{u+k}, v{EP+12+k}\nv_add_f32 v{u+4+k}, v{u+4+k}, v{EN+12+k}')
    A(f'v_add_f32 v{u}, v{u}, v{u+1}\nv_add_f32 v{u+4}, v{u+4}, v{u+5}\nv_add_f32 v{u+2}, v{u+2}, v{u+3}\nv_add_f32 v{u+6}, v{u+6}, v{u+7}')
    A(f'v_add_f32 v{u}, v{u}, v{u+2}\nv_add_f32 v{u+4}, v{u+4}, v{u+6}')
    A(f'v_mov_b32 v{u+1}, v{u}\nv_mov_b32 v{u+5}, v{u+4}\ns_nop 1')
    A(f'v_permlane32_swap_b32 v{u}, v{u+1}\nv_permlane32_swap_b32 v{u+4}, v{u+5}')
    A(f'v_add_f32 v{u}, v{u}, v{u+1}\nv_add_f32 v{u+4}, v{u+4}, v{u+5}')
    A(f'v_rcp_f32 v{u}, v{u}\nv_rcp_f32 v{u+4}, v{u+4}\ns_nop 0')
    for r in range(16):
        A(f'v_mul_f32 v{EP+r}, v{u}, v{EP+r}\nv_mul_f32 v{EN+r}, v{u+4}, v{EN+r}')
    for r in range(0,16,2):
        A(f'v_cvt_pk_bf16_f32 v{PK+r//2}, v{EP+r}, v{EP+r+1}')
        A(f'v_cvt_pk_bf16_f32 v{PK+8+r//2}, v{EN+r}, v{EN+r+1}')

def pack_and_phi(acc):
    for r in range(0,16,2):
        A(f'v_cvt_pk_bf16_f32 v{wf+r//2}, v{acc+r}, v{acc+r+1}')
    A(f'v_cndmask_b32 v{wf+6}, v{wf+6}, 0, {sr(sHI,2)}' .replace(', 0, ',', v15, ') )
    A(f'v_cndmask_b32 v{wf+7}, v{wf+7}, v15, {sr(sHI,2)}')
    A('s_nop 1')
    A(f'v_mfma_f32_32x32x16_bf16 {vr(acc,16)}, {vr(wpf,4)}, {vr(wf,4)}, 0')
    A(f'v_mfma_f32_32x32x16_bf16 {vr(acc,16)}, {vr(wpf+4,4)}, {vr(wf+4,4)}, {vr(acc,16)}')
    A.nop(16)

def poll_flags_all(nflags_bytes, base, reg, srd_ws, name):
    L=A.newlabel('Lpf'); Ld=A.newlabel('Lpfd')
    A(f's_mov_b32 s{sCNT}, 0\ns_mov_b32 s{sT}, {base}')
    A.label(L)
    A(f'buffer_load_dwordx4 {vr(reg,4)}, v{vL16}, {sr(srd_ws,4)}, s{sT} offen sc1')
    A('s_waitcnt vmcnt(0)')
    A(f'v_xor_b32 v{reg}, s{sN}, v{reg}\nv_xor_b32 v{reg+1}, s{sN}, v{reg+1}\nv_xor_b32 v{reg+2}, s{sN}, v{reg+2}\nv_xor_b32 v{reg+3}, s{sN}, v{reg+3}')
    A(f'v_or3_b32 v{reg}, v{reg}, v{reg+1}, v{reg+2}\nv_or_b32 v{reg}, v{reg}, v{reg+3}')
    A(f'v_cmp_ne_u32 vcc, 0, v{reg}')
    A(f's_cbranch_vccz {Ld}')
    A(f's_add_u32 s{sCNT}, s{sCNT}, 1\ns_cmp_lt_u32 s{sCNT}, {SPIN}\ns_cbranch_scc1 {L}')
    A.label(Ld)
    A.vm=[]

def chk_flags(reg,addr,base,srd_ws):
    Ld=A.newlabel('Lcf'); L=A.newlabel('Lcfp')
    A(f's_mov_b32 s{sCNT}, 0\ns_mov_b32 s{sT}, {base}')
    A.label(L)
    A(f'v_cmp_ne_u32 vcc, s{sN}, v{reg}')
    A(f's_cbranch_vccz {Ld}')
    A(f's_sleep 4\nbuffer_load_dword v{reg}, v{addr}, {sr(srd_ws,4)}, s{sT} offen sc1\ns_waitcnt vmcnt(0)')
    A(f's_add_u32 s{sCNT}, s{sCNT}, 1\ns_cmp_lt_u32 s{sCNT}, {SPIN}\ns_cbranch_scc1 {L}')
    A.label(Ld)

def gen_B():
    A.label('L_B')
    A(f's_setprio {BPRIO}')
    stamp('B start')
    A(f's_load_dwordx4 s[4:7], s[0:1], 72\ns_load_dwordx4 s[40:43], s[0:1], 88\ns_load_dwordx2 s[44:45], s[0:1], 104\ns_load_dwordx2 s[46:47], s[0:1], 120')
    A(f'v_lshrrev_b32 v10, 6, v0\nv_and_b32 v0, 63, v0\ns_nop 0\nv_readfirstlane_b32 s{sW}, v10')
    if LOC: A(f's_and_b32 s{sP}, s2, 7\ns_lshr_b32 s{sRB}, s2, 3\ns_and_b32 s{sT2}, s{sRB}, 3')
    else: A(f's_and_b32 s{sT}, s2, 7\ns_lshl_b32 s{sT}, s{sT}, 2\ns_lshr_b32 s{sT2}, s2, 3\ns_and_b32 s{sT2}, s{sT2}, 3\ns_add_u32 s{sRB}, s{sT}, s{sT2}\ns_lshr_b32 s{sP}, s2, 5')
    A(f's_lshr_b32 s{sRT}, s{sW}, 1\ns_and_b32 s{sA}, s{sW}, 1\ns_lshl_b32 s{sWB}, s{sW}, 11\ns_mul_i32 s{sP112}, s{sP}, 112')
    if LOC:
        A(f's_mul_i32 s{sT}, s{sRB}, 37\ns_lshr_b32 s{sT}, s{sT}, 8\ns_mul_i32 s{sT}, s{sT}, 7\ns_sub_u32 s{sCP}, s{sRB}, s{sT}')
    else:
        A(f's_lshl_b32 s{sT2}, s{sT2}, 1\ns_add_u32 s{sT}, s{sP}, s{sT2}')
        A(f's_cmp_ge_u32 s{sT}, 7\ns_cselect_b32 s{sT2}, 7, 0\ns_sub_u32 s{sCP}, s{sT}, s{sT2}')
    for c in range(1,7):
        A(f's_add_u32 s{sT}, s{sCP+c-1}, 1\ns_cmp_ge_u32 s{sT}, 7\ns_cselect_b32 s{sCP+c}, 0, s{sT}')
    A(f's_mov_b32 s{sHI}, 0\ns_mov_b32 s{sHI+1}, -1\ns_mov_b32 s{sLO}, -1\ns_mov_b32 s{sLO+1}, 0')
    A(f's_mov_b32 s{sC2}, {LOG2E}\ns_mov_b32 s{sC2+1}, {LOG2E}')
    A(f'v_lshlrev_b32 v{vL16}, 4, v0')
    A(f'v_lshrrev_b32 v10, 3, v0\nv_lshrrev_b32 v11, 4, v0\nv_and_b32 v12, 7, v0')
    A(f's_lshl_b32 s{sT}, s{sW}, 4\nv_add_u32 v13, s{sT}, v10')
    A(f'v_xor_b32 v14, v12, v11\nv_lshlrev_b32 v14, 4, v14\nv_mul_u32_u24 v{vXA0}, 896, v13\nv_add_u32 v{vXA0}, v{vXA0}, v14')
    A(f'v_add_u32 v14, 4, v11\nv_xor_b32 v14, v12, v14\nv_lshlrev_b32 v14, 4, v14\nv_add_u32 v15, 8, v13\nv_mul_u32_u24 v{vXA1}, 896, v15\nv_add_u32 v{vXA1}, v{vXA1}, v14')
    A(f'v_and_b32 v14, 1, v11\nv_lshlrev_b32 v14, 2, v14\nv_xor_b32 v14, v12, v14\nv_lshrrev_b32 v15, 2, v14\nv_sub_u32 v14, v14, v15\nv_lshlrev_b32 v14, 4, v14')
    A(f'v_mul_u32_u24 v{vWA}, 2688, v13\nv_add_u32 v{vWA}, v{vWA}, v14')
    A('s_waitcnt lgkmcnt(0)')
    stamp('kernarg loaded')
    A(f's_mul_i32 s{sT}, s{sRB}, 57344\ns_add_u32 s4, s4, s{sT}\ns_addc_u32 s5, s5, 0')
    srd(S_X,4,57344); srd(S_W,6,1204224); srd(S_WO,42,401408); srd(S_WS,46,WS_SIZE); srd(S_OUT,44,3670016)
    A(f's_lshl_b32 s{sT}, s{sP}, 1\ns_add_u32 s{sT}, s{sT}, s{sA}\ns_mul_i32 s{sT}, s{sT}, 1568\ns_add_u32 s40, s40, s{sT}\ns_addc_u32 s41, s41, 0\ns_sub_u32 s{sT2}, 25088, s{sT}')
    srd(S_WP,40,f's{sT2}')
    A(f's_load_dword s{sN}, s[46:47], {WS_EPOCH}')
    A(f's_lshl_b32 s{sT}, s{sP}, 5\ns_add_u32 s{sT}, s{sT}, s{sRB}\ns_mul_i32 s{sPART}, s{sT}, {PSTR}\ns_add_u32 s{sPART}, s{sPART}, {WS_PART}')
    A(f's_lshl_b32 s{sRED}, s{sP}, 13\ns_add_u32 s{sRED}, s{sRED}, {WS_RED}')
    A(f's_lshl_b32 s{sT}, s{sRB}, 1\ns_add_u32 s{sT}, s{sT}, s{sRT}\ns_lshl_b32 s{sT}, s{sT}, 4\ns_lshl_b32 s{sT2}, s{sP}, 1\ns_add_u32 s{sT}, s{sT}, s{sT2}\ns_add_u32 s{sT}, s{sT}, s{sA}\ns_lshl_b32 s{sOB}, s{sT}, 11\ns_add_u32 s{sOB}, s{sOB}, {WS_OBUF}')
    if KDMA:
        for u in range(4): issue_unit(u)
    else:
        for c in range(KDEPTH):
            issue_reg(c)
            if PST and c in (0,1,2,3,6): stamp('chunk %d issued'%c)
    A(f's_lshl_b32 s{sT}, s{sA}, 12\ns_lshl_b32 s{sT2}, s{sRT}, 11\ns_add_u32 s{sT}, s{sT}, s{sT2}\ns_add_u32 s{sPART}, s{sPART}, s{sT}')
    A(f'v_and_b32 v10, 31, v0\nv_lshrrev_b32 v11, 5, v0\nv_lshrrev_b32 v12, 1, v10\nv_and_b32 v12, 7, v12')
    A(f's_lshl_b32 s{sT}, s{sRT}, 5\nv_add_u32 v13, s{sT}, v10\nv_lshlrev_b32 v13, 7, v13')
    for kk in range(4):
        A(f'v_add_u32 v14, {2*kk}, v11\nv_xor_b32 v14, v14, v12\nv_lshlrev_b32 v14, 4, v14\nv_add_u32 v{vXR+kk}, v13, v14')
    A(f'v_lshrrev_b32 v10, 4, v0\nv_and_b32 v10, 1, v10\nv_bfe_u32 v12, v0, 2, 2\nv_and_b32 v13, 3, v0')
    A(f'v_and_b32 v14, v13, v10\nv_lshrrev_b32 v15, 1, v13\nv_and_b32 v14, v14, v15\nv_sub_u32 v120, v13, v14')
    A(f'v_lshlrev_b32 v14, 3, v11\nv_add_u32 v14, v14, v12\nv_lshlrev_b32 v{vWR}, 7, v14')
    A(f'v_lshrrev_b32 v14, 1, v12\nv_xor_b32 v14, s{sA}, v14\nv_lshlrev_b32 v14, 6, v14\nv_add_u32 v{vWR}, v{vWR}, v14')
    A(f's_lshl_b32 s{sT}, s{sA}, 3\nv_lshlrev_b32 v14, 5, v10\nv_add_u32 v{vWR}, s{sT}, v{vWR}\nv_add_u32 v{vWR}, v{vWR}, v14\nv_lshlrev_b32 v14, 3, v120\nv_add_u32 v{vWR}, v{vWR}, v14')
    A(f'v_lshlrev_b32 v14, 2, v11\nv_add_u32 v14, v14, v12\nv_mul_u32_u24 v121, 56, v14\nv_lshlrev_b32 v14, 5, v10\nv_add_u32 v121, v121, v14\nv_lshlrev_b32 v14, 3, v13\nv_add_u32 v121, v121, v14\nv_add_u32 v121, s{sWB}, v121')
    A(f's_mul_i32 s{sT}, s{sA}, {PHI_H}\ns_add_u32 s{sT}, s{sT}, {L_PHI}')
    A(f'v_and_b32 v14, 31, v0\ns_lshl_b32 s{sT2}, s{sRT}, 5\nv_add_u32 v14, s{sT2}, v14\nv_mul_u32_u24 v122, 136, v14\nv_lshlrev_b32 v14, 3, v11\nv_add_u32 v122, v122, v14\nv_add_u32 v122, s{sT}, v122')
    A(f'v_lshlrev_b32 v14, 2, v11\nv_add_u32 v14, v14, v12\nv_mul_u32_u24 v123, 136, v14\nv_lshlrev_b32 v14, 5, v10\nv_add_u32 v123, v123, v14\nv_lshlrev_b32 v14, 3, v13\nv_add_u32 v123, v123, v14')
    A(f's_lshl_b32 s{sT2}, s{sRT}, 6\ns_add_u32 s{sT}, s{sT}, s{sT2}\nv_add_u32 v123, s{sT}, v123')
    vWPA=240; vPHW=241; vPHR=242; vFA=243; vFV=244; vF2A=4; vF2V=5; v1A=247; vSEL=248
    A(f'v_mov_b32 v{vWPA}, v121\nv_mov_b32 v{vPHW}, v122\nv_mov_b32 v{vPHR}, v123')
    A('v_mov_b32 v15, 0')
    for k in range(4): A(f'v_mov_b32 v{EP+12+k}, 0\nv_mov_b32 v{EN+12+k}, 0')
    if LOC:
        A(f'v_and_b32 v10, 31, v0\nv_lshlrev_b32 v11, 3, v10\nv_add_u32 v11, s{sP}, v11\nv_mov_b32 v12, v11')
    else:
        A(f'v_and_b32 v10, 31, v0\nv_lshrrev_b32 v11, 2, v10\nv_and_b32 v12, 3, v10\nv_lshlrev_b32 v12, 3, v12\nv_add_u32 v11, v11, v12\ns_lshl_b32 s{sT}, s{sP}, 5\nv_add_u32 v11, s{sT}, v11')
        A(f'v_and_b32 v12, 7, v0\nv_lshlrev_b32 v12, 5, v12\ns_and_b32 s{sT}, s2, 31\nv_add_u32 v12, s{sT}, v12')
    A(f'v_cndmask_b32 v11, v11, v12, {sr(sHI,2)}')
    A(f'v_subrev_u32 v12, 224, v11\nv_cmp_gt_u32 vcc, 224, v11\ns_nop 1\nv_cndmask_b32 v11, v12, v11, vcc\nv_lshlrev_b32 v{vFA}, 7, v11')
    A(f'v_lshrrev_b32 v10, 4, v0\nv_mul_u32_u24 v10, {PSTR}, v10\nv_and_b32 v11, 15, v0\nv_lshlrev_b32 v12, 4, v11\nv_add_u32 v{v1A}, v10, v12')
    A(f'v_and_b32 v12, 1, v11\nv_lshlrev_b32 v12, 4, v12\nv_mov_b32 v13, 0x3f80\nv_lshlrev_b32 v12, v12, v13\nv_lshrrev_b32 v11, 1, v11')
    for q in range(4):
        A(f'v_cmp_eq_u32 vcc, {q}, v11\ns_nop 1\nv_cndmask_b32 v{vSEL+q}, v15, v12, vcc')
    stamp('B prologue issued')
    BUF=[[wf,wf+4,wf+8,wf+12],[72,76,80,88]]
    def rd_unit(u,buf):
        slot=slotaddr(u)
        for kk in range(4):
            A(f'ds_read_b64_tr_b16 {vr(buf[kk],2)}, v{vWR} offset:{slot+2048*kk}')
            A(f'ds_read_b64_tr_b16 {vr(buf[kk]+2,2)}, v{vWR} offset:{slot+2048*kk+512}')
    def gemm_group(units,c0,acc,x_is_A,first,pre=None):
        rd_unit(units[0],BUF[0])
        if pre: pre()
        for i,u in enumerate(units):
            nxt = i+1<len(units)
            if nxt: rd_unit(units[i+1],BUF[(i+1)&1])
            c=c0+i
            for kk in range(4):
                extra = 8 if nxt else 0
                if i==0 and pre: extra += 0
                A(f's_waitcnt lgkmcnt({min(15,2*(3-kk)+extra)})')
                cin='0' if (first and i==0 and kk==0) else vr(acc,16)
                wfr=vr(BUF[i&1][kk],4); xfr=vr(XF+16*c+4*kk,4)
                A(f'v_mfma_f32_32x32x16_bf16 {vr(acc,16)}, '+(f'{xfr}, {wfr}' if x_is_A else f'{wfr}, {xfr}')+f', {cin}')
    if KDMA:
        for u in (4,5,6): issue_unit(u)
        for j in range(2):
            A(f's_add_u32 m0, s{sWB}, {L_WP+j*1024}\ns_mov_b32 s{sT}, {j*1024}')
            A.vm_op(f'buffer_load_dwordx4 v{vL16}, {sr(S_WP,4)}, s{sT} offen lds',tag='wp')
        for c in range(7):
            A.vm_wait(('u',2*c+1))
            A('s_barrier')
            if c>=1:
                issue_unit(2*c+5); issue_unit(2*c+6)
            sx=slotaddr(2*c)
            for kk in range(4):
                A(f'ds_read_b128 {vr(XF+16*c+4*kk,4)}, v{vXR+kk} offset:{sx}')
            read_wfrags(2*c+1)
            if c==4:
                for j in range(2):
                    A(f'ds_read_b64_tr_b16 {vr(wpf+4*j,2)}, v{vWPA} offset:{L_WP+896*j}')
                    A(f'ds_read_b64_tr_b16 {vr(wpf+4*j+2,2)}, v{vWPA} offset:{L_WP+896*j+448}')
            ex = 4 if c==4 else 0
            for kk in range(4):
                A(f's_waitcnt lgkmcnt({2*(3-kk)+ex})')
                cin = '0' if (c==0 and kk==0) else vr(accA,16)
                A(f'v_mfma_f32_32x32x16_bf16 {vr(accA,16)}, {vr(wf+4*kk,4)}, {vr(XF+16*c+4*kk,4)}, {cin}')
            if c==4:
                A('s_waitcnt lgkmcnt(0)')
                A(f'v_cndmask_b32 v{wpf+6}, v{wpf+6}, v15, {sr(sHI,2)}\nv_cndmask_b32 v{wpf+7}, v{wpf+7}, v15, {sr(sHI,2)}')
            if c==0: stamp('K0 done')
        A('s_barrier')
        A(f's_mov_b32 s{sT}, {WS_FLAGA1}')
        A.vm_op(f'buffer_load_dword v{vFV}, v{vFA}, {sr(S_WS,4)}, s{sT} offen sc1',tag='flagc')
        issue_unit(19); issue_unit(20)
    else:
        vLW=252
        A(f'v_add_u32 v{vLW}, s{sWB}, v{vL16}')
        A.vm_wait(('k',0))
        write_k(0,vLW)
        A('s_waitcnt lgkmcnt(0)\ns_barrier')
        vleft=[14,15,16]
        for c in range(7):
            sx=(c&1)*16384
            for kk in range(4):
                A(f'ds_read_b128 {vr(XF+16*c+4*kk,4)}, v{vXR+kk} offset:{sx}')
            read_wfrags(2*c+1)
            nw=0
            if c<6:
                A.vm_wait(('k',c+1))
                write_k(c+1,vLW); nw=4
            if c+KDEPTH<=6: issue_reg(c+KDEPTH)
            if c+KDEPTH==7:
                for j in range(2):
                    A(f's_add_u32 m0, s{sWB}, {L_WP+j*1024}\ns_mov_b32 s{sT}, {j*1024}')
                    A.vm_op(f'buffer_load_dwordx4 v{vL16}, {sr(S_WP,4)}, s{sT} offen lds',tag='wp')
            if c+KDEPTH>=7 and vleft: issue_unit(vleft.pop(0))
            if c==5:
                while vleft: issue_unit(vleft.pop(0))
            if c==6:
                A.vm_wait('wp')
                for j in range(2):
                    A(f'ds_read_b64_tr_b16 {vr(wpf+4*j,2)}, v{vWPA} offset:{L_WP+896*j}')
                    A(f'ds_read_b64_tr_b16 {vr(wpf+4*j+2,2)}, v{vWPA} offset:{L_WP+896*j+448}')
                nw+=4
            for kk in range(4):
                A(f's_waitcnt lgkmcnt({min(15,2*(3-kk)+nw)})')
                cin = '0' if (c==0 and kk==0) else vr(accA,16)
                A(f'v_mfma_f32_32x32x16_bf16 {vr(accA,16)}, {vr(wf+4*kk,4)}, {vr(XF+16*c+4*kk,4)}, {cin}')
            A('s_waitcnt lgkmcnt(0)')
            if c==6:
                A(f'v_cndmask_b32 v{wpf+6}, v{wpf+6}, v15, {sr(sHI,2)}\nv_cndmask_b32 v{wpf+7}, v{wpf+7}, v15, {sr(sHI,2)}')
            A('s_barrier')
            if c==0: stamp('K0 done')
        A(f's_mov_b32 s{sT}, {WS_FLAGA1}')
        A.vm_op(f'buffer_load_dword v{vFV}, v{vFA}, {sr(S_WS,4)}, s{sT} offen sc1',tag='flagc')
        for u in (17,18,19,20): issue_unit(u)
    stamp('K phase done')
    A.nop(6)
    pack_and_phi(accA)
    softmax(accA,'k')
    for jj in range(4):
        A(f'ds_write_b64 v{vPHW}, {vr(PK+2*jj,2)} offset:{16*jj}')
        A(f'ds_write_b64 v{vPHW}, {vr(PK+8+2*jj,2)} offset:{64+16*jj}')
    stamp('softmax k done')
    AF=[PK,PK+4,PK+8,PK+12]
    A.vm_wait(('u',16),' lgkmcnt(0)')
    A('s_barrier')
    gemm_group([14,15,16],0,accB,True,True)
    for m in range(4):
        A(f'ds_read_b64_tr_b16 {vr(AF[m],2)}, v{vPHR} offset:{16*m*136}')
        A(f'ds_read_b64_tr_b16 {vr(AF[m]+2,2)}, v{vPHR} offset:{16*m*136+8*136}')
    A.vm_wait(('u',18),' lgkmcnt(0)')
    A('s_barrier')
    issue_unit(21); issue_unit(22); issue_unit(23)
    gemm_group([17,18],3,accB,True,False)
    A.vm_wait(('u',20))
    A('s_barrier')
    issue_unit(24); issue_unit(25)
    gemm_group([19,20],5,accB,True,False)
    stamp('V phase done')
    A(f'v_and_b32 v10, 31, v0\nv_cmp_eq_u32 vcc, 28, v10\nv_mov_b32 v11, 0x3f803f80')
    A(f'v_add_u32 v12, s{sWB}, v{vL16}\ns_xor_b32 s{sT}, s{sWB}, 4096\nv_add_u32 v13, s{sT}, v{vL16}')
    A(f's_waitcnt lgkmcnt(0)\ns_add_u32 s{sN}, s{sN}, {NONCE_C}')
    A.nop(6)
    for r in range(0,16,2):
        A(f'v_cvt_pk_bf16_f32 v{wf+r//2}, v{accB+r}, v{accB+r+1}')
    for k in range(8): A(f'v_cndmask_b32 v{wf+k}, v{wf+k}, v11, vcc')
    L_VX=slotaddr(19)
    A('s_barrier')
    A(f'ds_write_b128 v12, {vr(wf,4)} offset:{L_VX}\nds_write_b128 v12, {vr(wf+4,4)} offset:{L_VX+1024}')
    A('s_waitcnt lgkmcnt(0)\ns_barrier')
    A(f'ds_read_b128 {vr(wf+8,4)}, v13 offset:{L_VX}\nds_read_b128 {vr(wf+12,4)}, v13 offset:{L_VX+1024}')
    issue_unit(27)
    A.vm_wait('flagc')
    chk_flags(vFV,vFA,WS_FLAGA1,S_WS)
    Lr1=A.newlabel('Lrt1'); Lr2=A.newlabel('Lrtd')
    order0=[wf,wf+4,wf+8,wf+12]; order1=[wf+8,wf+12,wf,wf+4]
    A(f's_cmp_lg_u32 s{sRT}, 0\ns_cbranch_scc1 {Lr1}')
    for m in range(4):
        if m==2: A('s_waitcnt lgkmcnt(0)')
        A(f'v_mfma_f32_32x32x16_bf16 {vr(accA,16)}, {vr(AF[m],4)}, {vr(order0[m],4)}, '+('0' if m==0 else vr(accA,16)))
    A(f's_branch {Lr2}')
    A.label(Lr1)
    for n,m in enumerate((2,3,0,1)):
        if n==2: A('s_waitcnt lgkmcnt(0)')
        A(f'v_mfma_f32_32x32x16_bf16 {vr(accA,16)}, {vr(AF[m],4)}, {vr(order1[m],4)}, '+('0' if n==0 else vr(accA,16)))
    A.label(Lr2)
    A.nop(14)
    for r in range(0,16,2):
        A(f'v_cvt_pk_bf16_f32 v{72+r//2}, v{accA+r}, v{accA+r+1}')
    A.vm_op(f'buffer_store_dwordx4 v[72:75], v{vL16}, {sr(S_WS,4)}, s{sPART} offen'+LSC,tag='part')
    A.vm_op(f'buffer_store_dwordx4 v[76:79], v{vL16}, {sr(S_WS,4)}, s{sPART} offen offset:1024'+LSC,tag='part')
    stamp('partial published')
    if not NOCLR:
        A('v_mov_b32 v10, -1\nv_mov_b32 v11, -1\nv_mov_b32 v12, -1\nv_mov_b32 v13, -1')
        A.vm_op(f'buffer_store_dwordx4 v[10:13], v{vL16}, {sr(S_WS,4)}, s{sOB} offen sc1',tag='oclr')
        A.vm_op(f'buffer_store_dwordx4 v[10:13], v{vL16}, {sr(S_WS,4)}, s{sOB} offen offset:1024 sc1',tag='oclr')
    A.vm_wait(('u',25))
    A('s_barrier')
    issue_unit(26)
    gemm_group([21,22,23,24,25],0,accA,False,True)
    vWO=1; vWOR=2
    sWOB=41; sCOL=42; sACT=43
    A(f's_and_b32 s{sT}, s{sP}, 3\ns_lshl_b32 s45, s{sT}, 8\ns_lshl_b32 s{sT}, s{sT}, 7\ns_lshl_b32 s{sT2}, s{sW}, 5\ns_add_u32 s{sCOL}, s{sT}, s{sT2}')
    A(f's_cmp_lt_u32 s{sCOL}, 448\ns_cselect_b32 s{sACT}, 1, 0\ns_lshl_b32 s{sWOB}, s{sW}, 10')
    A(f'v_lshrrev_b32 v10, 4, v0\nv_mul_u32_u24 v{vWO}, 896, v10\nv_lshlrev_b32 v11, 2, v10\nv_and_b32 v12, 15, v0\nv_xor_b32 v11, v11, v12\nv_lshlrev_b32 v11, 4, v11\nv_add_u32 v{vWO}, v{vWO}, v11\nv_add_u32 v{vWO}, s45, v{vWO}')
    A(f'v_lshrrev_b32 v10, 5, v0\nv_lshlrev_b32 v10, 2, v10\nv_bfe_u32 v11, v0, 2, 2\nv_add_u32 v10, v10, v11\nv_lshlrev_b32 v10, 8, v10\nv_xor_b32 v11, s{sW}, v11\nv_lshlrev_b32 v11, 6, v11\nv_add_u32 v10, v10, v11')
    A(f'v_bfe_u32 v11, v0, 4, 1\nv_lshlrev_b32 v11, 5, v11\nv_add_u32 v10, v10, v11\nv_and_b32 v11, 3, v0\nv_lshlrev_b32 v11, 3, v11\nv_add_u32 v{vWOR}, v10, v11')
    A.vm_wait(('u',26))
    A('s_barrier')
    Lf2=A.newlabel('Lfb2')
    A(f's_cmp_lg_u32 s{sW}, 3\ns_cbranch_scc1 {Lf2}')
    A(f's_lshl_b32 s{sT}, s2, 7\ns_add_u32 s{sT}, s{sT}, {WS_FLAGB2}\nv_mov_b32 v10, s{sN}\nv_mov_b32 v11, s{sN}\nv_mov_b32 v12, s{sN}\nv_mov_b32 v13, s{sN}\ns_mov_b64 exec, 0xff')
    A(f'buffer_store_dwordx4 v[10:13], v{vL16}, {sr(S_WS,4)}, s{sT} offen sc1\ns_mov_b64 exec, -1\ns_nop 1')
    A.label(Lf2)
    LD=[32,36,40,44,104,108,112,116]
    def issue_1a():
        for m in range(8):
            A(f's_add_u32 s{sT}, s40, {m*4*PSTR}')
            A(f'buffer_load_dwordx4 {vr(LD[m],4)}, v{v1A}, {sr(S_WS,4)}, s{sT} offen sc1')
    L1i=A.newlabel('L1a_i')
    A(f's_cmp_lg_u32 s{sW}, 0\ns_cbranch_scc1 {L1i}')
    A(f's_mul_i32 s{sT}, s{sP}, {32*PSTR}\ns_lshl_b32 s{sT2}, s{sRB}, 8\ns_add_u32 s{sT}, s{sT}, s{sT2}\ns_add_u32 s40, s{sT}, {WS_PART}')
    issue_1a()
    A.label(L1i)
    gemm_group([26,27],5,accA,False,False)
    stamp('Q gemm done')
    A('s_waitcnt lgkmcnt(0)\ns_barrier')
    def wo_dma(row0,k0,k1):
        for k in range(k0,k1):
            A(f's_add_u32 m0, s{sWOB}, {k*4096}\ns_add_u32 s{sT}, s46, {(row0+16*k)*896}')
            A(f'buffer_load_dwordx4 v{vWO}, {sr(S_WO,4)}, s{sT} offen lds')
    def wo_frags(h0,h1,row0):
        for h in range(h0,h1):
            for j in range(2):
                b_=XF+8*h+4*j; o=(28*h-row0+16*j)*256
                if o+2048<65536:
                    A(f'ds_read_b64_tr_b16 {vr(b_,2)}, v{vWOR} offset:{o}\nds_read_b64_tr_b16 {vr(b_+2,2)}, v{vWOR} offset:{o+2048}')
                else:
                    A(f'ds_read_b64_tr_b16 {vr(b_,2)}, v6 offset:{o-32768}\nds_read_b64_tr_b16 {vr(b_+2,2)}, v6 offset:{o+2048-32768}')
    A(f's_mul_i32 s46, s{sW}, 3584\nv_add_u32 v6, 32768, v{vWOR}')
    A.nop(8)
    pack_and_phi(accA)
    L1a=A.newlabel('L1a_skip')
    A(f's_cmp_lg_u32 s{sW}, 0\ns_cbranch_scc1 {L1a}')
    A(f'v_and_b32 v10, 15, v0\nv_lshlrev_b32 v10, 4, v10\nv_lshrrev_b32 v11, 4, v0\nv_lshlrev_b32 v11, 3, v11\nv_add_u32 v10, v10, v11')
    A(f's_lshl_b32 s47, s{sRB}, 8\ns_add_u32 s47, s47, s{sRED}\ns_mov_b32 s{sCNT}, 0')
    Lp=A.newlabel('L1a_poll'); Lpd=A.newlabel('L1a_done')
    A.label(Lp)
    for m in range(8):
        A(f's_waitcnt vmcnt({7-m})')
        A(f'v_mfma_f32_16x16x32_bf16 v[48:51], {vr(vSEL,4)}, {vr(LD[m],4)}, '+('0' if m==0 else 'v[48:51]'))
    A.nop(8)
    A(f'v_cmp_u_f32 vcc, v48, v48\ns_cbranch_vccz {Lpd}')
    issue_1a()
    A(f's_add_u32 s{sCNT}, s{sCNT}, 1\ns_cmp_lt_u32 s{sCNT}, {SPIN}\ns_cbranch_scc1 {Lp}')
    A('s_waitcnt vmcnt(0)')
    A.label(Lpd)
    A('v_cvt_pk_bf16_f32 v52, v48, v49\nv_cvt_pk_bf16_f32 v53, v50, v51')
    A(f's_mov_b64 exec, {sr(sLO,2)}')
    A(f'buffer_store_dwordx2 v[52:53], v10, {sr(S_WS,4)}, s47 offen'+LSC)
    A('s_mov_b64 exec, -1')
    A.label(L1a)
    stamp('1a done')
    wo_dma(0,0,7)
    softmax(accA,'q',mid=lambda: wo_dma(0,7,14))
    wo_dma(0,14,20)
    stamp('softmax q done')
    if LOC: A(f'v_and_b32 v12, 7, v0\ns_lshl_b32 s{sT}, s{sRB}, 3\nv_add_u32 v12, s{sT}, v12\nv_lshlrev_b32 v{vF2A}, 7, v12')
    else: A(f'v_and_b32 v12, 7, v0\nv_lshlrev_b32 v12, 5, v12\ns_and_b32 s{sT}, s2, 31\nv_add_u32 v12, s{sT}, v12\nv_lshlrev_b32 v{vF2A}, 7, v12')
    A(f's_mov_b32 s{sT}, {WS_FLAGB2}')
    A(f'buffer_load_dword v{vF2V}, v{vF2A}, {sr(S_WS,4)}, s{sT} offen sc1')
    Lp=A.newlabel('L1b_poll'); Lpd=A.newlabel('L1b_done')
    A(f's_lshl_b32 s{sT}, s{sA}, 12\ns_add_u32 s40, s{sT}, s{sRED}\ns_mov_b32 s{sCNT}, 0')
    A.label(Lp)
    for m in range(4):
        A(f'buffer_load_dwordx4 {vr(32+4*m,4)}, v{vL16}, {sr(S_WS,4)}, s40 offen offset:{m*1024} sc1')
    A('s_waitcnt vmcnt(0)')
    A('v_max3_u32 v10, v32, v33, v34')
    for k in range(35,47,2): A(f'v_max3_u32 v10, v10, v{k}, v{k+1}')
    A('v_max_u32 v10, v10, v47\nv_cmp_eq_u32 vcc, -1, v10')
    A(f's_cbranch_vccz {Lpd}')
    A(f's_add_u32 s{sCNT}, s{sCNT}, 1\ns_cmp_lt_u32 s{sCNT}, {SPIN}\ns_cbranch_scc1 {Lp}')
    A.label(Lpd)
    A.vm=[]
    stamp('1b done')
    for m in range(4):
        A(f'v_mfma_f32_32x32x16_bf16 {vr(accA,16)}, {vr(32+4*m,4)}, {vr(PK+4*m,4)}, '+('0' if m==0 else vr(accA,16)))
    A.nop(16)
    A(f'v_mov_b32 v10, v{accA+12}\nv_mov_b32 v11, v{accA+12}\ns_nop 1\nv_permlane32_swap_b32 v10, v11')
    A('v_add_f32 v11, 0x358637bd, v11\nv_rcp_f32 v12, v11\ns_nop 0')
    for r in range(16):
        A(f'v_mul_f32 v{accA+r}, v12, v{accA+r}')
    for r in range(0,16,2):
        A(f'v_cvt_pk_bf16_f32 v{48+r//2}, v{accA+r}, v{accA+r+1}')
    A(f'v_cndmask_b32 v54, v54, v15, {sr(sHI,2)}\nv_cndmask_b32 v55, v55, v15, {sr(sHI,2)}')
    A.vm_op(f'buffer_store_dwordx4 v[48:51], v{vL16}, {sr(S_WS,4)}, s{sOB} offen sc1',tag='o')
    A.vm_op(f'buffer_store_dwordx4 v[52:55], v{vL16}, {sr(S_WS,4)}, s{sOB} offen offset:1024 sc1',tag='o')
    stamp('o published')
    A(f's_lshl_b32 s{sT}, s{sRB}, 1\ns_lshr_b32 s{sT2}, s{sP}, 2\ns_add_u32 s{sT}, s{sT}, s{sT2}\ns_mov_b32 s44, s{sT}\ns_lshl_b32 s{sT}, s{sT}, 15\ns_lshl_b32 s{sT2}, s{sW}, 13\ns_add_u32 s{sT}, s{sT}, s{sT2}\ns_add_u32 s40, s{sT}, {WS_OBUF}')
    A('s_barrier')
    Lw2=A.newlabel('Lwo2')
    A(f's_cmp_eq_u32 s{sACT}, 0\ns_cbranch_scc1 {Lw2}')
    wo_frags(0,11,0)
    A.label(Lw2)
    A('s_waitcnt lgkmcnt(0)\ns_barrier')
    wo_dma(308,0,5)
    A('s_waitcnt vmcnt(5)')
    chk_flags(vF2V,vF2A,WS_FLAGB2,S_WS)
    def issue_h2():
        for m in range(8):
            A(f's_add_u32 s{sT}, s40, {(m//4)*4096}')
            A(f'buffer_load_dwordx4 {vr(72+4*m,4)}, v{vL16}, {sr(S_WS,4)}, s{sT} offen offset:{(m%4)*1024} sc1')
    issue_h2()
    wo_dma(308,5,9)
    L_O=36864; L_OUT=69632
    A(f's_lshl_b32 s{sT}, s{sW}, 13\ns_add_u32 s{sT}, s{sT}, {L_O}\nv_add_u32 v7, s{sT}, v{vL16}\nv_add_u32 v8, {L_O}, v{vL16}')
    Lp=A.newlabel('Lh2_poll'); Lpd=A.newlabel('Lh2_done')
    A(f's_mov_b32 s{sCNT}, 0')
    A.label(Lp)
    A('s_waitcnt vmcnt(0)')
    A('v_max3_u32 v10, v72, v73, v74')
    for k in range(75,103,2): A(f'v_max3_u32 v10, v10, v{k}, v{k+1}')
    A('v_max_u32 v10, v10, v103\nv_cmp_eq_u32 vcc, -1, v10')
    A(f's_cbranch_vccz {Lpd}')
    issue_h2()
    A(f's_add_u32 s{sCNT}, s{sCNT}, 1\ns_cmp_lt_u32 s{sCNT}, {SPIN}\ns_cbranch_scc1 {Lp}')
    A('s_waitcnt vmcnt(0)')
    A.label(Lpd)
    stamp('hop2 loaded')
    for m in range(8): A(f'ds_write_b128 v7, {vr(72+4*m,4)} offset:{m*1024}')
    A('s_waitcnt lgkmcnt(0)\ns_barrier')
    Le=A.newlabel('LB_s3skip')
    A(f's_cmp_eq_u32 s{sACT}, 0\ns_cbranch_scc1 {Le}')
    wo_frags(11,16,308)
    OB=[[32,36,40,44],[48,52,56,60]]
    def rdo(g):
        for m in range(4): A(f'ds_read_b128 {vr(OB[g&1][m],4)}, v8 offset:{(g*4+m)*1024}')
    rdo(0)
    for g in range(8):
        if g+1<8: rdo(g+1)
        for m in range(4):
            f=g*4+m
            A(f's_waitcnt lgkmcnt({(3-m)+(4 if g+1<8 else 0)})')
            A(f'v_mfma_f32_32x32x16_bf16 {vr(accA,16)}, {vr(XF+4*f,4)}, {vr(OB[g&1][m],4)}, '+('0' if f==0 else vr(accA,16)))
    A(f'v_and_b32 v10, 31, v0\nv_mul_u32_u24 v10, 272, v10\nv_lshrrev_b32 v11, 5, v0\nv_lshlrev_b32 v11, 4, v11\nv_add_u32 v10, v10, v11\ns_lshl_b32 s{sT}, s{sW}, 6\ns_add_u32 s{sT}, s{sT}, {L_OUT}\nv_add_u32 v10, s{sT}, v10')
    A.nop(6)
    for r in range(0,16,2):
        A(f'v_cvt_pk_bf16_f32 v{64+r//2}, v{accA+r}, v{accA+r+1}')
    A('s_nop 1')
    A('v_permlane32_swap_b32 v64, v66\nv_permlane32_swap_b32 v65, v67\nv_permlane32_swap_b32 v68, v70\nv_permlane32_swap_b32 v69, v71')
    A('s_nop 0\nds_write_b128 v10, v[64:67]\nds_write_b128 v10, v[68:71] offset:32')
    A.label(Le)
    A(f'v_lshrrev_b32 v10, 4, v0\ns_lshl_b32 s{sT}, s{sW}, 3\nv_add_u32 v10, s{sT}, v10\nv_and_b32 v11, 15, v0\nv_lshlrev_b32 v11, 4, v11')
    A(f'v_mul_u32_u24 v12, 272, v10\nv_add_u32 v12, v12, v11\nv_add_u32 v12, {L_OUT}, v12')
    A(f's_lshl_b32 s{sT}, s44, 5\nv_add_u32 v10, s{sT}, v10\nv_mul_u32_u24 v10, 1792, v10\nv_add_u32 v10, v10, v11\ns_add_u32 s{sT}, s45, 896')
    A('s_waitcnt lgkmcnt(0)\ns_barrier')
    A('ds_read_b128 v[64:67], v12\nds_read_b128 v[68:71], v12 offset:1088')
    Lm=A.newlabel('Lmask')
    A(f's_cmp_lg_u32 s45, 768\ns_cbranch_scc1 {Lm}\ns_mov_b32 exec_lo, 0x00ff00ff\ns_mov_b32 exec_hi, 0x00ff00ff')
    A.label(Lm)
    A('s_waitcnt lgkmcnt(0)')
    A(f'buffer_store_dwordx4 v[64:67], v10, {sr(S_OUT,4)}, s{sT} offen')
    A(f's_add_u32 s{sT}, s{sT}, {4*1792}')
    A(f'buffer_store_dwordx4 v[68:71], v10, {sr(S_OUT,4)}, s{sT} offen\ns_mov_b64 exec, -1')
    stamp('B end')
    Lx=A.newlabel('LB_exit')
    A(f's_or_b32 s{sT}, s2, s{sW}\ns_cmp_lg_u32 s{sT}, 0\ns_cbranch_scc1 {Lx}')
    if not NOA:
        for k in range(4):
            L=A.newlabel('Lep'); Ld=A.newlabel('Lepd')
            A(f'v_lshlrev_b32 v10, 7, v0\ns_mov_b32 s{sT}, {WS_FLAGA1+k*64*128}\ns_mov_b32 s{sCNT}, 0')
            if k==3: A('s_mov_b32 exec_hi, 0')
            A.label(L)
            A(f'buffer_load_dword v11, v10, {sr(S_WS,4)}, s{sT} offen sc1\ns_waitcnt vmcnt(0)\nv_cmp_ne_u32 vcc, s{sN}, v11\ns_cbranch_vccz {Ld}')
            A(f's_add_u32 s{sCNT}, s{sCNT}, 1\ns_cmp_lt_u32 s{sCNT}, {SPIN}\ns_cbranch_scc1 {L}')
            A.label(Ld)
    A(f's_mov_b64 exec, 0xff\nv_mov_b32 v10, s{sN}\nv_mov_b32 v11, s{sN}\nv_mov_b32 v12, s{sN}\nv_mov_b32 v13, s{sN}\ns_mov_b32 s{sT}, {WS_EPOCH}')
    A(f'buffer_store_dwordx4 v[10:13], v{vL16}, {sr(S_WS,4)}, s{sT} offen sc1\ns_mov_b64 exec, -1')
    A.label(Lx)
    prof_flush(S_WS,sW)
    A('s_endpgm')

def f32(x):
    import struct
    return '0x%08x'%struct.unpack('<I',struct.pack('<f',x))[0]
import math
aU=8; aWS=12; aOUT=16
aRE=40
aDS=56
aG=20; aTB=21; aAI=22; aWv=23; aC=24; aHF=25; aT=26; aT2=27; aWB=28; aSH=29; aLD=30; aCNT=67
KT_W=16880; KT_R=528
LA_UIMG=0; LA_T2=8192
LA_UC=67520; UC_S=4576; UPAD=480
LA_T=76672; T_S=2624
LA_C=16384; C_CH=16640; C_M=4160
LA_UIMG2=0; LA_YIMG=8192
LA_EX=16384; LA_Y=32768
XB=2047
def a_flag_store(base):
    L=A.newlabel('Lafs')
    A(f's_cmp_lg_u32 s{aWv}, 0\ns_cbranch_scc1 {L}')
    A(f's_lshl_b32 s{aT}, s{aAI}, 7\ns_add_u32 s{aT}, s{aT}, {base}\nv_mov_b32 v10, s{sN}\nv_mov_b32 v11, s{sN}\nv_mov_b32 v12, s{sN}\nv_mov_b32 v13, s{sN}\ns_mov_b64 exec, 0xff')
    A(f'buffer_store_dwordx4 v[10:13], v9, {sr(aWS,4)}, s{aT} offen sc1\ns_mov_b64 exec, -1\ns_nop 1')
    A.label(L)
def a_flag_poll(base):
    L=A.newlabel('Lafp'); Ld=A.newlabel('Lafd')
    A(f's_cmp_lg_u32 s{aWv}, 0\ns_cbranch_scc1 {Ld}')
    A(f's_lshl_b32 s{aT}, s{aG}, 12\ns_add_u32 s{aT}, s{aT}, {base}\nv_lshlrev_b32 v2, 7, v0\ns_mov_b32 s{aCNT}, 0\ns_mov_b32 exec_hi, 0')
    A.label(L)
    A(f'buffer_load_dword v3, v2, {sr(aWS,4)}, s{aT} offen sc1\ns_waitcnt vmcnt(0)')
    A(f'v_cmp_ne_u32 vcc, s{sN}, v3\ns_cbranch_vccz {Ld}')
    A(f's_sleep 2\ns_add_u32 s{aCNT}, s{aCNT}, 1\ns_cmp_lt_u32 s{aCNT}, {SPIN}\ns_cbranch_scc1 {L}')
    A.label(Ld)
    A('s_mov_b64 exec, -1\ns_waitcnt lgkmcnt(0)\ns_barrier')
    A.vm=[]

def gen_A():
    A.label('L_A')
    A.vm=[]
    if ASTOP==9:
        A('s_sleep 127\ns_sleep 127\ns_sleep 127\ns_endpgm'); return
    if '--aprio' in sys.argv: A('s_setprio 3')
    stamp('A start')
    A('s_load_dwordx16 s[40:55], s[0:1], 0\ns_load_dwordx2 s[56:57], s[0:1], 64\ns_load_dwordx2 s[58:59], s[0:1], 104\ns_load_dwordx2 s[60:61], s[0:1], 120')
    A(f'v_lshrrev_b32 v1, 6, v0\nv_and_b32 v0, 63, v0\ns_nop 0\nv_readfirstlane_b32 s{aWv}, v1')
    A((f's_and_b32 s{aT}, s2, 7\ns_cmp_eq_u32 s{aT}, 7\ns_cbranch_scc1 L_exit\ns_lshl_b32 s{aT}, s{aT}, 5\ns_lshr_b32 s{aAI}, s2, 3\ns_add_u32 s{aAI}, s{aAI}, s{aT}\n' if LOC else f's_mov_b32 s{aAI}, s2\n')+f's_lshr_b32 s{aG}, s{aAI}, 5\ns_and_b32 s{aTB}, s{aAI}, 31\nv_lshlrev_b32 v9, 4, v0\nv_lshrrev_b32 v2, 3, v0\nv_and_b32 v3, 7, v0\nv_lshlrev_b32 v3, 4, v3')
    A(f's_lshr_b32 s{aC}, s{aWv}, 1\ns_and_b32 s{aHF}, s{aWv}, 1\ns_lshl_b32 s{aWB}, s{aWv}, 11\ns_lshl_b32 s{aT}, s{aWv}, 4\nv_add_u32 v2, s{aT}, v2')
    A('v_mul_u32_u24 v4, 896, v2\nv_add_u32 v4, v4, v3')
    A('v_lshlrev_b32 v5, 7, v2\nv_add_u32 v5, v5, v3')
    sUT=31
    A(f's_mul_i32 s{sUT}, s{aTB}, 57344\ns_lshl_b32 s{aT}, s{aG}, 7\ns_add_u32 s{sUT}, s{sUT}, s{aT}')
    A(f's_lshl_b32 s{aT}, s{aAI}, 1\ns_add_u32 s{aT}, s{aT}, s{aC}\ns_lshl_b32 s{aT}, s{aT}, 9\ns_lshl_b32 s{aT2}, s{aHF}, 8\ns_add_u32 s{aT}, s{aT}, s{aT2}\nv_lshlrev_b32 v6, 2, v0\nv_add_u32 v6, s{aT}, v6')
    A('s_waitcnt lgkmcnt(0)')
    srd(aU,40,1835008)
    for j in range(2):
        A(f's_add_u32 m0, s{aWB}, {LA_UIMG+j*1024}\ns_add_u32 s{aT}, s{sUT}, {j*7168}')
        A.vm_op(f'buffer_load_dwordx4 v4, {sr(aU,4)}, s{aT} offen lds',tag='ut')
    for k in range(6):
        A.vm_op(f'global_load_dword v{32+k}, v6, s[{42+2*k}:{43+2*k}]',tag='par')
    A('s_getpc_b64 s[64:65]')
    A.label('L_pc')
    A('s_add_u32 s64, s64, L_tab-L_pc\ns_addc_u32 s65, s65, 0')
    A(f's_lshl_b32 s{aT}, s{aWv}, 6\nv_add_u32 v10, s{aT}, v0\nv_lshlrev_b32 v11, 4, v10\nv_lshlrev_b32 v10, 3, v10\nv_add_u32 v10, {256*16}, v10')
    A.vm_op('global_load_dwordx4 v[172:175], v11, s[64:65]',tag='tab'); A.vm_op('global_load_dwordx2 v[176:177], v10, s[64:65]',tag='tab')
    srd(aWS,60,WS_SIZE); srd(aOUT,58,3670016)
    A(f's_load_dword s{sN}, s[60:61], {WS_EPOCH}')
    A(f's_lshl_b32 s{aT}, s{aAI}, 2\ns_add_u32 s54, s54, s{aT}\ns_addc_u32 s55, s55, 0\ns_load_dword s{aLD}, s[54:55], 0')
    A('v_mov_b32 v10, -1\nv_mov_b32 v11, -1\nv_mov_b32 v12, -1\nv_mov_b32 v13, -1')
    if LOC: A(f's_and_b32 s34, s{aAI}, 31\ns_lshl_b32 s34, s34, 3\ns_add_u32 s34, s34, s{aG}')
    else: A(f's_mov_b32 s34, s{aAI}')
    Lc=A.newlabel('Lclr')
    def clears():
        A.label(Lc)
        if not NOCLR:
            if LOC: A('s_lshr_b32 s35, s34, 3\ns_and_b32 s36, s34, 7')
            else: A(f's_and_b32 s35, s34, 7\ns_lshl_b32 s35, s35, 2\ns_lshr_b32 s36, s34, 3\ns_and_b32 s36, s36, 3\ns_add_u32 s35, s35, s36\ns_lshr_b32 s36, s34, 5')
            A(f's_lshl_b32 s37, s36, 5\ns_add_u32 s37, s37, s35\ns_mul_i32 s37, s37, {PSTR}\ns_add_u32 s37, s37, s{aWB}\ns_add_u32 s37, s37, {WS_PART}')
            A(f'buffer_store_dwordx4 v[10:13], v9, {sr(aWS,4)}, s37 offen{LSC}\nbuffer_store_dwordx4 v[10:13], v9, {sr(aWS,4)}, s37 offen offset:1024{LSC}')
            Lr=A.newlabel('Lred')
            A(f's_cmp_lg_u32 s{aWv}, 0\ns_cbranch_scc1 {Lr}')
            A(f's_lshl_b32 s37, s36, 13\ns_lshl_b32 s38, s35, 8\ns_add_u32 s37, s37, s38\ns_add_u32 s37, s37, {WS_RED}\ns_mov_b64 exec, 0xffff')
            A(f'buffer_store_dwordx4 v[10:13], v9, {sr(aWS,4)}, s37 offen{LSC}\ns_mov_b64 exec, -1')
            A.label(Lr)
        if not LOC: A(f's_add_u32 s34, s34, 224\ns_cmp_lt_u32 s34, 256\ns_cbranch_scc1 {Lc}')
    A(f'v_lshrrev_b32 v7, 4, v0\nv_lshlrev_b32 v7, 3, v7\nv_bfe_u32 v8, v0, 2, 2\nv_add_u32 v7, v7, v8\nv_lshlrev_b32 v7, 7, v7\nv_and_b32 v8, 3, v0\nv_lshlrev_b32 v8, 3, v8\nv_add_u32 v7, v7, v8\ns_lshl_b32 s{aT}, s{aWv}, 5\nv_add_u32 v7, s{aT}, v7')
    A(f'v_and_b32 v8, 15, v0\ns_lshl_b32 s{aT}, s{aWv}, 4\nv_add_u32 v8, s{aT}, v8\nv_mul_u32_u24 v8, 144, v8\nv_lshrrev_b32 v14, 4, v0\nv_lshlrev_b32 v14, 4, v14\nv_add_u32 v8, v8, v14')
    A('v_mul_u32_u24 v14, 144, v2\nv_add_u32 v14, v14, v3')
    sTT=63
    A(f's_mul_i32 s{sTT}, s{aAI}, {TSTR}')
    A(f's_mul_i32 s{aT}, s{aWv}, {KT_W}\nv_lshlrev_b32 v57, 3, v0\nv_add_u32 v57, s{aT}, v57')
    A(f'v_and_b32 v58, 31, v0\nv_mul_u32_u24 v58, {KT_R}, v58\nv_lshrrev_b32 v59, 5, v0\nv_lshlrev_b32 v59, 4, v59\nv_add_u32 v58, v58, v59\nv_add_u32 v58, s{aT}, v58')
    A(f'v_mul_u32_u24 v1, {T_S}, v0\nv_add_u32 v1, {LA_T+2600}, v1\nv_mov_b32 v14, 0\ns_mov_b64 exec, 3\nds_write_b32 v1, v14\ns_mov_b64 exec, -1')
    A('v_mul_u32_u24 v14, 144, v2\nv_add_u32 v14, v14, v3')
    A.vm_wait('par')
    A('s_barrier')
    for it in range(2):
        A(f'ds_read_b64_tr_b16 {vr(64+4*it,2)}, v7 offset:{LA_UIMG+it*4096}\nds_read_b64_tr_b16 {vr(66+4*it,2)}, v7 offset:{LA_UIMG+it*4096+512}')
    A('s_waitcnt lgkmcnt(0)')
    for it in range(2): A(f'ds_write_b128 v8, {vr(64+4*it,4)} offset:{LA_T2+64*it}')
    for j in range(2): A(f'ds_read_b128 {vr(72+4*j,4)}, v14 offset:{LA_T2+j*8*144}')
    A('s_waitcnt lgkmcnt(0)')
    for j in range(2):
        A(f's_add_u32 s{aT}, s{sTT}, {WS_UT+j*1024}')
        A.vm_op(f'buffer_store_dwordx4 {vr(72+4*j,4)}, v5, {sr(aWS,4)}, s{aT} offen'+LSC,tag='uts')
    clears()
    stamp('A uT stored')
    if '--aprio' in sys.argv: A('s_setprio 0')
    A(f's_lshl_b32 s{aT}, s{aC}, 4\ns_lshr_b32 s{aLD}, s{aLD}, s{aT}\ns_lshl_b32 s{aLD}, s{aLD}, 16')
    A(f'v_mov_b32 v14, s{aLD}\nv_mul_f32 v14, {hex(LOG2E)}, v14\nv_exp_f32 v14, v14\ns_nop 0\nv_cvt_pk_bf16_f32 v14, v14, v14\nv_lshlrev_b32 v15, 16, v14')
    BS=[192,224]
    for st in range(2):
        B_=BS[st]
        for k in range(6):
            if st==0: A(f'v_lshlrev_b32 v{B_+k}, 16, v{32+k}')
            else: A(f'v_and_b32 v{B_+k}, 0xffff0000, v{32+k}')
        for k in range(4): A(f'v_mul_f32 v{B_+k}, v15, v{B_+k}')
    for st in range(2):
        B_=BS[st]
        A(f'v_mul_f32 v60, v{B_+5}, v{B_+3}\nv_mul_f32 v61, v{B_+5}, v{B_+2}\nv_fma_f32 v{B_+6}, v{B_+4}, v{B_+2}, -v60\nv_fma_f32 v{B_+7}, -v{B_+4}, v{B_+3}, -v61')
    for off,k,conj in ((10,8,False),(8,1,True),(12,256,True)):
        for st in range(2):
            B_=BS[st]; t=60+2*st
            A(f'v_mul_f32 v{t}, {f32(k*math.log2(math.e))}, v{B_}\nv_mul_f32 v{t+1}, {f32(k/(2*math.pi))}, v{B_+1}')
        for st in range(2):
            t=60+2*st
            A(f'v_exp_f32 v{t}, v{t}\nv_fract_f32 v{t+1}, v{t+1}')
        for st in range(2):
            B_=BS[st]; t=60+2*st
            A(f'v_cos_f32 v{B_+off}, v{t+1}\nv_sin_f32 v{B_+off+1}, v{t+1}')
        for st in range(2):
            B_=BS[st]; t=60+2*st
            A(f'v_mul_f32 v{B_+off}, v{t}, v{B_+off}')
            A(f'v_mul_f32 v{B_+off+1}, v{t}, v{B_+off+1}' if not conj else f'v_mul_f32_e64 v{B_+off+1}, -v{t}, v{B_+off+1}')
    def cm2(d,z,m):
        for st in range(2):
            B_=BS[st]
            A(f'v_mul_f32 v{B_+30}, v{B_+z+1}, v{B_+m+1}\nv_mul_f32 v{B_+d+1}, v{B_+z+1}, v{B_+m}')
        for st in range(2):
            B_=BS[st]
            A(f'v_fmac_f32 v{B_+d+1}, v{B_+z}, v{B_+m+1}\nv_fma_f32 v{B_+d}, v{B_+z}, v{B_+m}, -v{B_+30}')
    cm2(14,12,12)
    cm2(16,14,14)
    A.vm_drain()
    A('s_barrier')
    A(f's_add_u32 s{sN}, s{sN}, {NONCE_C}')
    a_flag_store(WS_FLAGA1)
    stamp('A flag1 set')
    if ASTOP==1:
        prof_flush(aWS,aWv,256); A('s_endpgm'); return
    rot=[0]
    WT=[40,42,44,46,48,50,52,54]
    def wr2(offs,row):
        t=WT[rot[0]%len(WT)]; rot[0]+=1
        A(f'v_cvt_pk_bf16_f32 v{t}, v{BS[0]+offs}, v{BS[0]+offs+1}\nv_cvt_pk_bf16_f32 v{t+1}, v{BS[1]+offs}, v{BS[1]+offs+1}')
        A(f'ds_write_b64 v57, {vr(t,2)} offset:{row*KT_R}')
    A('v_mov_b32 v54, 0x3f80\nv_mov_b32 v55, 0x3f80\nds_write_b64 v57, v[54:55] offset:0')
    wr2(10,1)
    cm2(18,10,10); wr2(18,2)
    for j in range(3,32):
        cm2(18,18,10); wr2(18,j)
    A('s_waitcnt lgkmcnt(0)')
    for kk in range(16): A(f'ds_read_b128 {vr(64+4*kk,4)}, v58 offset:{32*kk}')
    stamp('A E done')
    if ASTOP==2:
        prof_flush(aWS,aWv,256); A('s_endpgm'); return
    A('s_waitcnt lgkmcnt(0)')
    wr2(6,0)
    cm2(18,6,8); wr2(18,1)
    cm2(20,18,8); wr2(20,2)
    cm2(18,20,8); wr2(18,3)
    cm2(22,18,8); wr2(22,4)
    cm2(18,22,8); wr2(18,5)
    cm2(24,18,8); wr2(24,6)
    cm2(18,24,8); wr2(18,7)
    for r,src in enumerate((6,20,22,24)):
        cm2(18,src,12); wr2(18,8+r)
    cm2(26,6,14); wr2(26,12)
    cm2(28,22,14); wr2(28,13)
    cm2(26,26,12); wr2(26,14)
    cm2(28,28,12); wr2(28,15)
    cm2(18,6,16); wr2(18,16)
    for r in range(17,21):
        cm2(18,18,12); wr2(18,r)
    a_flag_poll(WS_FLAGA1)
    A(f'v_lshrrev_b32 v2, 3, v0\nv_mul_u32_u24 v2, {TSTR}, v2\nv_and_b32 v3, 7, v0\nv_lshlrev_b32 v3, 4, v3\nv_add_u32 v60, v2, v3')
    A(f's_lshl_b32 s{aT}, s{aG}, 5\ns_lshl_b32 s{aT2}, s{aHF}, 4\ns_add_u32 s{aT}, s{aT}, s{aT2}\ns_mul_i32 s{aT}, s{aT}, {TSTR}')
    A(f's_lshl_b32 s{aT2}, s{aAI}, 1\ns_add_u32 s{aT2}, s{aT2}, s{aC}\ns_and_b32 s{aT2}, s{aT2}, 63\ns_lshl_b32 s{aT2}, s{aT2}, 7\ns_add_u32 s62, s{aT}, s{aT2}')
    A(f's_mul_i32 s35, s{aC}, {UC_S}\ns_lshl_b32 s{aT2}, s{aHF}, 11\ns_add_u32 s35, s35, s{aT2}\ns_add_u32 s35, s35, {LA_UC+UPAD}')
    for j in range(2):
        A(f's_add_u32 m0, s35, {j*1024}\ns_add_u32 s{aT}, s62, {WS_UT+j*8*TSTR}')
        A.vm_op(f'buffer_load_dwordx4 v60, {sr(aWS,4)}, s{aT} offen sc1 lds',tag='uc')
    A('v_mov_b32 v10, 0\nv_mov_b32 v11, 0\nv_mov_b32 v12, 0\nv_mov_b32 v13, 0')
    A(f's_mul_i32 s{aT}, s{aC}, {UC_S}\ns_add_u32 s{aT}, s{aT}, {LA_UC}\nv_add_u32 v2, s{aT}, v9\ns_mov_b32 exec_lo, 0x3fffffff\ns_mov_b32 exec_hi, 0\nds_write_b128 v2, v[10:13]\ns_mov_b64 exec, -1')
    A('s_waitcnt lgkmcnt(0)')
    for g in range(4):
        for k in range(4): A(f'ds_read_b128 {vr(128+16*(g&1)+4*k,4)}, v58 offset:{32*(4*g+k)}')
        if g>=1:
            for k in range(4):
                kk=4*(g-1)+k
                A(f's_waitcnt lgkmcnt({7-k})')
                A(f'v_mfma_f32_32x32x16_bf16 v[16:31], {vr(128+16*((g-1)&1)+4*k,4)}, {vr(64+4*kk,4)}, '+('0' if kk==0 else 'v[16:31]'))
    for k in range(4):
        kk=12+k
        A(f's_waitcnt lgkmcnt({3-k})')
        A(f'v_mfma_f32_32x32x16_bf16 v[16:31], {vr(128+16+4*k,4)}, {vr(64+4*kk,4)}, v[16:31]')
    A.vm_wait('tab')
    A(f'v_mov_b32 v1, {LA_T}')
    for i in range(11):
        r=172+i//2 if i<8 else 176+(i-8)//2
        A(f'v_add_u32_sdwa v{160+i}, v1, v{r} dst_sel:DWORD dst_unused:UNUSED_PAD src0_sel:DWORD src1_sel:WORD_{i%2}')
    A(f's_mul_i32 s{aT}, s{aC}, {T_S}\ns_add_u32 s{aT}, s{aT}, {LA_T}')
    A('v_and_b32 v3, 31, v0\nv_lshrrev_b32 v4, 5, v0\nv_cmp_eq_u32 vcc, 1, v4')
    A(f'v_lshlrev_b32 v10, 5, v3\nv_lshlrev_b32 v6, 4, v4\nv_add_u32 v10, v10, v6\nv_add_u32 v10, s{aT}, v10')
    A('v_lshlrev_b32 v6, 4, v3\nv_add_u32 v6, 1024, v6\nv_lshlrev_b32 v7, 3, v3\nv_add_u32 v7, 1536, v7\nv_cndmask_b32 v6, v6, v7, vcc')
    A('v_add_u32 v7, 8, v6\nv_add_u32 v8, 256, v6\nv_cndmask_b32 v7, v7, v8, vcc')
    A(f'v_add_u32 v6, s{aT}, v6\nv_add_u32 v7, s{aT}, v7')
    A('v_lshlrev_b32 v8, 2, v3\nv_add_u32 v8, 2048, v8\nv_mov_b32 v14, 2560\nv_cndmask_b32 v8, v8, v14, vcc')
    A(f'v_add_u32 v8, s{aT}, v8')
    A(f'v_lshrrev_b32 v3, 3, v0\ns_lshl_b32 s{aT}, s{aWv}, 4\nv_add_u32 v3, s{aT}, v3\nv_and_b32 v4, 7, v0\nv_lshlrev_b32 v4, 4, v4')
    A('v_mul_u32_u24 v5, 896, v3\nv_add_u32 v5, v5, v4\nv_lshlrev_b32 v61, 7, v3\nv_add_u32 v61, v61, v4')
    A.nop(2)
    stamp('A kgen done')
    A(f's_mul_i32 s{aT}, s{aWv}, {KT_W}\nv_add_u32 v2, s{aT}, v9\ns_xor_b32 s{aT}, s{aWv}, 1\ns_mul_i32 s{aT}, s{aT}, {KT_W}\nv_add_u32 v12, s{aT}, v9')
    Lh1=A.newlabel('Lkh1'); Lh2=A.newlabel('Lkh2')
    A(f's_cmp_lg_u32 s{aHF}, 0\ns_cbranch_scc1 {Lh1}')
    A('ds_write_b128 v2, v[24:27]\ns_waitcnt lgkmcnt(0)\ns_barrier')
    A('ds_read_b128 v[64:67], v12\nds_read_b128 v[68:71], v12 offset:1024\ns_waitcnt lgkmcnt(0)')
    for k in range(8): A(f'v_add_f32 v{16+k}, v{16+k}, v{64+k}')
    A('ds_write_b128 v10, v[16:19]\nds_write_b64 v6, v[20:21]\nds_write_b64 v7, v[22:23]')
    A(f's_branch {Lh2}')
    A.label(Lh1)
    A('ds_write_b128 v2, v[16:19]\nds_write_b128 v2, v[20:23] offset:1024\ns_waitcnt lgkmcnt(0)\ns_barrier')
    A('ds_read_b128 v[64:67], v12\ns_waitcnt lgkmcnt(0)')
    A('v_add_f32 v24, v24, v64\nv_add_f32 v25, v25, v65\nv_add_f32 v26, v26, v66\nv_add_f32 v27, v27, v67')
    A('s_mov_b32 exec_hi, 1\nds_write_b32 v8, v24\ns_mov_b32 exec_hi, 0')
    A('ds_write_b32 v8, v25 offset:128\nds_write_b32 v8, v26 offset:256\nds_write_b32 v8, v27 offset:384\ns_mov_b32 exec_hi, -1')
    A.label(Lh2)
    A(f's_lshl_b32 s{aT}, s{aWv}, 6\nv_add_u32 v2, s{aT}, v0\nv_lshlrev_b32 v4, 4, v2')
    A('s_waitcnt lgkmcnt(0)')
    stamp('A adds done')
    A('s_barrier')
    for c in range(2):
        for i in range(11): A(f'ds_read_b32 v{64+16*c+i}, v{160+i} offset:{c*T_S}')
    for j in range(2):
        A(f's_add_u32 m0, s{aWB}, {LA_UIMG2+j*1024}\ns_add_u32 s{aT}, s{sUT}, {j*7168}')
        A.vm_op(f'buffer_load_dwordx4 v5, {sr(aU,4)}, s{aT} offen lds',tag='ut2')
    A(f'v_lshrrev_b32 v6, 4, v0\nv_lshlrev_b32 v6, 4, v6\ns_lshl_b32 s{aT}, s{aG}, 7\nv_add_u32 v6, s{aT}, v6')
    A.vm_op('global_load_dwordx4 v[184:187], v6, s[56:57]',tag='d'); A.vm_op('global_load_dwordx4 v[188:191], v6, s[56:57] offset:64',tag='d')
    A(f'v_lshrrev_b32 v7, 1, v0\nv_and_b32 v8, 3, v7\nv_mul_u32_u24 v8, {C_M}, v8\nv_lshrrev_b32 v7, 2, v7\nv_mul_u32_u24 v7, {C_CH}, v7\nv_add_u32 v8, v8, v7\nv_and_b32 v7, 1, v0\nv_lshlrev_b32 v7, 4, v7\nv_add_u32 v8, v8, v7')
    A('v_mov_b32 v10, 0\nv_mov_b32 v11, 0\nv_mov_b32 v12, 0\nv_mov_b32 v13, 0\ns_mov_b64 exec, 0xffff')
    A(f'ds_write_b128 v8, v[10:13] offset:{LA_C+4096}\ns_mov_b64 exec, -1')
    for c in range(2):
        A(f's_waitcnt lgkmcnt({12 if c==0 else 4})')
        g=64+16*c
        for m in range(4):
            for d in range(4): A(f'v_cvt_pk_bf16_f32 v{96+4*m+d}, v{g+m+2*d}, v{g+m+2*d+1}')
        for m in range(4): A(f'ds_write_b128 v4, {vr(96+4*m,4)} offset:{LA_C+c*C_CH+m*C_M}')
    stamp('A copies issued')
    A('v_and_b32 v2, 15, v0\nv_lshrrev_b32 v3, 4, v0\nv_and_b32 v5, 1, v3\nv_lshrrev_b32 v6, 1, v3')
    A(f'v_sub_u32 v7, 3, v2\nv_and_b32 v7, 3, v7')
    A(f'v_lshlrev_b32 v8, 4, v6\nv_add_u32 v8, v8, v2\nv_lshlrev_b32 v14, 3, v5\nv_sub_u32 v8, v8, v14\nv_add_u32 v8, v8, v7')
    A(f'v_sub_u32 v8, {XB}, v8\nv_lshlrev_b32 v8, 1, v8\nv_mul_u32_u24 v14, {C_M}, v7\nv_add_u32 v8, v8, v14')
    A(f's_mul_i32 s{aT}, s{aC}, {C_CH}\ns_lshl_b32 s{aT2}, s{aHF}, 8\ns_sub_u32 s{aT}, s{aT}, s{aT2}\ns_add_u32 s{aT}, s{aT}, {LA_C-64*59}\nv_add_u32 v48, s{aT}, v8')
    A('v_lshlrev_b32 v7, 4, v5\nv_lshlrev_b32 v8, 5, v6\nv_sub_u32 v7, v7, v8\nv_lshlrev_b32 v14, 5, v2\nv_add_u32 v14, v14, v7')
    A(f's_mul_i32 s{aT}, s{aC}, {UC_S}\ns_sub_u32 s{aT}, s{aT}, s{aT2}\ns_add_u32 s{aT}, s{aT}, {LA_UC+UPAD-192}\nv_add_u32 v56, s{aT}, v14')
    A.vm_wait('uc',' lgkmcnt(0)')
    A('s_barrier')
    stamp('A conv start')
    AB=[64,128]; BB=[96,192]
    def rdconv(rr):
        s_=rr&1
        for w in range(8): A(f'ds_read_b128 {vr(BB[s_]+4*w,4)}, v56 offset:{512*w+64*(3-rr)}')
        for q in range(8):
            o=64*(59-(8*q+rr))
            A(f'ds_read_b64 {vr(AB[s_]+4*q,2)}, v48 offset:{o}\nds_read_b64 {vr(AB[s_]+4*q+2,2)}, v48 offset:{o+8}')
    def rdlist(rr):
        s_=rr&1; L=[]
        for w in range(8): L.append(f'ds_read_b128 {vr(BB[s_]+4*w,4)}, v56 offset:{512*w+64*(3-rr)}')
        for q in range(8):
            o=64*(59-(8*q+rr))
            L.append(f'ds_read_b64 {vr(AB[s_]+4*q,2)}, v48 offset:{o}'); L.append(f'ds_read_b64 {vr(AB[s_]+4*q+2,2)}, v48 offset:{o+8}')
        return L
    for x in rdlist(0): A(x)
    for rr in range(4):
        s_=rr&1
        A('s_waitcnt lgkmcnt(0)')
        nxt=rdlist(rr+1) if rr<3 else []
        n=0
        for q in range(8):
            for w in range(8-q):
                t=q+w
                cin='0' if (rr==0 and q==0) else vr(16+4*t,4)
                A(f'v_mfma_f32_16x16x32_bf16 {vr(16+4*t,4)}, {vr(AB[s_]+4*q,4)}, {vr(BB[s_]+4*w,4)}, {cin}')
                n+=1
                if nxt and n>=2: A(nxt.pop(0))
        assert not nxt
    stamp('A conv done')
    A('s_barrier')
    A(f's_lshl_b32 s{aT}, s{aWv}, 12\ns_add_u32 s{aT}, s{aT}, {LA_EX}\nv_add_u32 v2, s{aT}, v9')
    A(f's_xor_b32 s{aT}, s{aWv}, 1\ns_lshl_b32 s{aT}, s{aT}, 12\ns_add_u32 s{aT}, s{aT}, {LA_EX}\nv_add_u32 v5, s{aT}, v9')
    A(f'v_and_b32 v3, 15, v0\nv_lshlrev_b32 v3, 5, v3\nv_lshrrev_b32 v4, 4, v0\nv_lshlrev_b32 v4, 3, v4\nv_add_u32 v3, v3, v4\ns_add_u32 s{aT}, s{aWB}, {LA_Y}\nv_add_u32 v3, s{aT}, v3\nv_add_u32 v4, s{aT}, v9')
    L1=A.newlabel('Lcx'); L2=A.newlabel('Lcy')
    def fin(keep,send):
        for k in range(4): A(f'ds_write_b128 v2, {vr(send+4*k,4)} offset:{k*1024}')
        A('s_waitcnt lgkmcnt(0)\ns_barrier')
        for k in range(4): A(f'ds_read_b128 {vr(64+4*k,4)}, v5 offset:{k*1024}')
        A('s_waitcnt lgkmcnt(0)')
        for k in range(16): A(f'v_add_f32 v{keep+k}, v{keep+k}, v{64+k}')
        for k in range(8): A(f'v_cvt_pk_bf16_f32 v{64+k}, v{keep+2*k}, v{keep+1+2*k}')
    A(f's_cmp_lg_u32 s{aHF}, 0\ns_cbranch_scc1 {L1}')
    fin(16,32)
    A(f's_branch {L2}')
    A.label(L1)
    fin(32,16)
    A.label(L2)
    for k in range(4): A(f'ds_write_b64 v3, {vr(64+2*k,2)} offset:{512*k}')
    A('ds_read_b128 v[72:75], v4\nds_read_b128 v[76:79], v4 offset:1024')
    A(f's_add_u32 s{aT}, s62, {WS_YT}\ns_add_u32 s{aT2}, s62, {WS_YT+8*TSTR}')
    A('s_waitcnt lgkmcnt(0)')
    A.vm_op(f'buffer_store_dwordx4 v[72:75], v60, {sr(aWS,4)}, s{aT} offen'+LSC,tag='ys')
    A.vm_op(f'buffer_store_dwordx4 v[76:79], v60, {sr(aWS,4)}, s{aT2} offen'+LSC,tag='ys')
    A(f'v_lshrrev_b32 v7, 4, v0\nv_lshlrev_b32 v7, 3, v7\nv_bfe_u32 v8, v0, 2, 2\nv_add_u32 v7, v7, v8\nv_lshlrev_b32 v7, 7, v7\nv_and_b32 v8, 3, v0\nv_lshlrev_b32 v8, 3, v8\nv_add_u32 v7, v7, v8\ns_lshl_b32 s{aT}, s{aWv}, 5\nv_add_u32 v7, s{aT}, v7')
    A(f'v_and_b32 v8, 15, v0\ns_lshl_b32 s{aT}, s{aWv}, 4\nv_add_u32 v8, s{aT}, v8\nv_lshlrev_b32 v14, 7, v8\nv_lshrrev_b32 v6, 4, v0\nv_lshlrev_b32 v6, 4, v6\nv_add_u32 v14, v14, v6')
    A(f's_lshl_b32 s{aT}, s{aTB}, 6\nv_add_u32 v8, s{aT}, v8\nv_mul_u32_u24 v8, 1792, v8\nv_add_u32 v8, v8, v6\ns_lshl_b32 s34, s{aG}, 7')
    A.vm_wait('d')
    for it in range(2):
        for k in range(4):
            A(f'v_lshlrev_b32 v{192+8*it+2*k}, 16, v{184+4*it+k}\nv_and_b32 v{193+8*it+2*k}, 0xffff0000, v{184+4*it+k}')
    A.vm_drain()
    A('s_barrier')
    a_flag_store(WS_FLAGA2)
    stamp('A flag2 set')
    for it in range(2): A(f'ds_read_b128 {vr(72+4*it,4)}, v14 offset:{LA_UIMG2+64*it}')
    A('s_waitcnt lgkmcnt(0)')
    for it in range(2):
        for k in range(4):
            A(f'v_lshlrev_b32 v{208+8*it+2*k}, 16, v{72+4*it+k}\nv_and_b32 v{209+8*it+2*k}, 0xffff0000, v{72+4*it+k}')
    for k in range(16): A(f'v_mul_f32 v{208+k}, v{208+k}, v{192+k}')
    a_flag_poll(WS_FLAGA2)
    stamp('A flag2 seen')
    for j in range(2):
        A(f's_add_u32 m0, s{aWB}, {LA_YIMG+j*1024}\ns_add_u32 s{aT}, s{sTT}, {WS_YT+j*1024}')
        A.vm_op(f'buffer_load_dwordx4 v61, {sr(aWS,4)}, s{aT} offen sc1 lds',tag='yt')
    A.vm_drain()
    A('s_barrier')
    for it in range(2):
        A(f'ds_read_b64_tr_b16 {vr(64+4*it,2)}, v7 offset:{LA_YIMG+it*4096}\nds_read_b64_tr_b16 {vr(66+4*it,2)}, v7 offset:{LA_YIMG+it*4096+512}')
    for it in range(2):
        A(f's_waitcnt lgkmcnt({2*(1-it)})')
        for k in range(4):
            y=64+4*it+k
            A(f'v_lshlrev_b32 v96, 16, v{y}\nv_and_b32 v97, 0xffff0000, v{y}')
            A(f'v_add_f32 v96, v96, v{208+8*it+2*k}\nv_add_f32 v97, v97, v{209+8*it+2*k}')
            A(f'v_cvt_pk_bf16_f32 v{104+4*it+k}, v96, v97')
        A(f'buffer_store_dwordx4 {vr(104+4*it,4)}, v8, {sr(aOUT,4)}, s34 offen offset:{64*it}')
    stamp('A end')
    prof_flush(aWS,aWv,256)
    A('s_endpgm')

def main():
    hdr=f'''; S4 conv (A) + hedgehog linear attention (B), single launch, 256 B-workgroups + 224 A-workgroups
; @launch grid=({NB+NA},1,1) block=(256,1,1) lds={LDS_BYTES}
.amdgcn_target "amdgcn-amd-amdhsa--gfx950"
.text
.globl {KN}
.p2align 8
.type {KN},@function
{KN}:
'''
    if '--pf' in sys.argv:
        A('s_getpc_b64 s[4:5]')
        A.label('L_pf')
        A(f's_lshr_b32 s6, s2, 3\ns_and_b32 s6, s6, 31\ns_lshl_b32 s6, s6, 10\nv_and_b32 v1, 7, v0\nv_lshlrev_b32 v1, 7, v1\nv_add_u32 v1, s6, v1\nv_min_u32 v1, L_end-'+KN+'-4, v1')
        A('s_sub_u32 s4, s4, L_pf-'+KN+'\ns_subb_u32 s5, s5, 0')
        A(f's_cmp_ge_u32 s2, {NB+NA}\ns_cbranch_scc1 L_exit')
        A('v_cmp_gt_u32 vcc, 8, v0\ns_and_saveexec_b64 s[6:7], vcc\ns_cbranch_execz L_pfd\nglobal_load_dword v255, v1, s[4:5]')
        A.label('L_pfd')
        A('s_mov_b64 exec, -1')
    A(f's_cmp_ge_u32 s2, {NB+NA}\ns_cbranch_scc1 L_exit\ns_cmp_lt_u32 s2, {NA}\ns_cbranch_scc1 L_A\ns_sub_u32 s2, s2, {NA}')
    if NOB: A('s_endpgm')
    else: gen_B()
    if NOA: A.label('L_A'); A('s_endpgm')
    else: gen_A()
    A.label('L_exit'); A('s_endpgm')
    tail=f'''.section .rodata,"a"
.p2align 6
.amdhsa_kernel {KN}
  .amdhsa_next_free_vgpr 256
  .amdhsa_next_free_sgpr 102
  .amdhsa_accum_offset 256
  .amdhsa_group_segment_fixed_size 0
  .amdhsa_kernarg_size 128
  .amdhsa_user_sgpr_count 2
  .amdhsa_user_sgpr_kernarg_segment_ptr 1
  .amdhsa_system_sgpr_workgroup_id_x 1
.end_amdhsa_kernel
'''
    body=A.text()
    data=''
    if not NOA:
        import numpy as np
        def idx(l):
            if l<0 or l>2047: return 650
            u=np.array([float(l)],np.float32).view(np.uint32)[0]
            bits=int((int(u)+0x7FFF+((int(u)>>16)&1))>>16)
            return l if l<128 else bits-17024
        t4=[];t2=[]
        for t in range(256):
            g=[4*idx(2047-8*t-i) for i in range(11)]+[0]
            t4+=g[:8]; t2+=g[8:12]
        data='.p2align 4\nL_tab:\n'
        for arr in (t4,t2):
            for i in range(0,len(arr),16): data+='  .short '+', '.join(str(x) for x in arr[i:i+16])+'\n'
    data+='L_end:\n'
    open(OUTF,'w').write(hdr+body+data+tail)
    import subprocess
    r=subprocess.run(['clang','-x','assembler','-target','amdgcn-amd-amdhsa','-mcpu=gfx950','-c',OUTF,'-o','chk.o'],capture_output=True,text=True)
    if r.returncode: print('ASM ERRORS:\n'+r.stderr[:3000])
    errs=lint.lint(body)
    for e in errs: print('LINT',e)
    print('wrote',OUTF,len(body.split(chr(10))),'lines;',len(errs),'lint findings')
main()
```

```python
import sys
from asmlib import Asm, vr, sr
import lint
KN='concat_heads__ssm_conv_s4__linear_kernel_hedgehog__prompt_kernel'
PROF = '--prof' in sys.argv
NOA  = '--noA' in sys.argv
NOB  = '--noB' in sys.argv
NOCLR = '--noclr' in sys.argv
KST = '--kst' in sys.argv
PST = '--pst' in sys.argv
OSC = ' sc1' if '--osc1' in sys.argv else (' nt' if '--ont' in sys.argv else '')
PSL = int([a.split('=')[1] for a in sys.argv if a.startswith('--psl=')][0]) if any(a.startswith('--psl=') for a in sys.argv) else 0
KDMA = '--kdma' in sys.argv
LOC = '--loc' in sys.argv
LSC = '' if LOC else ' sc1'
BPRIO = [int(a.split('=')[1]) for a in sys.argv if a.startswith('--bprio=')]
BPRIO = BPRIO[0] if BPRIO else 2
BPRIO0 = [int(a.split('=')[1]) for a in sys.argv if a.startswith('--bprio0=')]
BPRIO0 = BPRIO0[0] if BPRIO0 else BPRIO
AP1 = [int(a.split('=')[1]) for a in sys.argv if a.startswith('--ap1=')]
AP1 = AP1[0] if AP1 else 0
AP2 = [int(a.split('=')[1]) for a in sys.argv if a.startswith('--ap2=')]
AP2 = AP2[0] if AP2 else AP1
KDEPTH = [int(a.split('=')[1]) for a in sys.argv if a.startswith('--kd=')]
KDEPTH = KDEPTH[0] if KDEPTH else 3
ASTOP = [int(a.split('=')[1]) for a in sys.argv if a.startswith('--astop=')]
ASTOP = ASTOP[0] if ASTOP else 99
OUTF = [a for a in sys.argv[1:] if not a.startswith('--')]
OUTF = OUTF[0] if OUTF else 'out.s'

WS_EPOCH=0; WS_FLAGA1=0x10000; WS_FLAGA2=0x20000; WS_FLAGB2=0x30000
PSTR=8448; TSTR=8448
WS_PART=0x100000; WS_OBUF=WS_PART+256*PSTR; WS_RED=WS_OBUF+0x200000; CLR_KB=(256*PSTR+0x200000+0x10000)//1024
WS_UT=0x600000; WS_YT=0x800000; WS_PROF=0xA00000
WS_SIZE=0xC00000
NONCE_C=0x9E3779B9
LDS_BYTES=81920
NB=256; NA=256 if '--loc' in sys.argv else 224
SPIN=20000 if '--shortspin' not in sys.argv else 20
LOG2E=0x3fb8aa3b

A=Asm()
prof_n=[0]
def stamp(name):
    if not PROF: return
    i=prof_n[0]; prof_n[0]+=1
    if PST and i>=12 : prof_n[0]-=1; return
    assert i<16, name
    A(f's_memrealtime s[{70+2*i}:{71+2*i}]')
    A.c('stamp %d %s'%(i,name))
def cstamp(name):
    if not PROF: return
    i=prof_n[0]; prof_n[0]+=1
    assert i<16, name
    A(f's_memtime s[{70+2*i}:{71+2*i}]')
    A.c('stamp %d %s'%(i,name))
def prof_flush(srd_ws, wavereg, add=0):
    if not PROF: return
    n=prof_n[0]; prof_n[0]=0
    A('s_waitcnt lgkmcnt(0) vmcnt(0)')
    A(f's_add_u32 s68, s2, {add}\ns_lshl_b32 s68, s68, 2\ns_add_u32 s68, s68, s{wavereg}\ns_lshl_b32 s68, s68, 7\ns_add_u32 s68, s68, {WS_PROF}')
    A('v_mov_b32 v10, 0')
    for i in range(n):
        A(f'v_writelane_b32 v10, s{70+2*i}, {i}')
    A('v_lshlrev_b32 v11, 2, v0\ns_mov_b64 exec, 0xffff')
    A(f'buffer_store_dword v10, v11, {sr(srd_ws,4)}, s68 offen')
    A('s_mov_b64 exec, -1')

def srd(dst, base, nrec):
    A(f's_mov_b32 s{dst}, s{base}\ns_and_b32 s{dst+1}, s{base+1}, 0xffff')
    if isinstance(nrec,int): A(f's_mov_b32 s{dst+2}, {nrec}')
    else: A(f's_mov_b32 s{dst+2}, {nrec}')
    A(f's_mov_b32 s{dst+3}, 0x20000')

S_X=8; S_W=12; S_WO=16; S_WP=20; S_WS=24; S_OUT=28
sN=32; sW=33; sRT=34; sA=35; sRB=36; sP=37; sT=38; sT2=39
sWB=48
sP112=49
sCP=50
sHI=58
sLO=60
sC2=62
sPART=64; sOB=65; sRED=66; sCNT=67
vXA0=1; vXA1=2; vWA=3; vXR=4; vWR=8; vL16=9
vT=10
accA=16; accB=32; wf=48; wpf=64; EP=72; EN=88; PK=104; vU=120
XF=128
SLOT=8192; NSLOT=7
L_PHI=57344; PHI_H=8704
L_WP=L_PHI
L_KVF=L_PHI

def dma(voff, srdb, soff, ldsbase_imm):
    A(f's_add_u32 m0, s{sWB}, {ldsbase_imm}')
    return f'buffer_load_dwordx4 v{voff}, {sr(srdb,4)}, s{soff} offen lds'

def slotaddr(u):
    if KDMA: return (u%7)*8192
    if u<14: return ((u//2)&1)*16384 + (u&1)*8192
    c=(u-14)%7
    return 32768+c*8192 if c<3 else (c-3)*8192
def w_soff(c,sec,j):
    A(f's_mul_i32 s{sT}, s{sCP+c}, 172032')
    A(f's_add_u32 s{sT}, s{sT}, s{sP112}')
    A(f's_add_u32 s{sT}, s{sT}, {sec*896+j*21504}')
def issue_reg(c):
    for j in range(2):
        A(f's_lshl_b32 s{sT}, s{sCP+c}, 7')
        A.vm_op(f'buffer_load_dwordx4 {vr(XF+16*c+4*j,4)}, v{vXA0+j}, {sr(S_X,4)}, s{sT} offen', tag=('k',c))
    for j in range(2):
        w_soff(c,1,j)
        A.vm_op(f'buffer_load_dwordx4 {vr(XF+16*c+8+4*j,4)}, v{vWA}, {sr(S_W,4)}, s{sT} offen', tag=('k',c))
def write_k(c,vLW):
    b=(c&1)*16384
    for j in range(2):
        A(f'ds_write_b128 v{vLW}, {vr(XF+16*c+4*j,4)} offset:{b+j*1024}')
        A(f'ds_write_b128 v{vLW}, {vr(XF+16*c+8+4*j,4)} offset:{b+8192+j*1024}')
def issue_unit(u):
    slot=slotaddr(u)
    if u<14:
        c=u//2
        for j in range(2):
            A(f's_add_u32 m0, s{sWB}, {slot+j*1024}')
            if u&1:
                w_soff(c,1,j)
                A.vm_op(f'buffer_load_dwordx4 v{vWA}, {sr(S_W,4)}, s{sT} offen lds', tag=('u',u))
            else:
                A(f's_lshl_b32 s{sT}, s{sCP+c}, 7')
                A.vm_op(f'buffer_load_dwordx4 v{vXA0+j}, {sr(S_X,4)}, s{sT} offen lds', tag=('u',u))
        return
    c=(u-14)%7; sec=2 if u<21 else 0
    for j in range(2):
        A(f's_add_u32 m0, s{sWB}, {slot+j*1024}')
        w_soff(c,sec,j)
        A.vm_op(f'buffer_load_dwordx4 v{vWA}, {sr(S_W,4)}, s{sT} offen lds', tag=('u',u))

def read_wfrags(u):
    slot=slotaddr(u)
    for kk in range(4):
        A(f'ds_read_b64_tr_b16 {vr(wf+4*kk,2)}, v{vWR} offset:{slot+2048*kk}')
        A(f'ds_read_b64_tr_b16 {vr(wf+4*kk+2,2)}, v{vWR} offset:{slot+2048*kk+512}')

def softmax(D, tagname, mid=None):
    t=vT
    u=vU
    A.c('softmax '+tagname)
    for r in range(12,16): A(f'v_cndmask_b32 v{D+r}, v{D+r}, v{D}, {sr(sHI,2)}')
    for op,o in (('v_max3_f32',0),('v_min3_f32',4)):
        A(f'{op} v{u+o}, v{D}, v{D+1}, v{D+2}')
        A(f'{op} v{u+o+1}, v{D+3}, v{D+4}, v{D+5}')
        A(f'{op} v{u+o+2}, v{D+6}, v{D+7}, v{D+8}')
        A(f'{op} v{u+o+3}, v{D+9}, v{D+10}, v{D+11}')
    for op,o in (('v_max3_f32',0),('v_min3_f32',4)):
        A(f'{op} v{u+o}, v{u+o}, v{D+12}, v{D+13}')
        A(f'{op} v{u+o+1}, v{u+o+1}, v{D+14}, v{D+15}')
    for op,op2,o in (('v_max3_f32','v_max_f32',0),('v_min3_f32','v_min_f32',4)):
        A(f'{op} v{u+o}, v{u+o}, v{u+o+1}, v{u+o+2}')
    A(f'v_max_f32 v{u}, v{u}, v{u+3}\nv_min_f32 v{u+4}, v{u+4}, v{u+7}')
    A(f'v_mov_b32 v{u+1}, v{u}\nv_mov_b32 v{u+5}, v{u+4}\ns_nop 1')
    A(f'v_permlane32_swap_b32 v{u}, v{u+1}\nv_permlane32_swap_b32 v{u+4}, v{u+5}')
    A(f'v_max_f32 v{u}, v{u}, v{u+1}\nv_min_f32 v{u+4}, v{u+4}, v{u+5}')
    A(f'v_mul_f32 v{t}, s{sC2}, v{u}\nv_mul_f32 v{t+2}, s{sC2}, v{u+4}')
    for r in range(12):
        A(f'v_fma_f32 v{EP+r}, v{D+r}, s{sC2}, -v{t}')
        A(f'v_fma_f32 v{EN+r}, -v{D+r}, s{sC2}, v{t+2}')
    for k in range(4):
        A(f'v_fma_f32 v{u+k}, v{D+12+k}, s{sC2}, -v{t}')
        A(f'v_fma_f32 v{u+4+k}, -v{D+12+k}, s{sC2}, v{t+2}')
    for r in range(12):
        A(f'v_exp_f32 v{EP+r}, v{EP+r}\nv_exp_f32 v{EN+r}, v{EN+r}')
    A(f's_mov_b64 exec, {sr(sLO,2)}')
    for k in range(4):
        A(f'v_exp_f32 v{EP+12+k}, v{u+k}\nv_exp_f32 v{EN+12+k}, v{u+4+k}')
    A('s_mov_b64 exec, -1')
    if mid: mid()
    for k in range(4):
        A(f'v_add_f32 v{u+k}, v{EP+k}, v{EP+4+k}\nv_add_f32 v{u+4+k}, v{EN+k}, v{EN+4+k}')
    for k in range(4):
        A(f'v_add_f32 v{u+k}, v{u+k}, v{EP+8+k}\nv_add_f32 v{u+4+k}, v{u+4+k}, v{EN+8+k}')
    for k in range(4):
        A(f'v_add_f32 v{u+k}, v{u+k}, v{EP+12+k}\nv_add_f32 v{u+4+k}, v{u+4+k}, v{EN+12+k}')
    A(f'v_add_f32 v{u}, v{u}, v{u+1}\nv_add_f32 v{u+4}, v{u+4}, v{u+5}\nv_add_f32 v{u+2}, v{u+2}, v{u+3}\nv_add_f32 v{u+6}, v{u+6}, v{u+7}')
    A(f'v_add_f32 v{u}, v{u}, v{u+2}\nv_add_f32 v{u+4}, v{u+4}, v{u+6}')
    A(f'v_mov_b32 v{u+1}, v{u}\nv_mov_b32 v{u+5}, v{u+4}\ns_nop 1')
    A(f'v_permlane32_swap_b32 v{u}, v{u+1}\nv_permlane32_swap_b32 v{u+4}, v{u+5}')
    A(f'v_add_f32 v{u}, v{u}, v{u+1}\nv_add_f32 v{u+4}, v{u+4}, v{u+5}')
    A(f'v_rcp_f32 v{u}, v{u}\nv_rcp_f32 v{u+4}, v{u+4}\ns_nop 0')
    for r in range(16):
        A(f'v_mul_f32 v{EP+r}, v{u}, v{EP+r}\nv_mul_f32 v{EN+r}, v{u+4}, v{EN+r}')
    for r in range(0,16,2):
        A(f'v_cvt_pk_bf16_f32 v{PK+r//2}, v{EP+r}, v{EP+r+1}')
        A(f'v_cvt_pk_bf16_f32 v{PK+8+r//2}, v{EN+r}, v{EN+r+1}')

def pack_and_phi(acc):
    for r in range(0,16,2):
        A(f'v_cvt_pk_bf16_f32 v{wf+r//2}, v{acc+r}, v{acc+r+1}')
    A(f'v_cndmask_b32 v{wf+6}, v{wf+6}, 0, {sr(sHI,2)}' .replace(', 0, ',', v15, ') )
    A(f'v_cndmask_b32 v{wf+7}, v{wf+7}, v15, {sr(sHI,2)}')
    A('s_nop 1')
    A(f'v_mfma_f32_32x32x16_bf16 {vr(acc,16)}, {vr(wpf,4)}, {vr(wf,4)}, 0')
    A(f'v_mfma_f32_32x32x16_bf16 {vr(acc,16)}, {vr(wpf+4,4)}, {vr(wf+4,4)}, {vr(acc,16)}')
    A.nop(16)

def poll_flags_all(nflags_bytes, base, reg, srd_ws, name):
    L=A.newlabel('Lpf'); Ld=A.newlabel('Lpfd')
    A(f's_mov_b32 s{sCNT}, 0\ns_mov_b32 s{sT}, {base}')
    A.label(L)
    A(f'buffer_load_dwordx4 {vr(reg,4)}, v{vL16}, {sr(srd_ws,4)}, s{sT} offen sc1')
    A('s_waitcnt vmcnt(0)')
    A(f'v_xor_b32 v{reg}, s{sN}, v{reg}\nv_xor_b32 v{reg+1}, s{sN}, v{reg+1}\nv_xor_b32 v{reg+2}, s{sN}, v{reg+2}\nv_xor_b32 v{reg+3}, s{sN}, v{reg+3}')
    A(f'v_or3_b32 v{reg}, v{reg}, v{reg+1}, v{reg+2}\nv_or_b32 v{reg}, v{reg}, v{reg+3}')
    A(f'v_cmp_ne_u32 vcc, 0, v{reg}')
    A(f's_cbranch_vccz {Ld}')
    A(f's_add_u32 s{sCNT}, s{sCNT}, 1\ns_cmp_lt_u32 s{sCNT}, {SPIN}\ns_cbranch_scc1 {L}')
    A.label(Ld)
    A.vm=[]

def chk_flags(reg,addr,base,srd_ws):
    Ld=A.newlabel('Lcf'); L=A.newlabel('Lcfp')
    A(f's_mov_b32 s{sCNT}, 0\ns_mov_b32 s{sT}, {base}')
    A.label(L)
    A(f'v_cmp_ne_u32 vcc, s{sN}, v{reg}')
    A(f's_cbranch_vccz {Ld}')
    A(f's_sleep 4\nbuffer_load_dword v{reg}, v{addr}, {sr(srd_ws,4)}, s{sT} offen sc1\ns_waitcnt vmcnt(0)')
    A(f's_add_u32 s{sCNT}, s{sCNT}, 1\ns_cmp_lt_u32 s{sCNT}, {SPIN}\ns_cbranch_scc1 {L}')
    A.label(Ld)

def gen_B():
    A.label('L_B')
    A(f's_setprio {BPRIO0}')
    stamp('B start')
    A(f's_load_dwordx4 s[4:7], s[0:1], 72\ns_load_dwordx4 s[40:43], s[0:1], 88\ns_load_dwordx2 s[44:45], s[0:1], 104\ns_load_dwordx2 s[46:47], s[0:1], 120')
    A(f'v_lshrrev_b32 v10, 6, v0\nv_and_b32 v0, 63, v0\ns_nop 0\nv_readfirstlane_b32 s{sW}, v10')
    if LOC: A(f's_and_b32 s{sP}, s2, 7\ns_lshr_b32 s{sRB}, s2, 3\ns_and_b32 s{sT2}, s{sRB}, 3')
    else: A(f's_and_b32 s{sT}, s2, 7\ns_lshl_b32 s{sT}, s{sT}, 2\ns_lshr_b32 s{sT2}, s2, 3\ns_and_b32 s{sT2}, s{sT2}, 3\ns_add_u32 s{sRB}, s{sT}, s{sT2}\ns_lshr_b32 s{sP}, s2, 5')
    A(f's_lshr_b32 s{sRT}, s{sW}, 1\ns_and_b32 s{sA}, s{sW}, 1\ns_lshl_b32 s{sWB}, s{sW}, 11\ns_mul_i32 s{sP112}, s{sP}, 112')
    if LOC:
        A(f's_mul_i32 s{sT}, s{sRB}, 37\ns_lshr_b32 s{sT}, s{sT}, 8\ns_mul_i32 s{sT}, s{sT}, 7\ns_sub_u32 s{sCP}, s{sRB}, s{sT}')
    else:
        A(f's_lshl_b32 s{sT2}, s{sT2}, 1\ns_add_u32 s{sT}, s{sP}, s{sT2}')
        A(f's_cmp_ge_u32 s{sT}, 7\ns_cselect_b32 s{sT2}, 7, 0\ns_sub_u32 s{sCP}, s{sT}, s{sT2}')
    for c in range(1,7):
        A(f's_add_u32 s{sT}, s{sCP+c-1}, 1\ns_cmp_ge_u32 s{sT}, 7\ns_cselect_b32 s{sCP+c}, 0, s{sT}')
    A(f's_mov_b32 s{sHI}, 0\ns_mov_b32 s{sHI+1}, -1\ns_mov_b32 s{sLO}, -1\ns_mov_b32 s{sLO+1}, 0')
    A(f's_mov_b32 s{sC2}, {LOG2E}\ns_mov_b32 s{sC2+1}, {LOG2E}')
    A(f'v_lshlrev_b32 v{vL16}, 4, v0')
    A(f'v_lshrrev_b32 v10, 3, v0\nv_lshrrev_b32 v11, 4, v0\nv_and_b32 v12, 7, v0')
    A(f's_lshl_b32 s{sT}, s{sW}, 4\nv_add_u32 v13, s{sT}, v10')
    A(f'v_xor_b32 v14, v12, v11\nv_lshlrev_b32 v14, 4, v14\nv_mul_u32_u24 v{vXA0}, 896, v13\nv_add_u32 v{vXA0}, v{vXA0}, v14')
    A(f'v_add_u32 v14, 4, v11\nv_xor_b32 v14, v12, v14\nv_lshlrev_b32 v14, 4, v14\nv_add_u32 v15, 8, v13\nv_mul_u32_u24 v{vXA1}, 896, v15\nv_add_u32 v{vXA1}, v{vXA1}, v14')
    A(f'v_and_b32 v14, 1, v11\nv_lshlrev_b32 v14, 2, v14\nv_xor_b32 v14, v12, v14\nv_lshrrev_b32 v15, 2, v14\nv_sub_u32 v14, v14, v15\nv_lshlrev_b32 v14, 4, v14')
    A(f'v_mul_u32_u24 v{vWA}, 2688, v13\nv_add_u32 v{vWA}, v{vWA}, v14')
    A('s_waitcnt lgkmcnt(0)')
    stamp('kernarg loaded')
    A(f's_mul_i32 s{sT}, s{sRB}, 57344\ns_add_u32 s4, s4, s{sT}\ns_addc_u32 s5, s5, 0')
    srd(S_X,4,57344); srd(S_W,6,1204224); srd(S_WO,42,401408); srd(S_WS,46,WS_SIZE); srd(S_OUT,44,3670016)
    A(f's_lshl_b32 s{sT}, s{sP}, 1\ns_add_u32 s{sT}, s{sT}, s{sA}\ns_mul_i32 s{sT}, s{sT}, 1568\ns_add_u32 s40, s40, s{sT}\ns_addc_u32 s41, s41, 0\ns_sub_u32 s{sT2}, 25088, s{sT}')
    srd(S_WP,40,f's{sT2}')
    A(f's_load_dword s{sN}, s[46:47], {WS_EPOCH}')
    A(f's_lshl_b32 s{sT}, s{sP}, 5\ns_add_u32 s{sT}, s{sT}, s{sRB}\ns_mul_i32 s{sPART}, s{sT}, {PSTR}\ns_add_u32 s{sPART}, s{sPART}, {WS_PART}')
    A(f's_lshl_b32 s{sRED}, s{sP}, 13\ns_add_u32 s{sRED}, s{sRED}, {WS_RED}')
    A(f's_lshl_b32 s{sT}, s{sRB}, 1\ns_add_u32 s{sT}, s{sT}, s{sRT}\ns_lshl_b32 s{sT}, s{sT}, 4\ns_lshl_b32 s{sT2}, s{sP}, 1\ns_add_u32 s{sT}, s{sT}, s{sT2}\ns_add_u32 s{sT}, s{sT}, s{sA}\ns_lshl_b32 s{sOB}, s{sT}, 11\ns_add_u32 s{sOB}, s{sOB}, {WS_OBUF}')
    if KDMA:
        for u in range(4): issue_unit(u)
    else:
        for c in range(KDEPTH):
            issue_reg(c)
            if PST and c in (0,1,2,3,6): stamp('chunk %d issued'%c)
    A(f's_lshl_b32 s{sT}, s{sA}, 12\ns_lshl_b32 s{sT2}, s{sRT}, 11\ns_add_u32 s{sT}, s{sT}, s{sT2}\ns_add_u32 s{sPART}, s{sPART}, s{sT}')
    A(f'v_and_b32 v10, 31, v0\nv_lshrrev_b32 v11, 5, v0\nv_lshrrev_b32 v12, 1, v10\nv_and_b32 v12, 7, v12')
    A(f's_lshl_b32 s{sT}, s{sRT}, 5\nv_add_u32 v13, s{sT}, v10\nv_lshlrev_b32 v13, 7, v13')
    for kk in range(4):
        A(f'v_add_u32 v14, {2*kk}, v11\nv_xor_b32 v14, v14, v12\nv_lshlrev_b32 v14, 4, v14\nv_add_u32 v{vXR+kk}, v13, v14')
    A(f'v_lshrrev_b32 v10, 4, v0\nv_and_b32 v10, 1, v10\nv_bfe_u32 v12, v0, 2, 2\nv_and_b32 v13, 3, v0')
    A(f'v_and_b32 v14, v13, v10\nv_lshrrev_b32 v15, 1, v13\nv_and_b32 v14, v14, v15\nv_sub_u32 v120, v13, v14')
    A(f'v_lshlrev_b32 v14, 3, v11\nv_add_u32 v14, v14, v12\nv_lshlrev_b32 v{vWR}, 7, v14')
    A(f'v_lshrrev_b32 v14, 1, v12\nv_xor_b32 v14, s{sA}, v14\nv_lshlrev_b32 v14, 6, v14\nv_add_u32 v{vWR}, v{vWR}, v14')
    A(f's_lshl_b32 s{sT}, s{sA}, 3\nv_lshlrev_b32 v14, 5, v10\nv_add_u32 v{vWR}, s{sT}, v{vWR}\nv_add_u32 v{vWR}, v{vWR}, v14\nv_lshlrev_b32 v14, 3, v120\nv_add_u32 v{vWR}, v{vWR}, v14')
    A(f'v_lshlrev_b32 v14, 2, v11\nv_add_u32 v14, v14, v12\nv_mul_u32_u24 v121, 56, v14\nv_lshlrev_b32 v14, 5, v10\nv_add_u32 v121, v121, v14\nv_lshlrev_b32 v14, 3, v13\nv_add_u32 v121, v121, v14\nv_add_u32 v121, s{sWB}, v121')
    A(f's_mul_i32 s{sT}, s{sA}, {PHI_H}\ns_add_u32 s{sT}, s{sT}, {L_PHI}')
    A(f'v_and_b32 v14, 31, v0\ns_lshl_b32 s{sT2}, s{sRT}, 5\nv_add_u32 v14, s{sT2}, v14\nv_mul_u32_u24 v122, 136, v14\nv_lshlrev_b32 v14, 3, v11\nv_add_u32 v122, v122, v14\nv_add_u32 v122, s{sT}, v122')
    A(f'v_lshlrev_b32 v14, 2, v11\nv_add_u32 v14, v14, v12\nv_mul_u32_u24 v123, 136, v14\nv_lshlrev_b32 v14, 5, v10\nv_add_u32 v123, v123, v14\nv_lshlrev_b32 v14, 3, v13\nv_add_u32 v123, v123, v14')
    A(f's_lshl_b32 s{sT2}, s{sRT}, 6\ns_add_u32 s{sT}, s{sT}, s{sT2}\nv_add_u32 v123, s{sT}, v123')
    vWPA=240; vPHW=241; vPHR=242; vFA=243; vFV=244; vF2A=4; vF2V=5; v1A=247; vSEL=248
    A(f'v_mov_b32 v{vWPA}, v121\nv_mov_b32 v{vPHW}, v122\nv_mov_b32 v{vPHR}, v123')
    A('v_mov_b32 v15, 0')
    for k in range(4): A(f'v_mov_b32 v{EP+12+k}, 0\nv_mov_b32 v{EN+12+k}, 0')
    if LOC:
        A(f'v_and_b32 v10, 31, v0\nv_lshlrev_b32 v11, 3, v10\nv_add_u32 v11, s{sP}, v11\nv_mov_b32 v12, v11')
    else:
        A(f'v_and_b32 v10, 31, v0\nv_lshrrev_b32 v11, 2, v10\nv_and_b32 v12, 3, v10\nv_lshlrev_b32 v12, 3, v12\nv_add_u32 v11, v11, v12\ns_lshl_b32 s{sT}, s{sP}, 5\nv_add_u32 v11, s{sT}, v11')
        A(f'v_and_b32 v12, 7, v0\nv_lshlrev_b32 v12, 5, v12\ns_and_b32 s{sT}, s2, 31\nv_add_u32 v12, s{sT}, v12')
    A(f'v_cndmask_b32 v11, v11, v12, {sr(sHI,2)}')
    A(f'v_subrev_u32 v12, 224, v11\nv_cmp_gt_u32 vcc, 224, v11\ns_nop 1\nv_cndmask_b32 v11, v12, v11, vcc\nv_lshlrev_b32 v{vFA}, 7, v11')
    A(f'v_lshrrev_b32 v10, 4, v0\nv_mul_u32_u24 v10, {PSTR}, v10\nv_and_b32 v11, 15, v0\nv_lshlrev_b32 v12, 4, v11\nv_add_u32 v{v1A}, v10, v12')
    A(f'v_and_b32 v12, 1, v11\nv_lshlrev_b32 v12, 4, v12\nv_mov_b32 v13, 0x3f80\nv_lshlrev_b32 v12, v12, v13\nv_lshrrev_b32 v11, 1, v11')
    for q in range(4):
        A(f'v_cmp_eq_u32 vcc, {q}, v11\ns_nop 1\nv_cndmask_b32 v{vSEL+q}, v15, v12, vcc')
    stamp('B prologue issued')
    BUF=[[wf,wf+4,wf+8,wf+12],[72,76,80,88]]
    def rd_unit(u,buf):
        slot=slotaddr(u)
        for kk in range(4):
            A(f'ds_read_b64_tr_b16 {vr(buf[kk],2)}, v{vWR} offset:{slot+2048*kk}')
            A(f'ds_read_b64_tr_b16 {vr(buf[kk]+2,2)}, v{vWR} offset:{slot+2048*kk+512}')
    def gemm_group(units,c0,acc,x_is_A,first,pre=None):
        rd_unit(units[0],BUF[0])
        if pre: pre()
        for i,u in enumerate(units):
            nxt = i+1<len(units)
            if nxt: rd_unit(units[i+1],BUF[(i+1)&1])
            c=c0+i
            for kk in range(4):
                extra = 8 if nxt else 0
                if i==0 and pre: extra += 0
                A(f's_waitcnt lgkmcnt({min(15,2*(3-kk)+extra)})')
                cin='0' if (first and i==0 and kk==0) else vr(acc,16)
                wfr=vr(BUF[i&1][kk],4); xfr=vr(XF+16*c+4*kk,4)
                A(f'v_mfma_f32_32x32x16_bf16 {vr(acc,16)}, '+(f'{xfr}, {wfr}' if x_is_A else f'{wfr}, {xfr}')+f', {cin}')
    if KDMA:
        for u in (4,5,6): issue_unit(u)
        for j in range(2):
            A(f's_add_u32 m0, s{sWB}, {L_WP+j*1024}\ns_mov_b32 s{sT}, {j*1024}')
            A.vm_op(f'buffer_load_dwordx4 v{vL16}, {sr(S_WP,4)}, s{sT} offen lds',tag='wp')
        for c in range(7):
            A.vm_wait(('u',2*c+1))
            A('s_barrier')
            if c>=1:
                issue_unit(2*c+5); issue_unit(2*c+6)
            sx=slotaddr(2*c)
            for kk in range(4):
                A(f'ds_read_b128 {vr(XF+16*c+4*kk,4)}, v{vXR+kk} offset:{sx}')
            read_wfrags(2*c+1)
            if c==4:
                for j in range(2):
                    A(f'ds_read_b64_tr_b16 {vr(wpf+4*j,2)}, v{vWPA} offset:{L_WP+896*j}')
                    A(f'ds_read_b64_tr_b16 {vr(wpf+4*j+2,2)}, v{vWPA} offset:{L_WP+896*j+448}')
            ex = 4 if c==4 else 0
            for kk in range(4):
                A(f's_waitcnt lgkmcnt({2*(3-kk)+ex})')
                cin = '0' if (c==0 and kk==0) else vr(accA,16)
                A(f'v_mfma_f32_32x32x16_bf16 {vr(accA,16)}, {vr(wf+4*kk,4)}, {vr(XF+16*c+4*kk,4)}, {cin}')
            if c==4:
                A('s_waitcnt lgkmcnt(0)')
                A(f'v_cndmask_b32 v{wpf+6}, v{wpf+6}, v15, {sr(sHI,2)}\nv_cndmask_b32 v{wpf+7}, v{wpf+7}, v15, {sr(sHI,2)}')
            if c==0: stamp('K0 done')
        A('s_barrier')
        A(f's_mov_b32 s{sT}, {WS_FLAGA1}')
        A.vm_op(f'buffer_load_dword v{vFV}, v{vFA}, {sr(S_WS,4)}, s{sT} offen sc1',tag='flagc')
        issue_unit(19); issue_unit(20)
    else:
        vLW=252
        A(f'v_add_u32 v{vLW}, s{sWB}, v{vL16}')
        A.vm_wait(('k',0))
        write_k(0,vLW)
        A('s_waitcnt lgkmcnt(0)\ns_barrier')
        vleft=[14,15,16]
        for c in range(7):
            sx=(c&1)*16384
            for kk in range(4):
                A(f'ds_read_b128 {vr(XF+16*c+4*kk,4)}, v{vXR+kk} offset:{sx}')
            read_wfrags(2*c+1)
            nw=0
            if c<6:
                A.vm_wait(('k',c+1))
                write_k(c+1,vLW); nw=4
            if c+KDEPTH<=6: issue_reg(c+KDEPTH)
            if c+KDEPTH==7:
                for j in range(2):
                    A(f's_add_u32 m0, s{sWB}, {L_WP+j*1024}\ns_mov_b32 s{sT}, {j*1024}')
                    A.vm_op(f'buffer_load_dwordx4 v{vL16}, {sr(S_WP,4)}, s{sT} offen lds',tag='wp')
            if c+KDEPTH>=7 and vleft: issue_unit(vleft.pop(0))
            if c==5:
                while vleft: issue_unit(vleft.pop(0))
            if c==6:
                A.vm_wait('wp')
                for j in range(2):
                    A(f'ds_read_b64_tr_b16 {vr(wpf+4*j,2)}, v{vWPA} offset:{L_WP+896*j}')
                    A(f'ds_read_b64_tr_b16 {vr(wpf+4*j+2,2)}, v{vWPA} offset:{L_WP+896*j+448}')
                nw+=4
            for kk in range(4):
                A(f's_waitcnt lgkmcnt({min(15,2*(3-kk)+nw)})')
                cin = '0' if (c==0 and kk==0) else vr(accA,16)
                A(f'v_mfma_f32_32x32x16_bf16 {vr(accA,16)}, {vr(wf+4*kk,4)}, {vr(XF+16*c+4*kk,4)}, {cin}')
            A('s_waitcnt lgkmcnt(0)')
            if c==6:
                A(f'v_cndmask_b32 v{wpf+6}, v{wpf+6}, v15, {sr(sHI,2)}\nv_cndmask_b32 v{wpf+7}, v{wpf+7}, v15, {sr(sHI,2)}')
            A('s_barrier')
            if c==0: stamp('K0 done')
        A(f's_mov_b32 s{sT}, {WS_FLAGA1}')
        A.vm_op(f'buffer_load_dword v{vFV}, v{vFA}, {sr(S_WS,4)}, s{sT} offen sc1',tag='flagc')
        for u in (17,18,19,20): issue_unit(u)
    stamp('K phase done')
    if BPRIO0!=BPRIO: A(f's_setprio {BPRIO}')
    A.nop(6)
    pack_and_phi(accA)
    softmax(accA,'k')
    for jj in range(4):
        A(f'ds_write_b64 v{vPHW}, {vr(PK+2*jj,2)} offset:{16*jj}')
        A(f'ds_write_b64 v{vPHW}, {vr(PK+8+2*jj,2)} offset:{64+16*jj}')
    stamp('softmax k done')
    AF=[PK,PK+4,PK+8,PK+12]
    A.vm_wait(('u',16),' lgkmcnt(0)')
    A('s_barrier')
    gemm_group([14,15,16],0,accB,True,True)
    for m in range(4):
        A(f'ds_read_b64_tr_b16 {vr(AF[m],2)}, v{vPHR} offset:{16*m*136}')
        A(f'ds_read_b64_tr_b16 {vr(AF[m]+2,2)}, v{vPHR} offset:{16*m*136+8*136}')
    A.vm_wait(('u',18),' lgkmcnt(0)')
    A('s_barrier')
    issue_unit(21); issue_unit(22); issue_unit(23)
    gemm_group([17,18],3,accB,True,False)
    A.vm_wait(('u',20))
    A('s_barrier')
    issue_unit(24); issue_unit(25)
    gemm_group([19,20],5,accB,True,False)
    stamp('V phase done')
    A(f'v_and_b32 v10, 31, v0\nv_cmp_eq_u32 vcc, 28, v10\nv_mov_b32 v11, 0x3f803f80')
    A(f'v_add_u32 v12, s{sWB}, v{vL16}\ns_xor_b32 s{sT}, s{sWB}, 4096\nv_add_u32 v13, s{sT}, v{vL16}')
    A(f's_waitcnt lgkmcnt(0)\ns_add_u32 s{sN}, s{sN}, {NONCE_C}')
    A.nop(6)
    for r in range(0,16,2):
        A(f'v_cvt_pk_bf16_f32 v{wf+r//2}, v{accB+r}, v{accB+r+1}')
    for k in range(8): A(f'v_cndmask_b32 v{wf+k}, v{wf+k}, v11, vcc')
    L_VX=slotaddr(19)
    A('s_barrier')
    A(f'ds_write_b128 v12, {vr(wf,4)} offset:{L_VX}\nds_write_b128 v12, {vr(wf+4,4)} offset:{L_VX+1024}')
    A('s_waitcnt lgkmcnt(0)\ns_barrier')
    A(f'ds_read_b128 {vr(wf+8,4)}, v13 offset:{L_VX}\nds_read_b128 {vr(wf+12,4)}, v13 offset:{L_VX+1024}')
    issue_unit(27)
    A.vm_wait('flagc')
    chk_flags(vFV,vFA,WS_FLAGA1,S_WS)
    Lr1=A.newlabel('Lrt1'); Lr2=A.newlabel('Lrtd')
    order0=[wf,wf+4,wf+8,wf+12]; order1=[wf+8,wf+12,wf,wf+4]
    A(f's_cmp_lg_u32 s{sRT}, 0\ns_cbranch_scc1 {Lr1}')
    for m in range(4):
        if m==2: A('s_waitcnt lgkmcnt(0)')
        A(f'v_mfma_f32_32x32x16_bf16 {vr(accA,16)}, {vr(AF[m],4)}, {vr(order0[m],4)}, '+('0' if m==0 else vr(accA,16)))
    A(f's_branch {Lr2}')
    A.label(Lr1)
    for n,m in enumerate((2,3,0,1)):
        if n==2: A('s_waitcnt lgkmcnt(0)')
        A(f'v_mfma_f32_32x32x16_bf16 {vr(accA,16)}, {vr(AF[m],4)}, {vr(order1[m],4)}, '+('0' if n==0 else vr(accA,16)))
    A.label(Lr2)
    A.nop(14)
    for r in range(0,16,2):
        A(f'v_cvt_pk_bf16_f32 v{72+r//2}, v{accA+r}, v{accA+r+1}')
    A.vm_op(f'buffer_store_dwordx4 v[72:75], v{vL16}, {sr(S_WS,4)}, s{sPART} offen'+LSC,tag='part')
    A.vm_op(f'buffer_store_dwordx4 v[76:79], v{vL16}, {sr(S_WS,4)}, s{sPART} offen offset:1024'+LSC,tag='part')
    stamp('partial published')
    if not NOCLR:
        A('v_mov_b32 v10, -1\nv_mov_b32 v11, -1\nv_mov_b32 v12, -1\nv_mov_b32 v13, -1')
        A.vm_op(f'buffer_store_dwordx4 v[10:13], v{vL16}, {sr(S_WS,4)}, s{sOB} offen sc1',tag='oclr')
        A.vm_op(f'buffer_store_dwordx4 v[10:13], v{vL16}, {sr(S_WS,4)}, s{sOB} offen offset:1024 sc1',tag='oclr')
    A.vm_wait(('u',25))
    A('s_barrier')
    issue_unit(26)
    gemm_group([21,22,23,24,25],0,accA,False,True)
    vWO=1; vWOR=2
    sWOB=41; sCOL=42; sACT=43
    A(f's_and_b32 s{sT}, s{sP}, 3\ns_lshl_b32 s45, s{sT}, 8\ns_lshl_b32 s{sT}, s{sT}, 7\ns_lshl_b32 s{sT2}, s{sW}, 5\ns_add_u32 s{sCOL}, s{sT}, s{sT2}')
    A(f's_cmp_lt_u32 s{sCOL}, 448\ns_cselect_b32 s{sACT}, 1, 0\ns_lshl_b32 s{sWOB}, s{sW}, 10')
    A(f'v_lshrrev_b32 v10, 4, v0\nv_mul_u32_u24 v{vWO}, 896, v10\nv_lshlrev_b32 v11, 2, v10\nv_and_b32 v12, 15, v0\nv_xor_b32 v11, v11, v12\nv_lshlrev_b32 v11, 4, v11\nv_add_u32 v{vWO}, v{vWO}, v11\nv_add_u32 v{vWO}, s45, v{vWO}')
    A(f'v_lshrrev_b32 v10, 5, v0\nv_lshlrev_b32 v10, 2, v10\nv_bfe_u32 v11, v0, 2, 2\nv_add_u32 v10, v10, v11\nv_lshlrev_b32 v10, 8, v10\nv_xor_b32 v11, s{sW}, v11\nv_lshlrev_b32 v11, 6, v11\nv_add_u32 v10, v10, v11')
    A(f'v_bfe_u32 v11, v0, 4, 1\nv_lshlrev_b32 v11, 5, v11\nv_add_u32 v10, v10, v11\nv_and_b32 v11, 3, v0\nv_lshlrev_b32 v11, 3, v11\nv_add_u32 v{vWOR}, v10, v11')
    A.vm_wait(('u',26))
    A('s_barrier')
    Lf2=A.newlabel('Lfb2')
    A(f's_cmp_lg_u32 s{sW}, 3\ns_cbranch_scc1 {Lf2}')
    A(f's_lshl_b32 s{sT}, s2, 7\ns_add_u32 s{sT}, s{sT}, {WS_FLAGB2}\nv_mov_b32 v10, s{sN}\nv_mov_b32 v11, s{sN}\nv_mov_b32 v12, s{sN}\nv_mov_b32 v13, s{sN}\ns_mov_b64 exec, 0xff')
    A(f'buffer_store_dwordx4 v[10:13], v{vL16}, {sr(S_WS,4)}, s{sT} offen sc1\ns_mov_b64 exec, -1\ns_nop 1')
    A.label(Lf2)
    LD=[32,36,40,44,104,108,112,116]
    def issue_1a():
        for m in range(8):
            A(f's_add_u32 s{sT}, s40, {m*4*PSTR}')
            A(f'buffer_load_dwordx4 {vr(LD[m],4)}, v{v1A}, {sr(S_WS,4)}, s{sT} offen sc1')
    L1i=A.newlabel('L1a_i')
    A(f's_cmp_lg_u32 s{sW}, 0\ns_cbranch_scc1 {L1i}')
    A(f's_mul_i32 s{sT}, s{sP}, {32*PSTR}\ns_lshl_b32 s{sT2}, s{sRB}, 8\ns_add_u32 s{sT}, s{sT}, s{sT2}\ns_add_u32 s40, s{sT}, {WS_PART}')
    issue_1a()
    A.label(L1i)
    gemm_group([26,27],5,accA,False,False)
    stamp('Q gemm done')
    A('s_waitcnt lgkmcnt(0)\ns_barrier')
    def wo_dma(row0,k0,k1):
        for k in range(k0,k1):
            A(f's_add_u32 m0, s{sWOB}, {k*4096}\ns_add_u32 s{sT}, s46, {(row0+16*k)*896}')
            A(f'buffer_load_dwordx4 v{vWO}, {sr(S_WO,4)}, s{sT} offen lds')
    def wo_frags(h0,h1,row0):
        for h in range(h0,h1):
            for j in range(2):
                b_=XF+8*h+4*j; o=(28*h-row0+16*j)*256
                if o+2048<65536:
                    A(f'ds_read_b64_tr_b16 {vr(b_,2)}, v{vWOR} offset:{o}\nds_read_b64_tr_b16 {vr(b_+2,2)}, v{vWOR} offset:{o+2048}')
                else:
                    A(f'ds_read_b64_tr_b16 {vr(b_,2)}, v6 offset:{o-32768}\nds_read_b64_tr_b16 {vr(b_+2,2)}, v6 offset:{o+2048-32768}')
    A(f's_mul_i32 s46, s{sW}, 3584\nv_add_u32 v6, 32768, v{vWOR}')
    A.nop(8)
    pack_and_phi(accA)
    L1a=A.newlabel('L1a_skip')
    A(f's_cmp_lg_u32 s{sW}, 0\ns_cbranch_scc1 {L1a}')
    A(f'v_and_b32 v10, 15, v0\nv_lshlrev_b32 v10, 4, v10\nv_lshrrev_b32 v11, 4, v0\nv_lshlrev_b32 v11, 3, v11\nv_add_u32 v10, v10, v11')
    A(f's_lshl_b32 s47, s{sRB}, 8\ns_add_u32 s47, s47, s{sRED}\ns_mov_b32 s{sCNT}, 0')
    Lp=A.newlabel('L1a_poll'); Lpd=A.newlabel('L1a_done')
    A.label(Lp)
    for m in range(8):
        A(f's_waitcnt vmcnt({7-m})')
        A(f'v_mfma_f32_16x16x32_bf16 v[48:51], {vr(vSEL,4)}, {vr(LD[m],4)}, '+('0' if m==0 else 'v[48:51]'))
    A.nop(8)
    A(f'v_cmp_u_f32 vcc, v48, v48\ns_cbranch_vccz {Lpd}')
    if PSL: A(f's_sleep {PSL}')
    issue_1a()
    A(f's_add_u32 s{sCNT}, s{sCNT}, 1\ns_cmp_lt_u32 s{sCNT}, {SPIN}\ns_cbranch_scc1 {Lp}')
    A('s_waitcnt vmcnt(0)')
    A.label(Lpd)
    A('v_cvt_pk_bf16_f32 v52, v48, v49\nv_cvt_pk_bf16_f32 v53, v50, v51')
    A(f's_mov_b64 exec, {sr(sLO,2)}')
    A(f'buffer_store_dwordx2 v[52:53], v10, {sr(S_WS,4)}, s47 offen'+LSC)
    A('s_mov_b64 exec, -1')
    A.label(L1a)
    stamp('1a done')
    wo_dma(0,0,7)
    softmax(accA,'q',mid=lambda: wo_dma(0,7,14))
    wo_dma(0,14,20)
    stamp('softmax q done')
    if LOC: A(f'v_and_b32 v12, 7, v0\ns_lshl_b32 s{sT}, s{sRB}, 3\nv_add_u32 v12, s{sT}, v12\nv_lshlrev_b32 v{vF2A}, 7, v12')
    else: A(f'v_and_b32 v12, 7, v0\nv_lshlrev_b32 v12, 5, v12\ns_and_b32 s{sT}, s2, 31\nv_add_u32 v12, s{sT}, v12\nv_lshlrev_b32 v{vF2A}, 7, v12')
    A(f's_mov_b32 s{sT}, {WS_FLAGB2}')
    A(f'buffer_load_dword v{vF2V}, v{vF2A}, {sr(S_WS,4)}, s{sT} offen sc1')
    Lp=A.newlabel('L1b_poll'); Lpd=A.newlabel('L1b_done')
    A(f's_lshl_b32 s{sT}, s{sA}, 12\ns_add_u32 s40, s{sT}, s{sRED}\ns_mov_b32 s{sCNT}, 0')
    A.label(Lp)
    for m in range(4):
        A(f'buffer_load_dwordx4 {vr(32+4*m,4)}, v{vL16}, {sr(S_WS,4)}, s40 offen offset:{m*1024} sc1')
    A('s_waitcnt vmcnt(0)')
    A('v_max3_u32 v10, v32, v33, v34')
    for k in range(35,47,2): A(f'v_max3_u32 v10, v10, v{k}, v{k+1}')
    A('v_max_u32 v10, v10, v47\nv_cmp_eq_u32 vcc, -1, v10')
    A(f's_cbranch_vccz {Lpd}')
    if PSL: A(f's_sleep {PSL}')
    A(f's_add_u32 s{sCNT}, s{sCNT}, 1\ns_cmp_lt_u32 s{sCNT}, {SPIN}\ns_cbranch_scc1 {Lp}')
    A.label(Lpd)
    A.vm=[]
    stamp('1b done')
    for m in range(4):
        A(f'v_mfma_f32_32x32x16_bf16 {vr(accA,16)}, {vr(32+4*m,4)}, {vr(PK+4*m,4)}, '+('0' if m==0 else vr(accA,16)))
    A.nop(16)
    A(f'v_mov_b32 v10, v{accA+12}\nv_mov_b32 v11, v{accA+12}\ns_nop 1\nv_permlane32_swap_b32 v10, v11')
    A('v_add_f32 v11, 0x358637bd, v11\nv_rcp_f32 v12, v11\ns_nop 0')
    for r in range(16):
        A(f'v_mul_f32 v{accA+r}, v12, v{accA+r}')
    for r in range(0,16,2):
        A(f'v_cvt_pk_bf16_f32 v{48+r//2}, v{accA+r}, v{accA+r+1}')
    A(f'v_cndmask_b32 v54, v54, v15, {sr(sHI,2)}\nv_cndmask_b32 v55, v55, v15, {sr(sHI,2)}')
    A.vm_op(f'buffer_store_dwordx4 v[48:51], v{vL16}, {sr(S_WS,4)}, s{sOB} offen sc1',tag='o')
    A.vm_op(f'buffer_store_dwordx4 v[52:55], v{vL16}, {sr(S_WS,4)}, s{sOB} offen offset:1024 sc1',tag='o')
    stamp('o published')
    A(f's_lshl_b32 s{sT}, s{sRB}, 1\ns_lshr_b32 s{sT2}, s{sP}, 2\ns_add_u32 s{sT}, s{sT}, s{sT2}\ns_mov_b32 s44, s{sT}\ns_lshl_b32 s{sT}, s{sT}, 15\ns_lshl_b32 s{sT2}, s{sW}, 13\ns_add_u32 s{sT}, s{sT}, s{sT2}\ns_add_u32 s40, s{sT}, {WS_OBUF}')
    A('s_barrier')
    Lw2=A.newlabel('Lwo2')
    A(f's_cmp_eq_u32 s{sACT}, 0\ns_cbranch_scc1 {Lw2}')
    wo_frags(0,11,0)
    A.label(Lw2)
    A('s_waitcnt lgkmcnt(0)\ns_barrier')
    NB4=int([a.split('=')[1] for a in sys.argv if a.startswith('--nb4=')][0]) if any(a.startswith('--nb4=') for a in sys.argv) else 5
    wo_dma(308,0,NB4)
    A(f's_waitcnt vmcnt({NB4})')
    chk_flags(vF2V,vF2A,WS_FLAGB2,S_WS)
    def issue_h2():
        for m in range(8):
            A(f's_add_u32 s{sT}, s40, {(m//4)*4096}')
            A(f'buffer_load_dwordx4 {vr(72+4*m,4)}, v{vL16}, {sr(S_WS,4)}, s{sT} offen offset:{(m%4)*1024} sc1')
    issue_h2()
    wo_dma(308,NB4,9)
    L_O=36864; L_OUT=69632
    A(f's_lshl_b32 s{sT}, s{sW}, 13\ns_add_u32 s{sT}, s{sT}, {L_O}\nv_add_u32 v7, s{sT}, v{vL16}\nv_add_u32 v8, {L_O}, v{vL16}')
    Lp=A.newlabel('Lh2_poll'); Lpd=A.newlabel('Lh2_done')
    A(f's_mov_b32 s{sCNT}, 0')
    A.label(Lp)
    A('s_waitcnt vmcnt(0)')
    A('v_max3_u32 v10, v72, v73, v74')
    for k in range(75,103,2): A(f'v_max3_u32 v10, v10, v{k}, v{k+1}')
    A('v_max_u32 v10, v10, v103\nv_cmp_eq_u32 vcc, -1, v10')
    A(f's_cbranch_vccz {Lpd}')
    if PSL: A(f's_sleep {PSL}')
    issue_h2()
    A(f's_add_u32 s{sCNT}, s{sCNT}, 1\ns_cmp_lt_u32 s{sCNT}, {SPIN}\ns_cbranch_scc1 {Lp}')
    A('s_waitcnt vmcnt(0)')
    A.label(Lpd)
    stamp('hop2 loaded')
    for m in range(8): A(f'ds_write_b128 v7, {vr(72+4*m,4)} offset:{m*1024}')
    A('s_waitcnt lgkmcnt(0)\ns_barrier')
    Le=A.newlabel('LB_s3skip')
    A(f's_cmp_eq_u32 s{sACT}, 0\ns_cbranch_scc1 {Le}')
    wo_frags(11,16,308)
    OB=[[32,36,40,44],[48,52,56,60]]
    def rdo(g):
        for m in range(4): A(f'ds_read_b128 {vr(OB[g&1][m],4)}, v8 offset:{(g*4+m)*1024}')
    rdo(0)
    for g in range(8):
        if g+1<8: rdo(g+1)
        for m in range(4):
            f=g*4+m
            A(f's_waitcnt lgkmcnt({(3-m)+(4 if g+1<8 else 0)})')
            A(f'v_mfma_f32_32x32x16_bf16 {vr(accA,16)}, {vr(XF+4*f,4)}, {vr(OB[g&1][m],4)}, '+('0' if f==0 else vr(accA,16)))
    A(f'v_and_b32 v10, 31, v0\nv_mul_u32_u24 v10, 272, v10\nv_lshrrev_b32 v11, 5, v0\nv_lshlrev_b32 v11, 4, v11\nv_add_u32 v10, v10, v11\ns_lshl_b32 s{sT}, s{sW}, 6\ns_add_u32 s{sT}, s{sT}, {L_OUT}\nv_add_u32 v10, s{sT}, v10')
    A.nop(6)
    for r in range(0,16,2):
        A(f'v_cvt_pk_bf16_f32 v{64+r//2}, v{accA+r}, v{accA+r+1}')
    A('s_nop 1')
    A('v_permlane32_swap_b32 v64, v66\nv_permlane32_swap_b32 v65, v67\nv_permlane32_swap_b32 v68, v70\nv_permlane32_swap_b32 v69, v71')
    A('s_nop 0\nds_write_b128 v10, v[64:67]\nds_write_b128 v10, v[68:71] offset:32')
    A.label(Le)
    A(f'v_lshrrev_b32 v10, 4, v0\ns_lshl_b32 s{sT}, s{sW}, 3\nv_add_u32 v10, s{sT}, v10\nv_and_b32 v11, 15, v0\nv_lshlrev_b32 v11, 4, v11')
    A(f'v_mul_u32_u24 v12, 272, v10\nv_add_u32 v12, v12, v11\nv_add_u32 v12, {L_OUT}, v12')
    A(f's_lshl_b32 s{sT}, s44, 5\nv_add_u32 v10, s{sT}, v10\nv_mul_u32_u24 v10, 1792, v10\nv_add_u32 v10, v10, v11\ns_add_u32 s{sT}, s45, 896')
    A('s_waitcnt lgkmcnt(0)\ns_barrier')
    A('ds_read_b128 v[64:67], v12\nds_read_b128 v[68:71], v12 offset:1088')
    Lm=A.newlabel('Lmask')
    A(f's_cmp_lg_u32 s45, 768\ns_cbranch_scc1 {Lm}\ns_mov_b32 exec_lo, 0x00ff00ff\ns_mov_b32 exec_hi, 0x00ff00ff')
    A.label(Lm)
    A('s_waitcnt lgkmcnt(0)')
    A(f'buffer_store_dwordx4 v[64:67], v10, {sr(S_OUT,4)}, s{sT} offen'+OSC)
    A(f's_add_u32 s{sT}, s{sT}, {4*1792}')
    A(f'buffer_store_dwordx4 v[68:71], v10, {sr(S_OUT,4)}, s{sT} offen'+OSC+'\ns_mov_b64 exec, -1')
    stamp('B end')
    Lx=A.newlabel('LB_exit')
    A(f's_or_b32 s{sT}, s2, s{sW}\ns_cmp_lg_u32 s{sT}, 0\ns_cbranch_scc1 {Lx}')
    if not NOA:
        for k in range(4):
            L=A.newlabel('Lep'); Ld=A.newlabel('Lepd')
            A(f'v_lshlrev_b32 v10, 7, v0\ns_mov_b32 s{sT}, {WS_FLAGA1+k*64*128}\ns_mov_b32 s{sCNT}, 0')
            if k==3: A('s_mov_b32 exec_hi, 0')
            A.label(L)
            A(f'buffer_load_dword v11, v10, {sr(S_WS,4)}, s{sT} offen sc1\ns_waitcnt vmcnt(0)\nv_cmp_ne_u32 vcc, s{sN}, v11\ns_cbranch_vccz {Ld}')
            A(f's_add_u32 s{sCNT}, s{sCNT}, 1\ns_cmp_lt_u32 s{sCNT}, {SPIN}\ns_cbranch_scc1 {L}')
            A.label(Ld)
    A(f's_mov_b64 exec, 0xff\nv_mov_b32 v10, s{sN}\nv_mov_b32 v11, s{sN}\nv_mov_b32 v12, s{sN}\nv_mov_b32 v13, s{sN}\ns_mov_b32 s{sT}, {WS_EPOCH}')
    A(f'buffer_store_dwordx4 v[10:13], v{vL16}, {sr(S_WS,4)}, s{sT} offen sc1\ns_mov_b64 exec, -1')
    A.label(Lx)
    prof_flush(S_WS,sW)
    A('s_endpgm')

def f32(x):
    import struct
    return '0x%08x'%struct.unpack('<I',struct.pack('<f',x))[0]
import math
aU=8; aWS=12; aOUT=16
aRE=40
aDS=56
aG=20; aTB=21; aAI=22; aWv=23; aC=24; aHF=25; aT=26; aT2=27; aWB=28; aSH=29; aLD=30; aCNT=67
KT_W=16880; KT_R=528
LA_UIMG=0; LA_T2=8192
LA_UC=67520; UC_S=4576; UPAD=480
LA_T=76672; T_S=2624
LA_C=16384; C_CH=16640; C_M=4160
LA_UIMG2=0; LA_YIMG=8192
LA_EX=16384; LA_Y=32768
XB=2047
def a_flag_store(base):
    L=A.newlabel('Lafs')
    A(f's_cmp_lg_u32 s{aWv}, 0\ns_cbranch_scc1 {L}')
    A(f's_lshl_b32 s{aT}, s{aAI}, 7\ns_add_u32 s{aT}, s{aT}, {base}\nv_mov_b32 v10, s{sN}\nv_mov_b32 v11, s{sN}\nv_mov_b32 v12, s{sN}\nv_mov_b32 v13, s{sN}\ns_mov_b64 exec, 0xff')
    A(f'buffer_store_dwordx4 v[10:13], v9, {sr(aWS,4)}, s{aT} offen sc1\ns_mov_b64 exec, -1\ns_nop 1')
    A.label(L)
def a_flag_poll(base):
    L=A.newlabel('Lafp'); Ld=A.newlabel('Lafd')
    A(f's_cmp_lg_u32 s{aWv}, 0\ns_cbranch_scc1 {Ld}')
    A(f's_lshl_b32 s{aT}, s{aG}, 12\ns_add_u32 s{aT}, s{aT}, {base}\nv_lshlrev_b32 v2, 7, v0\ns_mov_b32 s{aCNT}, 0\ns_mov_b32 exec_hi, 0')
    A.label(L)
    A(f'buffer_load_dword v3, v2, {sr(aWS,4)}, s{aT} offen sc1\ns_waitcnt vmcnt(0)')
    A(f'v_cmp_ne_u32 vcc, s{sN}, v3\ns_cbranch_vccz {Ld}')
    A(f's_sleep 2\ns_add_u32 s{aCNT}, s{aCNT}, 1\ns_cmp_lt_u32 s{aCNT}, {SPIN}\ns_cbranch_scc1 {L}')
    A.label(Ld)
    A('s_mov_b64 exec, -1\ns_waitcnt lgkmcnt(0)\ns_barrier')
    A.vm=[]

def gen_A():
    A.label('L_A')
    A.vm=[]
    if ASTOP==9:
        A('s_sleep 127\ns_sleep 127\ns_sleep 127\ns_endpgm'); return
    if '--aprio' in sys.argv: A('s_setprio 3')
    stamp('A start')
    A('s_load_dwordx16 s[40:55], s[0:1], 0\ns_load_dwordx2 s[56:57], s[0:1], 64\ns_load_dwordx2 s[58:59], s[0:1], 104\ns_load_dwordx2 s[60:61], s[0:1], 120')
    A(f'v_lshrrev_b32 v1, 6, v0\nv_and_b32 v0, 63, v0\ns_nop 0\nv_readfirstlane_b32 s{aWv}, v1')
    A((f's_and_b32 s{aT}, s2, 7\ns_cmp_eq_u32 s{aT}, 7\ns_cbranch_scc1 L_exit\ns_lshl_b32 s{aT}, s{aT}, 5\ns_lshr_b32 s{aAI}, s2, 3\ns_add_u32 s{aAI}, s{aAI}, s{aT}\n' if LOC else f's_mov_b32 s{aAI}, s2\n')+f's_lshr_b32 s{aG}, s{aAI}, 5\ns_and_b32 s{aTB}, s{aAI}, 31\nv_lshlrev_b32 v9, 4, v0\nv_lshrrev_b32 v2, 3, v0\nv_and_b32 v3, 7, v0\nv_lshlrev_b32 v3, 4, v3')
    A(f's_lshr_b32 s{aC}, s{aWv}, 1\ns_and_b32 s{aHF}, s{aWv}, 1\ns_lshl_b32 s{aWB}, s{aWv}, 11\ns_lshl_b32 s{aT}, s{aWv}, 4\nv_add_u32 v2, s{aT}, v2')
    A('v_mul_u32_u24 v4, 896, v2\nv_add_u32 v4, v4, v3')
    A('v_lshlrev_b32 v5, 7, v2\nv_add_u32 v5, v5, v3')
    sUT=31
    A(f's_mul_i32 s{sUT}, s{aTB}, 57344\ns_lshl_b32 s{aT}, s{aG}, 7\ns_add_u32 s{sUT}, s{sUT}, s{aT}')
    A(f's_lshl_b32 s{aT}, s{aAI}, 1\ns_add_u32 s{aT}, s{aT}, s{aC}\ns_lshl_b32 s{aT}, s{aT}, 9\ns_lshl_b32 s{aT2}, s{aHF}, 8\ns_add_u32 s{aT}, s{aT}, s{aT2}\nv_lshlrev_b32 v6, 2, v0\nv_add_u32 v6, s{aT}, v6')
    A('s_waitcnt lgkmcnt(0)')
    srd(aU,40,1835008)
    for j in range(2):
        A(f's_add_u32 m0, s{aWB}, {LA_UIMG+j*1024}\ns_add_u32 s{aT}, s{sUT}, {j*7168}')
        A.vm_op(f'buffer_load_dwordx4 v4, {sr(aU,4)}, s{aT} offen lds',tag='ut')
    LA_PAR=17408
    A(f's_lshl_b32 s{aT}, s{aAI}, 10\nv_add_u32 v6, s{aT}, v9')
    Lq=[A.newlabel('Lpar') for _ in range(5)]
    for w in range(4):
        A(f's_cmp_lg_u32 s{aWv}, {w}\ns_cbranch_scc1 {Lq[w]}')
        A(f's_mov_b32 m0, {LA_PAR+w*1024}\ns_nop 0\nglobal_load_lds_dwordx4 v6, s[{42+2*w}:{43+2*w}]')
        if w<2: A(f's_mov_b32 m0, {LA_PAR+(w+4)*1024}\ns_nop 0\nglobal_load_lds_dwordx4 v6, s[{42+2*(w+4)}:{43+2*(w+4)}]')
        A(f's_branch {Lq[4]}')
        A.label(Lq[w])
    A.label(Lq[4])
    A.vm.append('par')
    srd(aWS,60,WS_SIZE); srd(aOUT,58,3670016)
    A(f's_load_dword s{sN}, s[60:61], {WS_EPOCH}')
    A(f's_lshl_b32 s{aT}, s{aAI}, 2\ns_add_u32 s54, s54, s{aT}\ns_addc_u32 s55, s55, 0\ns_load_dword s{aLD}, s[54:55], 0')
    A('v_mov_b32 v10, -1\nv_mov_b32 v11, -1\nv_mov_b32 v12, -1\nv_mov_b32 v13, -1')
    if LOC: A(f's_and_b32 s34, s{aAI}, 31\ns_lshl_b32 s34, s34, 3\ns_add_u32 s34, s34, s{aG}')
    else: A(f's_mov_b32 s34, s{aAI}')
    Lc=A.newlabel('Lclr')
    def clears():
        A.label(Lc)
        if not NOCLR:
            if LOC: A('s_lshr_b32 s35, s34, 3\ns_and_b32 s36, s34, 7')
            else: A(f's_and_b32 s35, s34, 7\ns_lshl_b32 s35, s35, 2\ns_lshr_b32 s36, s34, 3\ns_and_b32 s36, s36, 3\ns_add_u32 s35, s35, s36\ns_lshr_b32 s36, s34, 5')
            A(f's_lshl_b32 s37, s36, 5\ns_add_u32 s37, s37, s35\ns_mul_i32 s37, s37, {PSTR}\ns_add_u32 s37, s37, s{aWB}\ns_add_u32 s37, s37, {WS_PART}')
            A(f'buffer_store_dwordx4 v[10:13], v9, {sr(aWS,4)}, s37 offen{LSC}\nbuffer_store_dwordx4 v[10:13], v9, {sr(aWS,4)}, s37 offen offset:1024{LSC}')
            Lr=A.newlabel('Lred')
            A(f's_cmp_lg_u32 s{aWv}, 0\ns_cbranch_scc1 {Lr}')
            A(f's_lshl_b32 s37, s36, 13\ns_lshl_b32 s38, s35, 8\ns_add_u32 s37, s37, s38\ns_add_u32 s37, s37, {WS_RED}\ns_mov_b64 exec, 0xffff')
            A(f'buffer_store_dwordx4 v[10:13], v9, {sr(aWS,4)}, s37 offen{LSC}\ns_mov_b64 exec, -1')
            A.label(Lr)
        if not LOC: A(f's_add_u32 s34, s34, 224\ns_cmp_lt_u32 s34, 256\ns_cbranch_scc1 {Lc}')
    A(f'v_lshrrev_b32 v7, 4, v0\nv_lshlrev_b32 v7, 3, v7\nv_bfe_u32 v8, v0, 2, 2\nv_add_u32 v7, v7, v8\nv_lshlrev_b32 v7, 7, v7\nv_and_b32 v8, 3, v0\nv_lshlrev_b32 v8, 3, v8\nv_add_u32 v7, v7, v8\ns_lshl_b32 s{aT}, s{aWv}, 5\nv_add_u32 v7, s{aT}, v7')
    A(f'v_and_b32 v8, 15, v0\ns_lshl_b32 s{aT}, s{aWv}, 4\nv_add_u32 v8, s{aT}, v8\nv_mul_u32_u24 v8, 144, v8\nv_lshrrev_b32 v14, 4, v0\nv_lshlrev_b32 v14, 4, v14\nv_add_u32 v8, v8, v14')
    A('v_mul_u32_u24 v14, 144, v2\nv_add_u32 v14, v14, v3')
    sTT=63
    A(f's_mul_i32 s{sTT}, s{aAI}, {TSTR}')
    A(f's_mul_i32 s{aT}, s{aWv}, {KT_W}\nv_lshlrev_b32 v57, 3, v0\nv_add_u32 v57, s{aT}, v57')
    A(f'v_and_b32 v58, 31, v0\nv_mul_u32_u24 v58, {KT_R}, v58\nv_lshrrev_b32 v59, 5, v0\nv_lshlrev_b32 v59, 4, v59\nv_add_u32 v58, v58, v59\nv_add_u32 v58, s{aT}, v58')
    A(f'v_mul_u32_u24 v1, {T_S}, v0\nv_add_u32 v1, {LA_T+2600}, v1\nv_mov_b32 v14, 0\ns_mov_b64 exec, 3\nds_write_b32 v1, v14\ns_mov_b64 exec, -1')
    A('v_mul_u32_u24 v14, 144, v2\nv_add_u32 v14, v14, v3')
    A.vm_drain()
    A('s_barrier')
    A(f's_lshl_b32 s{aT}, s{aC}, 9\ns_lshl_b32 s{aT2}, s{aHF}, 8\ns_add_u32 s{aT}, s{aT}, s{aT2}\nv_lshlrev_b32 v6, 2, v0\nv_add_u32 v6, s{aT}, v6')
    for k in range(6): A(f'ds_read_b32 v{32+k}, v6 offset:{17408+k*1024}')
    for it in range(2):
        A(f'ds_read_b64_tr_b16 {vr(64+4*it,2)}, v7 offset:{LA_UIMG+it*4096}\nds_read_b64_tr_b16 {vr(66+4*it,2)}, v7 offset:{LA_UIMG+it*4096+512}')
    A('s_waitcnt lgkmcnt(0)')
    for it in range(2): A(f'ds_write_b128 v8, {vr(64+4*it,4)} offset:{LA_T2+64*it}')
    for j in range(2): A(f'ds_read_b128 {vr(72+4*j,4)}, v14 offset:{LA_T2+j*8*144}')
    A('s_waitcnt lgkmcnt(0)')
    for j in range(2):
        A(f's_add_u32 s{aT}, s{sTT}, {WS_UT+j*1024}')
        A.vm_op(f'buffer_store_dwordx4 {vr(72+4*j,4)}, v5, {sr(aWS,4)}, s{aT} offen'+LSC,tag='uts')
    clears()
    A('s_getpc_b64 s[64:65]')
    A.label('L_pc')
    A('s_add_u32 s64, s64, L_tab-L_pc\ns_addc_u32 s65, s65, 0')
    A(f's_lshl_b32 s{aT}, s{aWv}, 6\nv_add_u32 v1, s{aT}, v0\nv_lshlrev_b32 v6, 4, v1\nv_lshlrev_b32 v1, 3, v1\nv_add_u32 v1, {256*16}, v1')
    A.vm_op('global_load_dwordx4 v[172:175], v6, s[64:65]',tag='tab'); A.vm_op('global_load_dwordx2 v[176:177], v1, s[64:65]',tag='tab')
    stamp('A uT stored')
    if '--aprio' in sys.argv: A(f's_setprio {AP1}')
    A(f's_lshl_b32 s{aT}, s{aC}, 4\ns_lshr_b32 s{aLD}, s{aLD}, s{aT}\ns_lshl_b32 s{aLD}, s{aLD}, 16')
    A(f'v_mov_b32 v14, s{aLD}\nv_mul_f32 v14, {hex(LOG2E)}, v14\nv_exp_f32 v14, v14\ns_nop 0\nv_cvt_pk_bf16_f32 v14, v14, v14\nv_lshlrev_b32 v15, 16, v14')
    BS=[192,224]
    for st in range(2):
        B_=BS[st]
        for k in range(6):
            if st==0: A(f'v_lshlrev_b32 v{B_+k}, 16, v{32+k}')
            else: A(f'v_and_b32 v{B_+k}, 0xffff0000, v{32+k}')
        for k in range(4): A(f'v_mul_f32 v{B_+k}, v15, v{B_+k}')
    for st in range(2):
        B_=BS[st]
        A(f'v_mul_f32 v60, v{B_+5}, v{B_+3}\nv_mul_f32 v61, v{B_+5}, v{B_+2}\nv_fma_f32 v{B_+6}, v{B_+4}, v{B_+2}, -v60\nv_fma_f32 v{B_+7}, -v{B_+4}, v{B_+3}, -v61')
    for off,k,conj in ((10,8,False),(8,1,True),(12,256,True)):
        for st in range(2):
            B_=BS[st]; t=60+2*st
            A(f'v_mul_f32 v{t}, {f32(k*math.log2(math.e))}, v{B_}\nv_mul_f32 v{t+1}, {f32(k/(2*math.pi))}, v{B_+1}')
        for st in range(2):
            t=60+2*st
            A(f'v_exp_f32 v{t}, v{t}\nv_fract_f32 v{t+1}, v{t+1}')
        for st in range(2):
            B_=BS[st]; t=60+2*st
            A(f'v_cos_f32 v{B_+off}, v{t+1}\nv_sin_f32 v{B_+off+1}, v{t+1}')
        for st in range(2):
            B_=BS[st]; t=60+2*st
            A(f'v_mul_f32 v{B_+off}, v{t}, v{B_+off}')
            A(f'v_mul_f32 v{B_+off+1}, v{t}, v{B_+off+1}' if not conj else f'v_mul_f32_e64 v{B_+off+1}, -v{t}, v{B_+off+1}')
    def cm2(d,z,m):
        if '--nokv' in sys.argv: return
        for st in range(2):
            B_=BS[st]
            A(f'v_mul_f32 v{B_+30}, v{B_+z+1}, v{B_+m+1}\nv_mul_f32 v{B_+d+1}, v{B_+z+1}, v{B_+m}')
        for st in range(2):
            B_=BS[st]
            A(f'v_fmac_f32 v{B_+d+1}, v{B_+z}, v{B_+m+1}\nv_fma_f32 v{B_+d}, v{B_+z}, v{B_+m}, -v{B_+30}')
    cm2(14,12,12)
    cm2(16,14,14)
    A.vm_drain()
    A('s_barrier')
    A(f's_add_u32 s{sN}, s{sN}, {NONCE_C}')
    a_flag_store(WS_FLAGA1)
    stamp('A flag1 set')
    if ASTOP==1:
        prof_flush(aWS,aWv,256); A('s_endpgm'); return
    rot=[0]
    WT=[40,42,44,46,48,50,52,54]
    def wr2(offs,row):
        t=WT[rot[0]%len(WT)]; rot[0]+=1
        A(f'v_cvt_pk_bf16_f32 v{t}, v{BS[0]+offs}, v{BS[0]+offs+1}\nv_cvt_pk_bf16_f32 v{t+1}, v{BS[1]+offs}, v{BS[1]+offs+1}')
        if '--nokw' not in sys.argv: A(f'ds_write_b64 v57, {vr(t,2)} offset:{row*KT_R}')
    A('v_mov_b32 v54, 0x3f80\nv_mov_b32 v55, 0x3f80\nds_write_b64 v57, v[54:55] offset:0')
    wr2(10,1)
    cm2(18,10,10); wr2(18,2)
    for j in range(3,32):
        cm2(18,18,10); wr2(18,j)
    A('s_waitcnt lgkmcnt(0)')
    for kk in range(16): A(f'ds_read_b128 {vr(64+4*kk,4)}, v58 offset:{32*kk}')
    stamp('A E done')
    if ASTOP==2:
        prof_flush(aWS,aWv,256); A('s_endpgm'); return
    A('s_waitcnt lgkmcnt(0)')
    wr2(6,0)
    cm2(18,6,8); wr2(18,1)
    cm2(20,18,8); wr2(20,2)
    cm2(18,20,8); wr2(18,3)
    cm2(22,18,8); wr2(22,4)
    cm2(18,22,8); wr2(18,5)
    cm2(24,18,8); wr2(24,6)
    cm2(18,24,8); wr2(18,7)
    for r,src in enumerate((6,20,22,24)):
        cm2(18,src,12); wr2(18,8+r)
    cm2(26,6,14); wr2(26,12)
    cm2(28,22,14); wr2(28,13)
    cm2(26,26,12); wr2(26,14)
    cm2(28,28,12); wr2(28,15)
    cm2(18,6,16); wr2(18,16)
    for r in range(17,21):
        cm2(18,18,12); wr2(18,r)
    a_flag_poll(WS_FLAGA1)
    A(f'v_lshrrev_b32 v2, 3, v0\nv_mul_u32_u24 v2, {TSTR}, v2\nv_and_b32 v3, 7, v0\nv_lshlrev_b32 v3, 4, v3\nv_add_u32 v60, v2, v3')
    A(f's_lshl_b32 s{aT}, s{aG}, 5\ns_lshl_b32 s{aT2}, s{aHF}, 4\ns_add_u32 s{aT}, s{aT}, s{aT2}\ns_mul_i32 s{aT}, s{aT}, {TSTR}')
    A(f's_lshl_b32 s{aT2}, s{aAI}, 1\ns_add_u32 s{aT2}, s{aT2}, s{aC}\ns_and_b32 s{aT2}, s{aT2}, 63\ns_lshl_b32 s{aT2}, s{aT2}, 7\ns_add_u32 s62, s{aT}, s{aT2}')
    A(f's_mul_i32 s35, s{aC}, {UC_S}\ns_lshl_b32 s{aT2}, s{aHF}, 11\ns_add_u32 s35, s35, s{aT2}\ns_add_u32 s35, s35, {LA_UC+UPAD}')
    for j in range(2):
        A(f's_add_u32 m0, s35, {j*1024}\ns_add_u32 s{aT}, s62, {WS_UT+j*8*TSTR}')
        A.vm_op(f'buffer_load_dwordx4 v60, {sr(aWS,4)}, s{aT} offen sc1 lds',tag='uc')
    A('v_mov_b32 v10, 0\nv_mov_b32 v11, 0\nv_mov_b32 v12, 0\nv_mov_b32 v13, 0')
    A(f's_mul_i32 s{aT}, s{aC}, {UC_S}\ns_add_u32 s{aT}, s{aT}, {LA_UC}\nv_add_u32 v2, s{aT}, v9\ns_mov_b32 exec_lo, 0x3fffffff\ns_mov_b32 exec_hi, 0\nds_write_b128 v2, v[10:13]\ns_mov_b64 exec, -1')
    A('s_waitcnt lgkmcnt(0)')
    for g in range(4):
        for k in range(4): A(f'ds_read_b128 {vr(128+16*(g&1)+4*k,4)}, v58 offset:{32*(4*g+k)}')
        if g>=1:
            for k in range(4):
                kk=4*(g-1)+k
                A(f's_waitcnt lgkmcnt({7-k})')
                A(f'v_mfma_f32_32x32x16_bf16 v[16:31], {vr(128+16*((g-1)&1)+4*k,4)}, {vr(64+4*kk,4)}, '+('0' if kk==0 else 'v[16:31]'))
    for k in range(4):
        kk=12+k
        A(f's_waitcnt lgkmcnt({3-k})')
        A(f'v_mfma_f32_32x32x16_bf16 v[16:31], {vr(128+16+4*k,4)}, {vr(64+4*kk,4)}, v[16:31]')
    A.vm_wait('tab')
    A(f'v_mov_b32 v1, {LA_T}')
    for i in range(11):
        r=172+i//2 if i<8 else 176+(i-8)//2
        A(f'v_add_u32_sdwa v{160+i}, v1, v{r} dst_sel:DWORD dst_unused:UNUSED_PAD src0_sel:DWORD src1_sel:WORD_{i%2}')
    A(f's_mul_i32 s{aT}, s{aC}, {T_S}\ns_add_u32 s{aT}, s{aT}, {LA_T}')
    A('v_and_b32 v3, 31, v0\nv_lshrrev_b32 v4, 5, v0\nv_cmp_eq_u32 vcc, 1, v4')
    A(f'v_lshlrev_b32 v10, 5, v3\nv_lshlrev_b32 v6, 4, v4\nv_add_u32 v10, v10, v6\nv_add_u32 v10, s{aT}, v10')
    A('v_lshlrev_b32 v6, 4, v3\nv_add_u32 v6, 1024, v6\nv_lshlrev_b32 v7, 3, v3\nv_add_u32 v7, 1536, v7\nv_cndmask_b32 v6, v6, v7, vcc')
    A('v_add_u32 v7, 8, v6\nv_add_u32 v8, 256, v6\nv_cndmask_b32 v7, v7, v8, vcc')
    A(f'v_add_u32 v6, s{aT}, v6\nv_add_u32 v7, s{aT}, v7')
    A('v_lshlrev_b32 v8, 2, v3\nv_add_u32 v8, 2048, v8\nv_mov_b32 v14, 2560\nv_cndmask_b32 v8, v8, v14, vcc')
    A(f'v_add_u32 v8, s{aT}, v8')
    A(f'v_lshrrev_b32 v3, 3, v0\ns_lshl_b32 s{aT}, s{aWv}, 4\nv_add_u32 v3, s{aT}, v3\nv_and_b32 v4, 7, v0\nv_lshlrev_b32 v4, 4, v4')
    A('v_mul_u32_u24 v5, 896, v3\nv_add_u32 v5, v5, v4\nv_lshlrev_b32 v61, 7, v3\nv_add_u32 v61, v61, v4')
    A.nop(2)
    stamp('A kgen done')
    A(f's_mul_i32 s{aT}, s{aWv}, {KT_W}\nv_add_u32 v2, s{aT}, v9\ns_xor_b32 s{aT}, s{aWv}, 1\ns_mul_i32 s{aT}, s{aT}, {KT_W}\nv_add_u32 v12, s{aT}, v9')
    Lh1=A.newlabel('Lkh1'); Lh2=A.newlabel('Lkh2')
    A(f's_cmp_lg_u32 s{aHF}, 0\ns_cbranch_scc1 {Lh1}')
    A('ds_write_b128 v2, v[24:27]\ns_waitcnt lgkmcnt(0)\ns_barrier')
    A('ds_read_b128 v[64:67], v12\nds_read_b128 v[68:71], v12 offset:1024\ns_waitcnt lgkmcnt(0)')
    for k in range(8): A(f'v_add_f32 v{16+k}, v{16+k}, v{64+k}')
    A('ds_write_b128 v10, v[16:19]\nds_write_b64 v6, v[20:21]\nds_write_b64 v7, v[22:23]')
    A(f's_branch {Lh2}')
    A.label(Lh1)
    A('ds_write_b128 v2, v[16:19]\nds_write_b128 v2, v[20:23] offset:1024\ns_waitcnt lgkmcnt(0)\ns_barrier')
    A('ds_read_b128 v[64:67], v12\ns_waitcnt lgkmcnt(0)')
    A('v_add_f32 v24, v24, v64\nv_add_f32 v25, v25, v65\nv_add_f32 v26, v26, v66\nv_add_f32 v27, v27, v67')
    A('s_mov_b32 exec_hi, 1\nds_write_b32 v8, v24\ns_mov_b32 exec_hi, 0')
    A('ds_write_b32 v8, v25 offset:128\nds_write_b32 v8, v26 offset:256\nds_write_b32 v8, v27 offset:384\ns_mov_b32 exec_hi, -1')
    A.label(Lh2)
    A(f's_lshl_b32 s{aT}, s{aWv}, 6\nv_add_u32 v2, s{aT}, v0\nv_lshlrev_b32 v4, 4, v2')
    A('s_waitcnt lgkmcnt(0)')
    stamp('A adds done')
    A('s_barrier')
    for c in range(2):
        for i in range(11): A(f'ds_read_b32 v{64+16*c+i}, v{160+i} offset:{c*T_S}')
    for j in range(2):
        A(f's_add_u32 m0, s{aWB}, {LA_UIMG2+j*1024}\ns_add_u32 s{aT}, s{sUT}, {j*7168}')
        A.vm_op(f'buffer_load_dwordx4 v5, {sr(aU,4)}, s{aT} offen lds',tag='ut2')
    A(f'v_lshrrev_b32 v6, 4, v0\nv_lshlrev_b32 v6, 4, v6\ns_lshl_b32 s{aT}, s{aG}, 7\nv_add_u32 v6, s{aT}, v6')
    A.vm_op('global_load_dwordx4 v[184:187], v6, s[56:57]',tag='d'); A.vm_op('global_load_dwordx4 v[188:191], v6, s[56:57] offset:64',tag='d')
    A(f'v_lshrrev_b32 v7, 1, v0\nv_and_b32 v8, 3, v7\nv_mul_u32_u24 v8, {C_M}, v8\nv_lshrrev_b32 v7, 2, v7\nv_mul_u32_u24 v7, {C_CH}, v7\nv_add_u32 v8, v8, v7\nv_and_b32 v7, 1, v0\nv_lshlrev_b32 v7, 4, v7\nv_add_u32 v8, v8, v7')
    A('v_mov_b32 v10, 0\nv_mov_b32 v11, 0\nv_mov_b32 v12, 0\nv_mov_b32 v13, 0\ns_mov_b64 exec, 0xffff')
    A(f'ds_write_b128 v8, v[10:13] offset:{LA_C+4096}\ns_mov_b64 exec, -1')
    for c in range(2):
        A(f's_waitcnt lgkmcnt({12 if c==0 else 4})')
        g=64+16*c
        for m in range(4):
            for d in range(4): A(f'v_cvt_pk_bf16_f32 v{96+4*m+d}, v{g+m+2*d}, v{g+m+2*d+1}')
        for m in range(4): A(f'ds_write_b128 v4, {vr(96+4*m,4)} offset:{LA_C+c*C_CH+m*C_M}')
    stamp('A copies issued')
    A('v_and_b32 v2, 15, v0\nv_lshrrev_b32 v3, 4, v0\nv_and_b32 v5, 1, v3\nv_lshrrev_b32 v6, 1, v3')
    A(f'v_sub_u32 v7, 3, v2\nv_and_b32 v7, 3, v7')
    A(f'v_lshlrev_b32 v8, 4, v6\nv_add_u32 v8, v8, v2\nv_lshlrev_b32 v14, 3, v5\nv_sub_u32 v8, v8, v14\nv_add_u32 v8, v8, v7')
    A(f'v_sub_u32 v8, {XB}, v8\nv_lshlrev_b32 v8, 1, v8\nv_mul_u32_u24 v14, {C_M}, v7\nv_add_u32 v8, v8, v14')
    A(f's_mul_i32 s{aT}, s{aC}, {C_CH}\ns_lshl_b32 s{aT2}, s{aHF}, 8\ns_sub_u32 s{aT}, s{aT}, s{aT2}\ns_add_u32 s{aT}, s{aT}, {LA_C-64*59}\nv_add_u32 v48, s{aT}, v8')
    A('v_lshlrev_b32 v7, 4, v5\nv_lshlrev_b32 v8, 5, v6\nv_sub_u32 v7, v7, v8\nv_lshlrev_b32 v14, 5, v2\nv_add_u32 v14, v14, v7')
    A(f's_mul_i32 s{aT}, s{aC}, {UC_S}\ns_sub_u32 s{aT}, s{aT}, s{aT2}\ns_add_u32 s{aT}, s{aT}, {LA_UC+UPAD-192}\nv_add_u32 v56, s{aT}, v14')
    A.vm_wait('uc',' lgkmcnt(0)')
    A('s_barrier')
    stamp('A conv start')
    AB=[64,128]; BB=[96,192]
    def rdconv(rr):
        s_=rr&1
        for w in range(8): A(f'ds_read_b128 {vr(BB[s_]+4*w,4)}, v56 offset:{512*w+64*(3-rr)}')
        for q in range(8):
            o=64*(59-(8*q+rr))
            A(f'ds_read_b64 {vr(AB[s_]+4*q,2)}, v48 offset:{o}\nds_read_b64 {vr(AB[s_]+4*q+2,2)}, v48 offset:{o+8}')
    def rdlist(rr):
        s_=rr&1; L=[]
        for w in range(8): L.append(f'ds_read_b128 {vr(BB[s_]+4*w,4)}, v56 offset:{512*w+64*(3-rr)}')
        for q in range(8):
            o=64*(59-(8*q+rr))
            L.append(f'ds_read_b64 {vr(AB[s_]+4*q,2)}, v48 offset:{o}'); L.append(f'ds_read_b64 {vr(AB[s_]+4*q+2,2)}, v48 offset:{o+8}')
        return L
    for x in rdlist(0): A(x)
    for rr in range(4):
        s_=rr&1
        A('s_waitcnt lgkmcnt(0)')
        nxt=rdlist(rr+1) if rr<3 else []
        n=0
        for q in range(8):
            for w in range(8-q):
                t=q+w
                cin='0' if (rr==0 and q==0) else vr(16+4*t,4)
                A(f'v_mfma_f32_16x16x32_bf16 {vr(16+4*t,4)}, {vr(AB[s_]+4*q,4)}, {vr(BB[s_]+4*w,4)}, {cin}')
                n+=1
                if nxt and n>=2: A(nxt.pop(0))
        assert not nxt
    stamp('A conv done')
    if AP2!=AP1: A(f's_setprio {AP2}')
    A('s_barrier')
    A(f's_lshl_b32 s{aT}, s{aWv}, 12\ns_add_u32 s{aT}, s{aT}, {LA_EX}\nv_add_u32 v2, s{aT}, v9')
    A(f's_xor_b32 s{aT}, s{aWv}, 1\ns_lshl_b32 s{aT}, s{aT}, 12\ns_add_u32 s{aT}, s{aT}, {LA_EX}\nv_add_u32 v5, s{aT}, v9')
    A(f'v_and_b32 v3, 15, v0\nv_lshlrev_b32 v3, 5, v3\nv_lshrrev_b32 v4, 4, v0\nv_lshlrev_b32 v4, 3, v4\nv_add_u32 v3, v3, v4\ns_add_u32 s{aT}, s{aWB}, {LA_Y}\nv_add_u32 v3, s{aT}, v3\nv_add_u32 v4, s{aT}, v9')
    L1=A.newlabel('Lcx'); L2=A.newlabel('Lcy')
    def fin(keep,send):
        for k in range(4): A(f'ds_write_b128 v2, {vr(send+4*k,4)} offset:{k*1024}')
        A('s_waitcnt lgkmcnt(0)\ns_barrier')
        for k in range(4): A(f'ds_read_b128 {vr(64+4*k,4)}, v5 offset:{k*1024}')
        A('s_waitcnt lgkmcnt(0)')
        for k in range(16): A(f'v_add_f32 v{keep+k}, v{keep+k}, v{64+k}')
        for k in range(8): A(f'v_cvt_pk_bf16_f32 v{64+k}, v{keep+2*k}, v{keep+1+2*k}')
    A(f's_cmp_lg_u32 s{aHF}, 0\ns_cbranch_scc1 {L1}')
    fin(16,32)
    A(f's_branch {L2}')
    A.label(L1)
    fin(32,16)
    A.label(L2)
    for k in range(4): A(f'ds_write_b64 v3, {vr(64+2*k,2)} offset:{512*k}')
    A('ds_read_b128 v[72:75], v4\nds_read_b128 v[76:79], v4 offset:1024')
    A(f's_add_u32 s{aT}, s62, {WS_YT}\ns_add_u32 s{aT2}, s62, {WS_YT+8*TSTR}')
    A('s_waitcnt lgkmcnt(0)')
    A.vm_op(f'buffer_store_dwordx4 v[72:75], v60, {sr(aWS,4)}, s{aT} offen'+LSC,tag='ys')
    A.vm_op(f'buffer_store_dwordx4 v[76:79], v60, {sr(aWS,4)}, s{aT2} offen'+LSC,tag='ys')
    A(f'v_lshrrev_b32 v7, 4, v0\nv_lshlrev_b32 v7, 3, v7\nv_bfe_u32 v8, v0, 2, 2\nv_add_u32 v7, v7, v8\nv_lshlrev_b32 v7, 7, v7\nv_and_b32 v8, 3, v0\nv_lshlrev_b32 v8, 3, v8\nv_add_u32 v7, v7, v8\ns_lshl_b32 s{aT}, s{aWv}, 5\nv_add_u32 v7, s{aT}, v7')
    A(f'v_and_b32 v8, 15, v0\ns_lshl_b32 s{aT}, s{aWv}, 4\nv_add_u32 v8, s{aT}, v8\nv_lshlrev_b32 v14, 7, v8\nv_lshrrev_b32 v6, 4, v0\nv_lshlrev_b32 v6, 4, v6\nv_add_u32 v14, v14, v6')
    LA_OIMG=16384
    A(f'v_mul_u32_u24 v50, 144, v8\nv_add_u32 v50, v50, v6\nv_add_u32 v50, {LA_OIMG}, v50')
    A(f'v_lshrrev_b32 v51, 3, v0\ns_lshl_b32 s{aT}, s{aWv}, 4\nv_add_u32 v51, s{aT}, v51\nv_and_b32 v52, 7, v0\nv_lshlrev_b32 v52, 4, v52')
    A(f'v_mul_u32_u24 v53, 144, v51\nv_add_u32 v53, v53, v52\nv_add_u32 v53, {LA_OIMG}, v53')
    A(f's_lshl_b32 s{aT}, s{aTB}, 6\nv_add_u32 v51, s{aT}, v51\nv_mul_u32_u24 v51, 1792, v51\nv_add_u32 v51, v51, v52\ns_lshl_b32 s34, s{aG}, 7\ns_add_u32 s35, s34, {8*1792}')
    A.vm_wait('d')
    for it in range(2):
        for k in range(4):
            A(f'v_lshlrev_b32 v{192+8*it+2*k}, 16, v{184+4*it+k}\nv_and_b32 v{193+8*it+2*k}, 0xffff0000, v{184+4*it+k}')
    A.vm_drain()
    A('s_barrier')
    a_flag_store(WS_FLAGA2)
    stamp('A flag2 set')
    for it in range(2): A(f'ds_read_b128 {vr(72+4*it,4)}, v14 offset:{LA_UIMG2+64*it}')
    A('s_waitcnt lgkmcnt(0)')
    for it in range(2):
        for k in range(4):
            A(f'v_lshlrev_b32 v{208+8*it+2*k}, 16, v{72+4*it+k}\nv_and_b32 v{209+8*it+2*k}, 0xffff0000, v{72+4*it+k}')
    for k in range(16): A(f'v_mul_f32 v{208+k}, v{208+k}, v{192+k}')
    a_flag_poll(WS_FLAGA2)
    stamp('A flag2 seen')
    for j in range(2):
        A(f's_add_u32 m0, s{aWB}, {LA_YIMG+j*1024}\ns_add_u32 s{aT}, s{sTT}, {WS_YT+j*1024}')
        A.vm_op(f'buffer_load_dwordx4 v61, {sr(aWS,4)}, s{aT} offen sc1 lds',tag='yt')
    A.vm_drain()
    A('s_barrier')
    for it in range(2):
        A(f'ds_read_b64_tr_b16 {vr(64+4*it,2)}, v7 offset:{LA_YIMG+it*4096}\nds_read_b64_tr_b16 {vr(66+4*it,2)}, v7 offset:{LA_YIMG+it*4096+512}')
    for it in range(2):
        A(f's_waitcnt lgkmcnt({2*(1-it)+it})')
        for k in range(4):
            y=64+4*it+k
            A(f'v_lshlrev_b32 v96, 16, v{y}\nv_and_b32 v97, 0xffff0000, v{y}')
            A(f'v_add_f32 v96, v96, v{208+8*it+2*k}\nv_add_f32 v97, v97, v{209+8*it+2*k}')
            A(f'v_cvt_pk_bf16_f32 v{104+4*it+k}, v96, v97')
        A(f'ds_write_b128 v50, {vr(104+4*it,4)} offset:{64*it}')
    A('ds_read_b128 v[112:115], v53\nds_read_b128 v[116:119], v53 offset:1152')
    A(f's_waitcnt lgkmcnt(1)\nbuffer_store_dwordx4 v[112:115], v51, {sr(aOUT,4)}, s34 offen'+OSC+f'\ns_waitcnt lgkmcnt(0)\nbuffer_store_dwordx4 v[116:119], v51, {sr(aOUT,4)}, s35 offen'+OSC)
    stamp('A end')
    prof_flush(aWS,aWv,256)
    A('s_endpgm')

def main():
    hdr=f'''; S4 conv (A) + hedgehog linear attention (B), single launch, 256 B-workgroups + 224 A-workgroups
; @launch grid=({NB+NA},1,1) block=(256,1,1) lds={LDS_BYTES}
.amdgcn_target "amdgcn-amd-amdhsa--gfx950"
.text
.globl {KN}
.p2align 8
.type {KN},@function
{KN}:
'''
    if '--pf' in sys.argv:
        A('s_getpc_b64 s[4:5]')
        A.label('L_pf')
        A(f's_lshr_b32 s6, s2, 3\ns_and_b32 s6, s6, 31\ns_lshl_b32 s6, s6, 10\nv_and_b32 v1, 7, v0\nv_lshlrev_b32 v1, 7, v1\nv_add_u32 v1, s6, v1\nv_min_u32 v1, L_end-'+KN+'-4, v1')
        A('s_sub_u32 s4, s4, L_pf-'+KN+'\ns_subb_u32 s5, s5, 0')
        A(f's_cmp_ge_u32 s2, {NB+NA}\ns_cbranch_scc1 L_exit')
        A('v_cmp_gt_u32 vcc, 8, v0\ns_and_saveexec_b64 s[6:7], vcc\ns_cbranch_execz L_pfd\nglobal_load_dword v255, v1, s[4:5]')
        A.label('L_pfd')
        A('s_mov_b64 exec, -1')
    A(f's_cmp_ge_u32 s2, {NB+NA}\ns_cbranch_scc1 L_exit\ns_cmp_lt_u32 s2, {NA}\ns_cbranch_scc1 L_A\ns_sub_u32 s2, s2, {NA}')
    if NOB: A('s_endpgm')
    else: gen_B()
    if NOA: A.label('L_A'); A('s_endpgm')
    else: gen_A()
    A.label('L_exit'); A('s_endpgm')
    tail=f'''.section .rodata,"a"
.p2align 6
.amdhsa_kernel {KN}
  .amdhsa_next_free_vgpr 256
  .amdhsa_next_free_sgpr 102
  .amdhsa_accum_offset 256
  .amdhsa_group_segment_fixed_size 0
  .amdhsa_kernarg_size 128
  .amdhsa_user_sgpr_count 2
  .amdhsa_user_sgpr_kernarg_segment_ptr 1
  .amdhsa_system_sgpr_workgroup_id_x 1
.end_amdhsa_kernel
'''
    body=A.text()
    data=''
    if not NOA:
        import numpy as np
        def idx(l):
            if l<0 or l>2047: return 650
            u=np.array([float(l)],np.float32).view(np.uint32)[0]
            bits=int((int(u)+0x7FFF+((int(u)>>16)&1))>>16)
            return l if l<128 else bits-17024
        t4=[];t2=[]
        for t in range(256):
            g=[4*idx(2047-8*t-i) for i in range(11)]+[0]
            t4+=g[:8]; t2+=g[8:12]
        data='.p2align 4\nL_tab:\n'
        for arr in (t4,t2):
            for i in range(0,len(arr),16): data+='  .short '+', '.join(str(x) for x in arr[i:i+16])+'\n'
    data+='L_end:\n'
    open(OUTF,'w').write(hdr+body+data+tail)
    import subprocess
    r=subprocess.run(['clang','-x','assembler','-target','amdgcn-amd-amdhsa','-mcpu=gfx950','-c',OUTF,'-o','chk.o'],capture_output=True,text=True)
    if r.returncode: print('ASM ERRORS:\n'+r.stderr[:3000])
    errs=lint.lint(body)
    for e in errs: print('LINT',e)
    print('wrote',OUTF,len(body.split(chr(10))),'lines;',len(errs),'lint findings')
main()
```

```python
import sys
from asmlib import Asm, vr, sr
import lint
KN='concat_heads__ssm_conv_s4__linear_kernel_hedgehog__prompt_kernel'
PROF = '--prof' in sys.argv
NOA  = '--noA' in sys.argv
NOB  = '--noB' in sys.argv
NOCLR = '--noclr' in sys.argv
KST = '--kst' in sys.argv
PST = '--pst' in sys.argv
ROT = [tuple(int(x) for x in a.split('=')[1].split(',')) for a in sys.argv if a.startswith('--rot=')]
ROT = ROT[0] if ROT else None
M16 = '--map16' in sys.argv
M2D = '--map2d' in sys.argv
OSC = ' sc1' if '--osc1' in sys.argv else (' nt' if '--ont' in sys.argv else '')
PSL = int([a.split('=')[1] for a in sys.argv if a.startswith('--psl=')][0]) if any(a.startswith('--psl=') for a in sys.argv) else 0
KDMA = '--kdma' in sys.argv
LOC = '--loc' in sys.argv
LSC = '' if LOC else ' sc1'
BPRIO = [int(a.split('=')[1]) for a in sys.argv if a.startswith('--bprio=')]
BPRIO = BPRIO[0] if BPRIO else 2
BPRIO0 = [int(a.split('=')[1]) for a in sys.argv if a.startswith('--bprio0=')]
BPRIO0 = BPRIO0[0] if BPRIO0 else BPRIO
AP1 = [int(a.split('=')[1]) for a in sys.argv if a.startswith('--ap1=')]
AP1 = AP1[0] if AP1 else 0
AP2 = [int(a.split('=')[1]) for a in sys.argv if a.startswith('--ap2=')]
AP2 = AP2[0] if AP2 else AP1
KDEPTH = [int(a.split('=')[1]) for a in sys.argv if a.startswith('--kd=')]
KDEPTH = KDEPTH[0] if KDEPTH else 3
ASTOP = [int(a.split('=')[1]) for a in sys.argv if a.startswith('--astop=')]
ASTOP = ASTOP[0] if ASTOP else 99
OUTF = [a for a in sys.argv[1:] if not a.startswith('--')]
OUTF = OUTF[0] if OUTF else 'out.s'

WS_EPOCH=0; WS_FLAGA1=0x10000; WS_FLAGA2=0x20000; WS_FLAGB2=0x30000
PSTR=8448; TSTR=8448
WS_PART=0x100000; WS_OBUF=WS_PART+256*PSTR; WS_RED=WS_OBUF+0x200000; CLR_KB=(256*PSTR+0x200000+0x10000)//1024
WS_UT=0x600000; WS_YT=0x800000; WS_PROF=0xA00000
WS_SIZE=0xC00000
NONCE_C=0x9E3779B9
LDS_BYTES=81920
NB=256; NA=256 if '--loc' in sys.argv else 224
SPIN=20000 if '--shortspin' not in sys.argv else 20
LOG2E=0x3fb8aa3b

A=Asm()
prof_n=[0]
def stamp(name):
    if not PROF: return
    i=prof_n[0]; prof_n[0]+=1
    if PST and i>=12 : prof_n[0]-=1; return
    assert i<16, name
    A(f's_memrealtime s[{70+2*i}:{71+2*i}]')
    A.c('stamp %d %s'%(i,name))
def cstamp(name):
    if not PROF: return
    i=prof_n[0]; prof_n[0]+=1
    assert i<16, name
    A(f's_memtime s[{70+2*i}:{71+2*i}]')
    A.c('stamp %d %s'%(i,name))
def prof_flush(srd_ws, wavereg, add=0):
    if not PROF: return
    n=prof_n[0]; prof_n[0]=0
    A('s_waitcnt lgkmcnt(0) vmcnt(0)')
    A(f's_add_u32 s68, s2, {add}\ns_lshl_b32 s68, s68, 2\ns_add_u32 s68, s68, s{wavereg}\ns_lshl_b32 s68, s68, 7\ns_add_u32 s68, s68, {WS_PROF}')
    A('v_mov_b32 v10, 0')
    for i in range(n):
        A(f'v_writelane_b32 v10, s{70+2*i}, {i}')
    A('v_lshlrev_b32 v11, 2, v0\ns_mov_b64 exec, 0xffff')
    A(f'buffer_store_dword v10, v11, {sr(srd_ws,4)}, s68 offen')
    A('s_mov_b64 exec, -1')

def srd(dst, base, nrec):
    A(f's_mov_b32 s{dst}, s{base}\ns_and_b32 s{dst+1}, s{base+1}, 0xffff')
    if isinstance(nrec,int): A(f's_mov_b32 s{dst+2}, {nrec}')
    else: A(f's_mov_b32 s{dst+2}, {nrec}')
    A(f's_mov_b32 s{dst+3}, 0x20000')

S_X=8; S_W=12; S_WO=16; S_WP=20; S_WS=24; S_OUT=28
sN=32; sW=33; sRT=34; sA=35; sRB=36; sP=37; sT=38; sT2=39
sWB=48
sP112=49
sCP=50
sHI=58
sLO=60
sC2=62
sPART=64; sOB=65; sRED=66; sCNT=67
vXA0=1; vXA1=2; vWA=3; vXR=4; vWR=8; vL16=9
vT=10
accA=16; accB=32; wf=48; wpf=64; EP=72; EN=88; PK=104; vU=120
XF=128
SLOT=8192; NSLOT=7
L_PHI=57344; PHI_H=8704
L_WP=L_PHI
L_KVF=L_PHI

def dma(voff, srdb, soff, ldsbase_imm):
    A(f's_add_u32 m0, s{sWB}, {ldsbase_imm}')
    return f'buffer_load_dwordx4 v{voff}, {sr(srdb,4)}, s{soff} offen lds'

def slotaddr(u):
    if KDMA: return (u%7)*8192
    if u<14: return ((u//2)&1)*16384 + (u&1)*8192
    c=(u-14)%7
    return 32768+c*8192 if c<3 else (c-3)*8192
def w_soff(c,sec,j):
    A(f's_mul_i32 s{sT}, s{sCP+c}, 172032')
    A(f's_add_u32 s{sT}, s{sT}, s{sP112}')
    A(f's_add_u32 s{sT}, s{sT}, {sec*896+j*21504}')
def issue_reg(c):
    for j in range(2):
        A(f's_lshl_b32 s{sT}, s{sCP+c}, 7')
        A.vm_op(f'buffer_load_dwordx4 {vr(XF+16*c+4*j,4)}, v{vXA0+j}, {sr(S_X,4)}, s{sT} offen', tag=('k',c))
    for j in range(2):
        w_soff(c,1,j)
        A.vm_op(f'buffer_load_dwordx4 {vr(XF+16*c+8+4*j,4)}, v{vWA}, {sr(S_W,4)}, s{sT} offen', tag=('k',c))
def write_k(c,vLW):
    b=(c&1)*16384
    for j in range(2):
        A(f'ds_write_b128 v{vLW}, {vr(XF+16*c+4*j,4)} offset:{b+j*1024}')
        A(f'ds_write_b128 v{vLW}, {vr(XF+16*c+8+4*j,4)} offset:{b+8192+j*1024}')
def issue_unit(u):
    slot=slotaddr(u)
    if u<14:
        c=u//2
        for j in range(2):
            A(f's_add_u32 m0, s{sWB}, {slot+j*1024}')
            if u&1:
                w_soff(c,1,j)
                A.vm_op(f'buffer_load_dwordx4 v{vWA}, {sr(S_W,4)}, s{sT} offen lds', tag=('u',u))
            else:
                A(f's_lshl_b32 s{sT}, s{sCP+c}, 7')
                A.vm_op(f'buffer_load_dwordx4 v{vXA0+j}, {sr(S_X,4)}, s{sT} offen lds', tag=('u',u))
        return
    c=(u-14)%7; sec=2 if u<21 else 0
    for j in range(2):
        A(f's_add_u32 m0, s{sWB}, {slot+j*1024}')
        w_soff(c,sec,j)
        A.vm_op(f'buffer_load_dwordx4 v{vWA}, {sr(S_W,4)}, s{sT} offen lds', tag=('u',u))

def read_wfrags(u):
    slot=slotaddr(u)
    for kk in range(4):
        A(f'ds_read_b64_tr_b16 {vr(wf+4*kk,2)}, v{vWR} offset:{slot+2048*kk}')
        A(f'ds_read_b64_tr_b16 {vr(wf+4*kk+2,2)}, v{vWR} offset:{slot+2048*kk+512}')

def softmax(D, tagname, mid=None):
    t=vT
    u=vU
    A.c('softmax '+tagname)
    for r in range(12,16): A(f'v_cndmask_b32 v{D+r}, v{D+r}, v{D}, {sr(sHI,2)}')
    for op,o in (('v_max3_f32',0),('v_min3_f32',4)):
        A(f'{op} v{u+o}, v{D}, v{D+1}, v{D+2}')
        A(f'{op} v{u+o+1}, v{D+3}, v{D+4}, v{D+5}')
        A(f'{op} v{u+o+2}, v{D+6}, v{D+7}, v{D+8}')
        A(f'{op} v{u+o+3}, v{D+9}, v{D+10}, v{D+11}')
    for op,o in (('v_max3_f32',0),('v_min3_f32',4)):
        A(f'{op} v{u+o}, v{u+o}, v{D+12}, v{D+13}')
        A(f'{op} v{u+o+1}, v{u+o+1}, v{D+14}, v{D+15}')
    for op,op2,o in (('v_max3_f32','v_max_f32',0),('v_min3_f32','v_min_f32',4)):
        A(f'{op} v{u+o}, v{u+o}, v{u+o+1}, v{u+o+2}')
    A(f'v_max_f32 v{u}, v{u}, v{u+3}\nv_min_f32 v{u+4}, v{u+4}, v{u+7}')
    A(f'v_mov_b32 v{u+1}, v{u}\nv_mov_b32 v{u+5}, v{u+4}\ns_nop 1')
    A(f'v_permlane32_swap_b32 v{u}, v{u+1}\nv_permlane32_swap_b32 v{u+4}, v{u+5}')
    A(f'v_max_f32 v{u}, v{u}, v{u+1}\nv_min_f32 v{u+4}, v{u+4}, v{u+5}')
    A(f'v_mul_f32 v{t}, s{sC2}, v{u}\nv_mul_f32 v{t+2}, s{sC2}, v{u+4}')
    for r in range(12):
        A(f'v_fma_f32 v{EP+r}, v{D+r}, s{sC2}, -v{t}')
        A(f'v_fma_f32 v{EN+r}, -v{D+r}, s{sC2}, v{t+2}')
    for k in range(4):
        A(f'v_fma_f32 v{u+k}, v{D+12+k}, s{sC2}, -v{t}')
        A(f'v_fma_f32 v{u+4+k}, -v{D+12+k}, s{sC2}, v{t+2}')
    for r in range(12):
        A(f'v_exp_f32 v{EP+r}, v{EP+r}\nv_exp_f32 v{EN+r}, v{EN+r}')
    A(f's_mov_b64 exec, {sr(sLO,2)}')
    for k in range(4):
        A(f'v_exp_f32 v{EP+12+k}, v{u+k}\nv_exp_f32 v{EN+12+k}, v{u+4+k}')
    A('s_mov_b64 exec, -1')
    if mid: mid()
    for k in range(4):
        A(f'v_add_f32 v{u+k}, v{EP+k}, v{EP+4+k}\nv_add_f32 v{u+4+k}, v{EN+k}, v{EN+4+k}')
    for k in range(4):
        A(f'v_add_f32 v{u+k}, v{u+k}, v{EP+8+k}\nv_add_f32 v{u+4+k}, v{u+4+k}, v{EN+8+k}')
    for k in range(4):
        A(f'v_add_f32 v{u+k}, v{u+k}, v{EP+12+k}\nv_add_f32 v{u+4+k}, v{u+4+k}, v{EN+12+k}')
    A(f'v_add_f32 v{u}, v{u}, v{u+1}\nv_add_f32 v{u+4}, v{u+4}, v{u+5}\nv_add_f32 v{u+2}, v{u+2}, v{u+3}\nv_add_f32 v{u+6}, v{u+6}, v{u+7}')
    A(f'v_add_f32 v{u}, v{u}, v{u+2}\nv_add_f32 v{u+4}, v{u+4}, v{u+6}')
    A(f'v_mov_b32 v{u+1}, v{u}\nv_mov_b32 v{u+5}, v{u+4}\ns_nop 1')
    A(f'v_permlane32_swap_b32 v{u}, v{u+1}\nv_permlane32_swap_b32 v{u+4}, v{u+5}')
    A(f'v_add_f32 v{u}, v{u}, v{u+1}\nv_add_f32 v{u+4}, v{u+4}, v{u+5}')
    A(f'v_rcp_f32 v{u}, v{u}\nv_rcp_f32 v{u+4}, v{u+4}\ns_nop 0')
    for r in range(16):
        A(f'v_mul_f32 v{EP+r}, v{u}, v{EP+r}\nv_mul_f32 v{EN+r}, v{u+4}, v{EN+r}')
    for r in range(0,16,2):
        A(f'v_cvt_pk_bf16_f32 v{PK+r//2}, v{EP+r}, v{EP+r+1}')
        A(f'v_cvt_pk_bf16_f32 v{PK+8+r//2}, v{EN+r}, v{EN+r+1}')

def pack_and_phi(acc):
    for r in range(0,16,2):
        A(f'v_cvt_pk_bf16_f32 v{wf+r//2}, v{acc+r}, v{acc+r+1}')
    A(f'v_cndmask_b32 v{wf+6}, v{wf+6}, 0, {sr(sHI,2)}' .replace(', 0, ',', v15, ') )
    A(f'v_cndmask_b32 v{wf+7}, v{wf+7}, v15, {sr(sHI,2)}')
    A('s_nop 1')
    A(f'v_mfma_f32_32x32x16_bf16 {vr(acc,16)}, {vr(wpf,4)}, {vr(wf,4)}, 0')
    A(f'v_mfma_f32_32x32x16_bf16 {vr(acc,16)}, {vr(wpf+4,4)}, {vr(wf+4,4)}, {vr(acc,16)}')
    A.nop(16)

def poll_flags_all(nflags_bytes, base, reg, srd_ws, name):
    L=A.newlabel('Lpf'); Ld=A.newlabel('Lpfd')
    A(f's_mov_b32 s{sCNT}, 0\ns_mov_b32 s{sT}, {base}')
    A.label(L)
    A(f'buffer_load_dwordx4 {vr(reg,4)}, v{vL16}, {sr(srd_ws,4)}, s{sT} offen sc1')
    A('s_waitcnt vmcnt(0)')
    A(f'v_xor_b32 v{reg}, s{sN}, v{reg}\nv_xor_b32 v{reg+1}, s{sN}, v{reg+1}\nv_xor_b32 v{reg+2}, s{sN}, v{reg+2}\nv_xor_b32 v{reg+3}, s{sN}, v{reg+3}')
    A(f'v_or3_b32 v{reg}, v{reg}, v{reg+1}, v{reg+2}\nv_or_b32 v{reg}, v{reg}, v{reg+3}')
    A(f'v_cmp_ne_u32 vcc, 0, v{reg}')
    A(f's_cbranch_vccz {Ld}')
    A(f's_add_u32 s{sCNT}, s{sCNT}, 1\ns_cmp_lt_u32 s{sCNT}, {SPIN}\ns_cbranch_scc1 {L}')
    A.label(Ld)
    A.vm=[]

def chk_flags(reg,addr,base,srd_ws):
    Ld=A.newlabel('Lcf'); L=A.newlabel('Lcfp')
    A(f's_mov_b32 s{sCNT}, 0\ns_mov_b32 s{sT}, {base}')
    A.label(L)
    A(f'v_cmp_ne_u32 vcc, s{sN}, v{reg}')
    A(f's_cbranch_vccz {Ld}')
    A(f's_sleep 4\nbuffer_load_dword v{reg}, v{addr}, {sr(srd_ws,4)}, s{sT} offen sc1\ns_waitcnt vmcnt(0)')
    A(f's_add_u32 s{sCNT}, s{sCNT}, 1\ns_cmp_lt_u32 s{sCNT}, {SPIN}\ns_cbranch_scc1 {L}')
    A.label(Ld)

def gen_B():
    A.label('L_B')
    A(f's_setprio {BPRIO0}')
    stamp('B start')
    A(f's_load_dwordx4 s[4:7], s[0:1], 72\ns_load_dwordx4 s[40:43], s[0:1], 88\ns_load_dwordx2 s[44:45], s[0:1], 104\ns_load_dwordx2 s[46:47], s[0:1], 120')
    A(f'v_lshrrev_b32 v10, 6, v0\nv_and_b32 v0, 63, v0\ns_nop 0\nv_readfirstlane_b32 s{sW}, v10')
    if LOC: A(f's_and_b32 s{sP}, s2, 7\ns_lshr_b32 s{sRB}, s2, 3\ns_and_b32 s{sT2}, s{sRB}, 3')
    elif M16: A(f's_bfe_u32 s{sT}, s2, 0x10002\ns_lshl_b32 s{sT}, s{sT}, 4\ns_bfe_u32 s{sT2}, s2, 0x40003\ns_add_u32 s{sRB}, s{sT}, s{sT2}\ns_and_b32 s{sT}, s2, 3\ns_lshl_b32 s{sT}, s{sT}, 1\ns_lshr_b32 s{sP}, s2, 7\ns_add_u32 s{sP}, s{sP}, s{sT}\ns_and_b32 s{sT2}, s{sRB}, 3')
    elif M2D: A(f's_bfe_u32 s{sT}, s2, 0x20001\ns_lshl_b32 s{sT}, s{sT}, 3\ns_bfe_u32 s{sT2}, s2, 0x30003\ns_add_u32 s{sRB}, s{sT}, s{sT2}\ns_and_b32 s{sT}, s2, 1\ns_lshl_b32 s{sT}, s{sT}, 2\ns_lshr_b32 s{sP}, s2, 6\ns_add_u32 s{sP}, s{sP}, s{sT}\ns_and_b32 s{sT2}, s{sRB}, 3')
    else: A(f's_and_b32 s{sT}, s2, 7\ns_lshl_b32 s{sT}, s{sT}, 2\ns_lshr_b32 s{sT2}, s2, 3\ns_and_b32 s{sT2}, s{sT2}, 3\ns_add_u32 s{sRB}, s{sT}, s{sT2}\ns_lshr_b32 s{sP}, s2, 5')
    A(f's_lshr_b32 s{sRT}, s{sW}, 1\ns_and_b32 s{sA}, s{sW}, 1\ns_lshl_b32 s{sWB}, s{sW}, 11\ns_mul_i32 s{sP112}, s{sP}, 112')
    if LOC:
        A(f's_mul_i32 s{sT}, s{sRB}, 37\ns_lshr_b32 s{sT}, s{sT}, 8\ns_mul_i32 s{sT}, s{sT}, 7\ns_sub_u32 s{sCP}, s{sRB}, s{sT}')
    elif ROT:
        A(f's_mul_i32 s{sT}, s{sRB}, {ROT[0]}\ns_mul_i32 s{sT2}, s{sP}, {ROT[1]}\ns_add_u32 s{sT}, s{sT}, s{sT2}\ns_mul_i32 s{sT2}, s{sT}, 9363\ns_lshr_b32 s{sT2}, s{sT2}, 16\ns_mul_i32 s{sT2}, s{sT2}, 7\ns_sub_u32 s{sCP}, s{sT}, s{sT2}')
    else:
        A(f's_lshl_b32 s{sT2}, s{sT2}, 1\ns_add_u32 s{sT}, s{sP}, s{sT2}')
        A(f's_cmp_ge_u32 s{sT}, 7\ns_cselect_b32 s{sT2}, 7, 0\ns_sub_u32 s{sCP}, s{sT}, s{sT2}')
    for c in range(1,7):
        A(f's_add_u32 s{sT}, s{sCP+c-1}, 1\ns_cmp_ge_u32 s{sT}, 7\ns_cselect_b32 s{sCP+c}, 0, s{sT}')
    A(f's_mov_b32 s{sHI}, 0\ns_mov_b32 s{sHI+1}, -1\ns_mov_b32 s{sLO}, -1\ns_mov_b32 s{sLO+1}, 0')
    A(f's_mov_b32 s{sC2}, {LOG2E}\ns_mov_b32 s{sC2+1}, {LOG2E}')
    A(f'v_lshlrev_b32 v{vL16}, 4, v0')
    A(f'v_lshrrev_b32 v10, 3, v0\nv_lshrrev_b32 v11, 4, v0\nv_and_b32 v12, 7, v0')
    A(f's_lshl_b32 s{sT}, s{sW}, 4\nv_add_u32 v13, s{sT}, v10')
    A(f'v_xor_b32 v14, v12, v11\nv_lshlrev_b32 v14, 4, v14\nv_mul_u32_u24 v{vXA0}, 896, v13\nv_add_u32 v{vXA0}, v{vXA0}, v14')
    A(f'v_add_u32 v14, 4, v11\nv_xor_b32 v14, v12, v14\nv_lshlrev_b32 v14, 4, v14\nv_add_u32 v15, 8, v13\nv_mul_u32_u24 v{vXA1}, 896, v15\nv_add_u32 v{vXA1}, v{vXA1}, v14')
    A(f'v_and_b32 v14, 1, v11\nv_lshlrev_b32 v14, 2, v14\nv_xor_b32 v14, v12, v14\nv_lshrrev_b32 v15, 2, v14\nv_sub_u32 v14, v14, v15\nv_lshlrev_b32 v14, 4, v14')
    A(f'v_mul_u32_u24 v{vWA}, 2688, v13\nv_add_u32 v{vWA}, v{vWA}, v14')
    A('s_waitcnt lgkmcnt(0)')
    stamp('kernarg loaded')
    A(f's_mul_i32 s{sT}, s{sRB}, 57344\ns_add_u32 s4, s4, s{sT}\ns_addc_u32 s5, s5, 0')
    srd(S_X,4,57344); srd(S_W,6,1204224); srd(S_WO,42,401408); srd(S_WS,46,WS_SIZE); srd(S_OUT,44,3670016)
    A(f's_lshl_b32 s{sT}, s{sP}, 1\ns_add_u32 s{sT}, s{sT}, s{sA}\ns_mul_i32 s{sT}, s{sT}, 1568\ns_add_u32 s40, s40, s{sT}\ns_addc_u32 s41, s41, 0\ns_sub_u32 s{sT2}, 25088, s{sT}')
    srd(S_WP,40,f's{sT2}')
    A(f's_load_dword s{sN}, s[46:47], {WS_EPOCH}')
    A(f's_lshl_b32 s{sT}, s{sP}, 5\ns_add_u32 s{sT}, s{sT}, s{sRB}\ns_mul_i32 s{sPART}, s{sT}, {PSTR}\ns_add_u32 s{sPART}, s{sPART}, {WS_PART}')
    A(f's_lshl_b32 s{sRED}, s{sP}, 13\ns_add_u32 s{sRED}, s{sRED}, {WS_RED}')
    A(f's_lshl_b32 s{sT}, s{sRB}, 1\ns_add_u32 s{sT}, s{sT}, s{sRT}\ns_lshl_b32 s{sT}, s{sT}, 4\ns_lshl_b32 s{sT2}, s{sP}, 1\ns_add_u32 s{sT}, s{sT}, s{sT2}\ns_add_u32 s{sT}, s{sT}, s{sA}\ns_lshl_b32 s{sOB}, s{sT}, 11\ns_add_u32 s{sOB}, s{sOB}, {WS_OBUF}')
    if KDMA:
        for u in range(4): issue_unit(u)
    else:
        for c in range(KDEPTH):
            issue_reg(c)
            if PST and c in (0,1,2,3,6): stamp('chunk %d issued'%c)
    A(f's_lshl_b32 s{sT}, s{sA}, 12\ns_lshl_b32 s{sT2}, s{sRT}, 11\ns_add_u32 s{sT}, s{sT}, s{sT2}\ns_add_u32 s{sPART}, s{sPART}, s{sT}')
    A(f'v_and_b32 v10, 31, v0\nv_lshrrev_b32 v11, 5, v0\nv_lshrrev_b32 v12, 1, v10\nv_and_b32 v12, 7, v12')
    A(f's_lshl_b32 s{sT}, s{sRT}, 5\nv_add_u32 v13, s{sT}, v10\nv_lshlrev_b32 v13, 7, v13')
    for kk in range(4):
        A(f'v_add_u32 v14, {2*kk}, v11\nv_xor_b32 v14, v14, v12\nv_lshlrev_b32 v14, 4, v14\nv_add_u32 v{vXR+kk}, v13, v14')
    A(f'v_lshrrev_b32 v10, 4, v0\nv_and_b32 v10, 1, v10\nv_bfe_u32 v12, v0, 2, 2\nv_and_b32 v13, 3, v0')
    A(f'v_and_b32 v14, v13, v10\nv_lshrrev_b32 v15, 1, v13\nv_and_b32 v14, v14, v15\nv_sub_u32 v120, v13, v14')
    A(f'v_lshlrev_b32 v14, 3, v11\nv_add_u32 v14, v14, v12\nv_lshlrev_b32 v{vWR}, 7, v14')
    A(f'v_lshrrev_b32 v14, 1, v12\nv_xor_b32 v14, s{sA}, v14\nv_lshlrev_b32 v14, 6, v14\nv_add_u32 v{vWR}, v{vWR}, v14')
    A(f's_lshl_b32 s{sT}, s{sA}, 3\nv_lshlrev_b32 v14, 5, v10\nv_add_u32 v{vWR}, s{sT}, v{vWR}\nv_add_u32 v{vWR}, v{vWR}, v14\nv_lshlrev_b32 v14, 3, v120\nv_add_u32 v{vWR}, v{vWR}, v14')
    A(f'v_lshlrev_b32 v14, 2, v11\nv_add_u32 v14, v14, v12\nv_mul_u32_u24 v121, 56, v14\nv_lshlrev_b32 v14, 5, v10\nv_add_u32 v121, v121, v14\nv_lshlrev_b32 v14, 3, v13\nv_add_u32 v121, v121, v14\nv_add_u32 v121, s{sWB}, v121')
    A(f's_mul_i32 s{sT}, s{sA}, {PHI_H}\ns_add_u32 s{sT}, s{sT}, {L_PHI}')
    A(f'v_and_b32 v14, 31, v0\ns_lshl_b32 s{sT2}, s{sRT}, 5\nv_add_u32 v14, s{sT2}, v14\nv_mul_u32_u24 v122, 136, v14\nv_lshlrev_b32 v14, 3, v11\nv_add_u32 v122, v122, v14\nv_add_u32 v122, s{sT}, v122')
    A(f'v_lshlrev_b32 v14, 2, v11\nv_add_u32 v14, v14, v12\nv_mul_u32_u24 v123, 136, v14\nv_lshlrev_b32 v14, 5, v10\nv_add_u32 v123, v123, v14\nv_lshlrev_b32 v14, 3, v13\nv_add_u32 v123, v123, v14')
    A(f's_lshl_b32 s{sT2}, s{sRT}, 6\ns_add_u32 s{sT}, s{sT}, s{sT2}\nv_add_u32 v123, s{sT}, v123')
    vWPA=240; vPHW=241; vPHR=242; vFA=243; vFV=244; vF2A=4; vF2V=5; v1A=247; vSEL=248
    A(f'v_mov_b32 v{vWPA}, v121\nv_mov_b32 v{vPHW}, v122\nv_mov_b32 v{vPHR}, v123')
    A('v_mov_b32 v15, 0')
    for k in range(4): A(f'v_mov_b32 v{EP+12+k}, 0\nv_mov_b32 v{EN+12+k}, 0')
    if LOC:
        A(f'v_and_b32 v10, 31, v0\nv_lshlrev_b32 v11, 3, v10\nv_add_u32 v11, s{sP}, v11\nv_mov_b32 v12, v11')
    elif M16:
        A(f'v_and_b32 v10, 31, v0\nv_lshrrev_b32 v11, 4, v10\nv_lshlrev_b32 v11, 2, v11\nv_and_b32 v12, 15, v10\nv_lshl_add_u32 v11, v12, 3, v11\ns_lshr_b32 s{sT}, s{sP}, 1\ns_and_b32 s{sT2}, s{sP}, 1\ns_lshl_b32 s{sT2}, s{sT2}, 7\ns_add_u32 s{sT}, s{sT}, s{sT2}\nv_add_u32 v11, s{sT}, v11\nv_mov_b32 v12, v11')
    elif M2D:
        A(f'v_and_b32 v10, 31, v0\nv_lshrrev_b32 v11, 3, v10\nv_lshlrev_b32 v11, 1, v11\nv_and_b32 v12, 7, v10\nv_lshl_add_u32 v11, v12, 3, v11\ns_lshr_b32 s{sT}, s{sP}, 2\ns_and_b32 s{sT2}, s{sP}, 3\ns_lshl_b32 s{sT2}, s{sT2}, 6\ns_add_u32 s{sT}, s{sT}, s{sT2}\nv_add_u32 v11, s{sT}, v11\nv_mov_b32 v12, v11')
    else:
        A(f'v_and_b32 v10, 31, v0\nv_lshrrev_b32 v11, 2, v10\nv_and_b32 v12, 3, v10\nv_lshlrev_b32 v12, 3, v12\nv_add_u32 v11, v11, v12\ns_lshl_b32 s{sT}, s{sP}, 5\nv_add_u32 v11, s{sT}, v11')
        A(f'v_and_b32 v12, 7, v0\nv_lshlrev_b32 v12, 5, v12\ns_and_b32 s{sT}, s2, 31\nv_add_u32 v12, s{sT}, v12')
    A(f'v_cndmask_b32 v11, v11, v12, {sr(sHI,2)}')
    A(f'v_subrev_u32 v12, 224, v11\nv_cmp_gt_u32 vcc, 224, v11\ns_nop 1\nv_cndmask_b32 v11, v12, v11, vcc\nv_lshlrev_b32 v{vFA}, 7, v11')
    A(f'v_lshrrev_b32 v10, 4, v0\nv_mul_u32_u24 v10, {PSTR}, v10\nv_and_b32 v11, 15, v0\nv_lshlrev_b32 v12, 4, v11\nv_add_u32 v{v1A}, v10, v12')
    A(f'v_and_b32 v12, 1, v11\nv_lshlrev_b32 v12, 4, v12\nv_mov_b32 v13, 0x3f80\nv_lshlrev_b32 v12, v12, v13\nv_lshrrev_b32 v11, 1, v11')
    for q in range(4):
        A(f'v_cmp_eq_u32 vcc, {q}, v11\ns_nop 1\nv_cndmask_b32 v{vSEL+q}, v15, v12, vcc')
    stamp('B prologue issued')
    BUF=[[wf,wf+4,wf+8,wf+12],[72,76,80,88]]
    def rd_unit(u,buf):
        slot=slotaddr(u)
        for kk in range(4):
            A(f'ds_read_b64_tr_b16 {vr(buf[kk],2)}, v{vWR} offset:{slot+2048*kk}')
            A(f'ds_read_b64_tr_b16 {vr(buf[kk]+2,2)}, v{vWR} offset:{slot+2048*kk+512}')
    def gemm_group(units,c0,acc,x_is_A,first,pre=None):
        rd_unit(units[0],BUF[0])
        if pre: pre()
        for i,u in enumerate(units):
            nxt = i+1<len(units)
            if nxt: rd_unit(units[i+1],BUF[(i+1)&1])
            c=c0+i
            for kk in range(4):
                extra = 8 if nxt else 0
                if i==0 and pre: extra += 0
                A(f's_waitcnt lgkmcnt({min(15,2*(3-kk)+extra)})')
                cin='0' if (first and i==0 and kk==0) else vr(acc,16)
                wfr=vr(BUF[i&1][kk],4); xfr=vr(XF+16*c+4*kk,4)
                A(f'v_mfma_f32_32x32x16_bf16 {vr(acc,16)}, '+(f'{xfr}, {wfr}' if x_is_A else f'{wfr}, {xfr}')+f', {cin}')
    if KDMA:
        for u in (4,5,6): issue_unit(u)
        for j in range(2):
            A(f's_add_u32 m0, s{sWB}, {L_WP+j*1024}\ns_mov_b32 s{sT}, {j*1024}')
            A.vm_op(f'buffer_load_dwordx4 v{vL16}, {sr(S_WP,4)}, s{sT} offen lds',tag='wp')
        for c in range(7):
            A.vm_wait(('u',2*c+1))
            A('s_barrier')
            if c>=1:
                issue_unit(2*c+5); issue_unit(2*c+6)
            sx=slotaddr(2*c)
            for kk in range(4):
                A(f'ds_read_b128 {vr(XF+16*c+4*kk,4)}, v{vXR+kk} offset:{sx}')
            read_wfrags(2*c+1)
            if c==4:
                for j in range(2):
                    A(f'ds_read_b64_tr_b16 {vr(wpf+4*j,2)}, v{vWPA} offset:{L_WP+896*j}')
                    A(f'ds_read_b64_tr_b16 {vr(wpf+4*j+2,2)}, v{vWPA} offset:{L_WP+896*j+448}')
            ex = 4 if c==4 else 0
            for kk in range(4):
                A(f's_waitcnt lgkmcnt({2*(3-kk)+ex})')
                cin = '0' if (c==0 and kk==0) else vr(accA,16)
                A(f'v_mfma_f32_32x32x16_bf16 {vr(accA,16)}, {vr(wf+4*kk,4)}, {vr(XF+16*c+4*kk,4)}, {cin}')
            if c==4:
                A('s_waitcnt lgkmcnt(0)')
                A(f'v_cndmask_b32 v{wpf+6}, v{wpf+6}, v15, {sr(sHI,2)}\nv_cndmask_b32 v{wpf+7}, v{wpf+7}, v15, {sr(sHI,2)}')
            if c==0: stamp('K0 done')
        A('s_barrier')
        A(f's_mov_b32 s{sT}, {WS_FLAGA1}')
        A.vm_op(f'buffer_load_dword v{vFV}, v{vFA}, {sr(S_WS,4)}, s{sT} offen sc1',tag='flagc')
        issue_unit(19); issue_unit(20)
    else:
        vLW=252
        A(f'v_add_u32 v{vLW}, s{sWB}, v{vL16}')
        A.vm_wait(('k',0))
        write_k(0,vLW)
        A('s_waitcnt lgkmcnt(0)\ns_barrier')
        vleft=[14,15,16]
        for c in range(7):
            sx=(c&1)*16384
            for kk in range(4):
                A(f'ds_read_b128 {vr(XF+16*c+4*kk,4)}, v{vXR+kk} offset:{sx}')
            read_wfrags(2*c+1)
            nw=0
            if c<6:
                A.vm_wait(('k',c+1))
                write_k(c+1,vLW); nw=4
            if c+KDEPTH<=6: issue_reg(c+KDEPTH)
            if c+KDEPTH==7:
                for j in range(2):
                    A(f's_add_u32 m0, s{sWB}, {L_WP+j*1024}\ns_mov_b32 s{sT}, {j*1024}')
                    A.vm_op(f'buffer_load_dwordx4 v{vL16}, {sr(S_WP,4)}, s{sT} offen lds',tag='wp')
            if c+KDEPTH>=7 and vleft: issue_unit(vleft.pop(0))
            if c==5:
                while vleft: issue_unit(vleft.pop(0))
            if c==6:
                A.vm_wait('wp')
                for j in range(2):
                    A(f'ds_read_b64_tr_b16 {vr(wpf+4*j,2)}, v{vWPA} offset:{L_WP+896*j}')
                    A(f'ds_read_b64_tr_b16 {vr(wpf+4*j+2,2)}, v{vWPA} offset:{L_WP+896*j+448}')
                nw+=4
            for kk in range(4):
                A(f's_waitcnt lgkmcnt({min(15,2*(3-kk)+nw)})')
                cin = '0' if (c==0 and kk==0) else vr(accA,16)
                A(f'v_mfma_f32_32x32x16_bf16 {vr(accA,16)}, {vr(wf+4*kk,4)}, {vr(XF+16*c+4*kk,4)}, {cin}')
            A('s_waitcnt lgkmcnt(0)')
            if c==6:
                A(f'v_cndmask_b32 v{wpf+6}, v{wpf+6}, v15, {sr(sHI,2)}\nv_cndmask_b32 v{wpf+7}, v{wpf+7}, v15, {sr(sHI,2)}')
            A('s_barrier')
            if c==0: stamp('K0 done')
        A(f's_mov_b32 s{sT}, {WS_FLAGA1}')
        A.vm_op(f'buffer_load_dword v{vFV}, v{vFA}, {sr(S_WS,4)}, s{sT} offen sc1',tag='flagc')
        for u in (17,18,19,20): issue_unit(u)
    stamp('K phase done')
    if BPRIO0!=BPRIO: A(f's_setprio {BPRIO}')
    A.nop(6)
    pack_and_phi(accA)
    softmax(accA,'k')
    for jj in range(4):
        A(f'ds_write_b64 v{vPHW}, {vr(PK+2*jj,2)} offset:{16*jj}')
        A(f'ds_write_b64 v{vPHW}, {vr(PK+8+2*jj,2)} offset:{64+16*jj}')
    stamp('softmax k done')
    AF=[PK,PK+4,PK+8,PK+12]
    A.vm_wait(('u',16),' lgkmcnt(0)')
    A('s_barrier')
    gemm_group([14,15,16],0,accB,True,True)
    for m in range(4):
        A(f'ds_read_b64_tr_b16 {vr(AF[m],2)}, v{vPHR} offset:{16*m*136}')
        A(f'ds_read_b64_tr_b16 {vr(AF[m]+2,2)}, v{vPHR} offset:{16*m*136+8*136}')
    A.vm_wait(('u',18),' lgkmcnt(0)')
    A('s_barrier')
    issue_unit(21); issue_unit(22); issue_unit(23)
    gemm_group([17,18],3,accB,True,False)
    A.vm_wait(('u',20))
    A('s_barrier')
    issue_unit(24); issue_unit(25)
    gemm_group([19,20],5,accB,True,False)
    stamp('V phase done')
    A(f'v_and_b32 v10, 31, v0\nv_cmp_eq_u32 vcc, 28, v10\nv_mov_b32 v11, 0x3f803f80')
    A(f'v_add_u32 v12, s{sWB}, v{vL16}\ns_xor_b32 s{sT}, s{sWB}, 4096\nv_add_u32 v13, s{sT}, v{vL16}')
    A(f's_waitcnt lgkmcnt(0)\ns_add_u32 s{sN}, s{sN}, {NONCE_C}')
    A.nop(6)
    for r in range(0,16,2):
        A(f'v_cvt_pk_bf16_f32 v{wf+r//2}, v{accB+r}, v{accB+r+1}')
    for k in range(8): A(f'v_cndmask_b32 v{wf+k}, v{wf+k}, v11, vcc')
    L_VX=slotaddr(19)
    A('s_barrier')
    A(f'ds_write_b128 v12, {vr(wf,4)} offset:{L_VX}\nds_write_b128 v12, {vr(wf+4,4)} offset:{L_VX+1024}')
    A('s_waitcnt lgkmcnt(0)\ns_barrier')
    A(f'ds_read_b128 {vr(wf+8,4)}, v13 offset:{L_VX}\nds_read_b128 {vr(wf+12,4)}, v13 offset:{L_VX+1024}')
    issue_unit(27)
    A.vm_wait('flagc')
    chk_flags(vFV,vFA,WS_FLAGA1,S_WS)
    Lr1=A.newlabel('Lrt1'); Lr2=A.newlabel('Lrtd')
    order0=[wf,wf+4,wf+8,wf+12]; order1=[wf+8,wf+12,wf,wf+4]
    A(f's_cmp_lg_u32 s{sRT}, 0\ns_cbranch_scc1 {Lr1}')
    for m in range(4):
        if m==2: A('s_waitcnt lgkmcnt(0)')
        A(f'v_mfma_f32_32x32x16_bf16 {vr(accA,16)}, {vr(AF[m],4)}, {vr(order0[m],4)}, '+('0' if m==0 else vr(accA,16)))
    A(f's_branch {Lr2}')
    A.label(Lr1)
    for n,m in enumerate((2,3,0,1)):
        if n==2: A('s_waitcnt lgkmcnt(0)')
        A(f'v_mfma_f32_32x32x16_bf16 {vr(accA,16)}, {vr(AF[m],4)}, {vr(order1[m],4)}, '+('0' if n==0 else vr(accA,16)))
    A.label(Lr2)
    A.nop(14)
    for r in range(0,16,2):
        A(f'v_cvt_pk_bf16_f32 v{72+r//2}, v{accA+r}, v{accA+r+1}')
    A.vm_op(f'buffer_store_dwordx4 v[72:75], v{vL16}, {sr(S_WS,4)}, s{sPART} offen'+LSC,tag='part')
    A.vm_op(f'buffer_store_dwordx4 v[76:79], v{vL16}, {sr(S_WS,4)}, s{sPART} offen offset:1024'+LSC,tag='part')
    stamp('partial published')
    if not NOCLR:
        A('v_mov_b32 v10, -1\nv_mov_b32 v11, -1\nv_mov_b32 v12, -1\nv_mov_b32 v13, -1')
        A.vm_op(f'buffer_store_dwordx4 v[10:13], v{vL16}, {sr(S_WS,4)}, s{sOB} offen sc1',tag='oclr')
        A.vm_op(f'buffer_store_dwordx4 v[10:13], v{vL16}, {sr(S_WS,4)}, s{sOB} offen offset:1024 sc1',tag='oclr')
    A.vm_wait(('u',25))
    A('s_barrier')
    issue_unit(26)
    gemm_group([21,22,23,24,25],0,accA,False,True)
    vWO=1; vWOR=2
    sWOB=41; sCOL=42; sACT=43
    A((f's_lshr_b32 s{sT}, s{sP}, 1' if '--s3map' in sys.argv else f's_and_b32 s{sT}, s{sP}, 3')+f'\ns_lshl_b32 s45, s{sT}, 8\ns_lshl_b32 s{sT}, s{sT}, 7\ns_lshl_b32 s{sT2}, s{sW}, 5\ns_add_u32 s{sCOL}, s{sT}, s{sT2}')
    A(f's_cmp_lt_u32 s{sCOL}, 448\ns_cselect_b32 s{sACT}, 1, 0\ns_lshl_b32 s{sWOB}, s{sW}, 10')
    A(f'v_lshrrev_b32 v10, 4, v0\nv_mul_u32_u24 v{vWO}, 896, v10\nv_lshlrev_b32 v11, 2, v10\nv_and_b32 v12, 15, v0\nv_xor_b32 v11, v11, v12\nv_lshlrev_b32 v11, 4, v11\nv_add_u32 v{vWO}, v{vWO}, v11\nv_add_u32 v{vWO}, s45, v{vWO}')
    A(f'v_lshrrev_b32 v10, 5, v0\nv_lshlrev_b32 v10, 2, v10\nv_bfe_u32 v11, v0, 2, 2\nv_add_u32 v10, v10, v11\nv_lshlrev_b32 v10, 8, v10\nv_xor_b32 v11, s{sW}, v11\nv_lshlrev_b32 v11, 6, v11\nv_add_u32 v10, v10, v11')
    A(f'v_bfe_u32 v11, v0, 4, 1\nv_lshlrev_b32 v11, 5, v11\nv_add_u32 v10, v10, v11\nv_and_b32 v11, 3, v0\nv_lshlrev_b32 v11, 3, v11\nv_add_u32 v{vWOR}, v10, v11')
    A.vm_wait(('u',26))
    A('s_barrier')
    Lf2=A.newlabel('Lfb2')
    A(f's_cmp_lg_u32 s{sW}, 3\ns_cbranch_scc1 {Lf2}')
    A(f's_lshl_b32 s{sT}, s2, 7\ns_add_u32 s{sT}, s{sT}, {WS_FLAGB2}\nv_mov_b32 v10, s{sN}\nv_mov_b32 v11, s{sN}\nv_mov_b32 v12, s{sN}\nv_mov_b32 v13, s{sN}\ns_mov_b64 exec, 0xff')
    A(f'buffer_store_dwordx4 v[10:13], v{vL16}, {sr(S_WS,4)}, s{sT} offen sc1\ns_mov_b64 exec, -1\ns_nop 1')
    A.label(Lf2)
    LD=[32,36,40,44,104,108,112,116]
    def issue_1a():
        for m in range(8):
            A(f's_add_u32 s{sT}, s40, {m*4*PSTR}')
            A(f'buffer_load_dwordx4 {vr(LD[m],4)}, v{v1A}, {sr(S_WS,4)}, s{sT} offen sc1')
    L1i=A.newlabel('L1a_i')
    A(f's_cmp_lg_u32 s{sW}, 0\ns_cbranch_scc1 {L1i}')
    A(f's_mul_i32 s{sT}, s{sP}, {32*PSTR}\ns_lshl_b32 s{sT2}, s{sRB}, 8\ns_add_u32 s{sT}, s{sT}, s{sT2}\ns_add_u32 s40, s{sT}, {WS_PART}')
    issue_1a()
    A.label(L1i)
    gemm_group([26,27],5,accA,False,False)
    stamp('Q gemm done')
    A('s_waitcnt lgkmcnt(0)\ns_barrier')
    def wo_dma(row0,k0,k1):
        for k in range(k0,k1):
            A(f's_add_u32 m0, s{sWOB}, {k*4096}\ns_add_u32 s{sT}, s46, {(row0+16*k)*896}')
            A(f'buffer_load_dwordx4 v{vWO}, {sr(S_WO,4)}, s{sT} offen lds')
    def wo_frags(h0,h1,row0):
        for h in range(h0,h1):
            for j in range(2):
                b_=XF+8*h+4*j; o=(28*h-row0+16*j)*256
                if o+2048<65536:
                    A(f'ds_read_b64_tr_b16 {vr(b_,2)}, v{vWOR} offset:{o}\nds_read_b64_tr_b16 {vr(b_+2,2)}, v{vWOR} offset:{o+2048}')
                else:
                    A(f'ds_read_b64_tr_b16 {vr(b_,2)}, v6 offset:{o-32768}\nds_read_b64_tr_b16 {vr(b_+2,2)}, v6 offset:{o+2048-32768}')
    A(f's_mul_i32 s46, s{sW}, 3584\nv_add_u32 v6, 32768, v{vWOR}')
    A.nop(8)
    pack_and_phi(accA)
    L1a=A.newlabel('L1a_skip')
    A(f's_cmp_lg_u32 s{sW}, 0\ns_cbranch_scc1 {L1a}')
    A(f'v_and_b32 v10, 15, v0\nv_lshlrev_b32 v10, 4, v10\nv_lshrrev_b32 v11, 4, v0\nv_lshlrev_b32 v11, 3, v11\nv_add_u32 v10, v10, v11')
    A(f's_lshl_b32 s47, s{sRB}, 8\ns_add_u32 s47, s47, s{sRED}\ns_mov_b32 s{sCNT}, 0')
    Lp=A.newlabel('L1a_poll'); Lpd=A.newlabel('L1a_done')
    A.label(Lp)
    for m in range(8):
        A(f's_waitcnt vmcnt({7-m})')
        A(f'v_mfma_f32_16x16x32_bf16 v[48:51], {vr(vSEL,4)}, {vr(LD[m],4)}, '+('0' if m==0 else 'v[48:51]'))
    A.nop(8)
    A(f'v_cmp_u_f32 vcc, v48, v48\ns_cbranch_vccz {Lpd}')
    if PSL: A(f's_sleep {PSL}')
    issue_1a()
    A(f's_add_u32 s{sCNT}, s{sCNT}, 1\ns_cmp_lt_u32 s{sCNT}, {SPIN}\ns_cbranch_scc1 {Lp}')
    A('s_waitcnt vmcnt(0)')
    A.label(Lpd)
    A('v_cvt_pk_bf16_f32 v52, v48, v49\nv_cvt_pk_bf16_f32 v53, v50, v51')
    A(f's_mov_b64 exec, {sr(sLO,2)}')
    A(f'buffer_store_dwordx2 v[52:53], v10, {sr(S_WS,4)}, s47 offen'+LSC)
    A('s_mov_b64 exec, -1')
    A.label(L1a)
    stamp('1a done')
    wo_dma(0,0,7)
    softmax(accA,'q',mid=lambda: wo_dma(0,7,14))
    wo_dma(0,14,20)
    stamp('softmax q done')
    if LOC: A(f'v_and_b32 v12, 7, v0\ns_lshl_b32 s{sT}, s{sRB}, 3\nv_add_u32 v12, s{sT}, v12\nv_lshlrev_b32 v{vF2A}, 7, v12')
    elif M16:
        A(f'v_and_b32 v12, 7, v0\nv_lshrrev_b32 v11, 1, v12\nv_and_b32 v12, 1, v12\nv_lshl_add_u32 v12, v12, 7, v11\ns_lshr_b32 s{sT}, s{sRB}, 4\ns_lshl_b32 s{sT}, s{sT}, 2\ns_and_b32 s{sT2}, s{sRB}, 15\ns_lshl_b32 s{sT2}, s{sT2}, 3\ns_add_u32 s{sT}, s{sT}, s{sT2}\nv_add_u32 v12, s{sT}, v12\nv_lshlrev_b32 v{vF2A}, 7, v12')
    elif M2D:
        A(f'v_and_b32 v12, 7, v0\nv_lshrrev_b32 v11, 2, v12\nv_and_b32 v12, 3, v12\nv_lshl_add_u32 v12, v12, 6, v11\ns_lshr_b32 s{sT}, s{sRB}, 3\ns_lshl_b32 s{sT}, s{sT}, 1\ns_and_b32 s{sT2}, s{sRB}, 7\ns_lshl_b32 s{sT2}, s{sT2}, 3\ns_add_u32 s{sT}, s{sT}, s{sT2}\nv_add_u32 v12, s{sT}, v12\nv_lshlrev_b32 v{vF2A}, 7, v12')
    else: A(f'v_and_b32 v12, 7, v0\nv_lshlrev_b32 v12, 5, v12\ns_and_b32 s{sT}, s2, 31\nv_add_u32 v12, s{sT}, v12\nv_lshlrev_b32 v{vF2A}, 7, v12')
    A(f's_mov_b32 s{sT}, {WS_FLAGB2}')
    A(f'buffer_load_dword v{vF2V}, v{vF2A}, {sr(S_WS,4)}, s{sT} offen sc1')
    Lp=A.newlabel('L1b_poll'); Lpd=A.newlabel('L1b_done')
    A(f's_lshl_b32 s{sT}, s{sA}, 12\ns_add_u32 s40, s{sT}, s{sRED}\ns_mov_b32 s{sCNT}, 0')
    A.label(Lp)
    for m in range(4):
        A(f'buffer_load_dwordx4 {vr(32+4*m,4)}, v{vL16}, {sr(S_WS,4)}, s40 offen offset:{m*1024} sc1')
    A('s_waitcnt vmcnt(0)')
    A('v_max3_u32 v10, v32, v33, v34')
    for k in range(35,47,2): A(f'v_max3_u32 v10, v10, v{k}, v{k+1}')
    A('v_max_u32 v10, v10, v47\nv_cmp_eq_u32 vcc, -1, v10')
    A(f's_cbranch_vccz {Lpd}')
    if PSL: A(f's_sleep {PSL}')
    A(f's_add_u32 s{sCNT}, s{sCNT}, 1\ns_cmp_lt_u32 s{sCNT}, {SPIN}\ns_cbranch_scc1 {Lp}')
    A.label(Lpd)
    A.vm=[]
    stamp('1b done')
    for m in range(4):
        A(f'v_mfma_f32_32x32x16_bf16 {vr(accA,16)}, {vr(32+4*m,4)}, {vr(PK+4*m,4)}, '+('0' if m==0 else vr(accA,16)))
    A.nop(16)
    A(f'v_mov_b32 v10, v{accA+12}\nv_mov_b32 v11, v{accA+12}\ns_nop 1\nv_permlane32_swap_b32 v10, v11')
    A('v_add_f32 v11, 0x358637bd, v11\nv_rcp_f32 v12, v11\ns_nop 0')
    for r in range(16):
        A(f'v_mul_f32 v{accA+r}, v12, v{accA+r}')
    for r in range(0,16,2):
        A(f'v_cvt_pk_bf16_f32 v{48+r//2}, v{accA+r}, v{accA+r+1}')
    A(f'v_cndmask_b32 v54, v54, v15, {sr(sHI,2)}\nv_cndmask_b32 v55, v55, v15, {sr(sHI,2)}')
    A.vm_op(f'buffer_store_dwordx4 v[48:51], v{vL16}, {sr(S_WS,4)}, s{sOB} offen sc1',tag='o')
    A.vm_op(f'buffer_store_dwordx4 v[52:55], v{vL16}, {sr(S_WS,4)}, s{sOB} offen offset:1024 sc1',tag='o')
    stamp('o published')
    A(f's_lshl_b32 s{sT}, s{sRB}, 1\n'+(f's_and_b32 s{sT2}, s{sP}, 1' if '--s3map' in sys.argv else f's_lshr_b32 s{sT2}, s{sP}, 2')+f'\ns_add_u32 s{sT}, s{sT}, s{sT2}\ns_mov_b32 s44, s{sT}\ns_lshl_b32 s{sT}, s{sT}, 15\ns_lshl_b32 s{sT2}, s{sW}, 13\ns_add_u32 s{sT}, s{sT}, s{sT2}\ns_add_u32 s40, s{sT}, {WS_OBUF}')
    A('s_barrier')
    Lw2=A.newlabel('Lwo2')
    A(f's_cmp_eq_u32 s{sACT}, 0\ns_cbranch_scc1 {Lw2}')
    wo_frags(0,11,0)
    A.label(Lw2)
    A('s_waitcnt lgkmcnt(0)\ns_barrier')
    NB4=int([a.split('=')[1] for a in sys.argv if a.startswith('--nb4=')][0]) if any(a.startswith('--nb4=') for a in sys.argv) else 5
    wo_dma(308,0,NB4)
    A(f's_waitcnt vmcnt({NB4})')
    chk_flags(vF2V,vF2A,WS_FLAGB2,S_WS)
    def issue_h2():
        for m in range(8):
            A(f's_add_u32 s{sT}, s40, {(m//4)*4096}')
            A(f'buffer_load_dwordx4 {vr(72+4*m,4)}, v{vL16}, {sr(S_WS,4)}, s{sT} offen offset:{(m%4)*1024} sc1')
    issue_h2()
    wo_dma(308,NB4,9)
    L_O=36864; L_OUT=69632
    A(f's_lshl_b32 s{sT}, s{sW}, 13\ns_add_u32 s{sT}, s{sT}, {L_O}\nv_add_u32 v7, s{sT}, v{vL16}\nv_add_u32 v8, {L_O}, v{vL16}')
    Lp=A.newlabel('Lh2_poll'); Lpd=A.newlabel('Lh2_done')
    A(f's_mov_b32 s{sCNT}, 0')
    A.label(Lp)
    A('s_waitcnt vmcnt(0)')
    A('v_max3_u32 v10, v72, v73, v74')
    for k in range(75,103,2): A(f'v_max3_u32 v10, v10, v{k}, v{k+1}')
    A('v_max_u32 v10, v10, v103\nv_cmp_eq_u32 vcc, -1, v10')
    A(f's_cbranch_vccz {Lpd}')
    if PSL: A(f's_sleep {PSL}')
    issue_h2()
    A(f's_add_u32 s{sCNT}, s{sCNT}, 1\ns_cmp_lt_u32 s{sCNT}, {SPIN}\ns_cbranch_scc1 {Lp}')
    A('s_waitcnt vmcnt(0)')
    A.label(Lpd)
    stamp('hop2 loaded')
    for m in range(8): A(f'ds_write_b128 v7, {vr(72+4*m,4)} offset:{m*1024}')
    A('s_waitcnt lgkmcnt(0)\ns_barrier')
    Le=A.newlabel('LB_s3skip')
    A(f's_cmp_eq_u32 s{sACT}, 0\ns_cbranch_scc1 {Le}')
    wo_frags(11,16,308)
    OB=[[32,36,40,44],[48,52,56,60]]
    def rdo(g):
        for m in range(4): A(f'ds_read_b128 {vr(OB[g&1][m],4)}, v8 offset:{(g*4+m)*1024}')
    rdo(0)
    for g in range(8):
        if g+1<8: rdo(g+1)
        for m in range(4):
            f=g*4+m
            A(f's_waitcnt lgkmcnt({(3-m)+(4 if g+1<8 else 0)})')
            A(f'v_mfma_f32_32x32x16_bf16 {vr(accA,16)}, {vr(XF+4*f,4)}, {vr(OB[g&1][m],4)}, '+('0' if f==0 else vr(accA,16)))
    A(f'v_and_b32 v10, 31, v0\nv_mul_u32_u24 v10, 272, v10\nv_lshrrev_b32 v11, 5, v0\nv_lshlrev_b32 v11, 4, v11\nv_add_u32 v10, v10, v11\ns_lshl_b32 s{sT}, s{sW}, 6\ns_add_u32 s{sT}, s{sT}, {L_OUT}\nv_add_u32 v10, s{sT}, v10')
    A.nop(6)
    for r in range(0,16,2):
        A(f'v_cvt_pk_bf16_f32 v{64+r//2}, v{accA+r}, v{accA+r+1}')
    A('s_nop 1')
    A('v_permlane32_swap_b32 v64, v66\nv_permlane32_swap_b32 v65, v67\nv_permlane32_swap_b32 v68, v70\nv_permlane32_swap_b32 v69, v71')
    A('s_nop 0\nds_write_b128 v10, v[64:67]\nds_write_b128 v10, v[68:71] offset:32')
    A.label(Le)
    A(f'v_lshrrev_b32 v10, 4, v0\ns_lshl_b32 s{sT}, s{sW}, 3\nv_add_u32 v10, s{sT}, v10\nv_and_b32 v11, 15, v0\nv_lshlrev_b32 v11, 4, v11')
    A(f'v_mul_u32_u24 v12, 272, v10\nv_add_u32 v12, v12, v11\nv_add_u32 v12, {L_OUT}, v12')
    A(f's_lshl_b32 s{sT}, s44, 5\nv_add_u32 v10, s{sT}, v10\nv_mul_u32_u24 v10, 1792, v10\nv_add_u32 v10, v10, v11\ns_add_u32 s{sT}, s45, 896')
    A('s_waitcnt lgkmcnt(0)\ns_barrier')
    A('ds_read_b128 v[64:67], v12\nds_read_b128 v[68:71], v12 offset:1088')
    Lm=A.newlabel('Lmask')
    A(f's_cmp_lg_u32 s45, 768\ns_cbranch_scc1 {Lm}\ns_mov_b32 exec_lo, 0x00ff00ff\ns_mov_b32 exec_hi, 0x00ff00ff')
    A.label(Lm)
    A('s_waitcnt lgkmcnt(0)')
    A(f'buffer_store_dwordx4 v[64:67], v10, {sr(S_OUT,4)}, s{sT} offen'+OSC)
    A(f's_add_u32 s{sT}, s{sT}, {4*1792}')
    A(f'buffer_store_dwordx4 v[68:71], v10, {sr(S_OUT,4)}, s{sT} offen'+OSC+'\ns_mov_b64 exec, -1')
    stamp('B end')
    Lx=A.newlabel('LB_exit')
    A(f's_or_b32 s{sT}, s2, s{sW}\ns_cmp_lg_u32 s{sT}, 0\ns_cbranch_scc1 {Lx}')
    if not NOA:
        for k in range(4):
            L=A.newlabel('Lep'); Ld=A.newlabel('Lepd')
            A(f'v_lshlrev_b32 v10, 7, v0\ns_mov_b32 s{sT}, {WS_FLAGA1+k*64*128}\ns_mov_b32 s{sCNT}, 0')
            if k==3: A('s_mov_b32 exec_hi, 0')
            A.label(L)
            A(f'buffer_load_dword v11, v10, {sr(S_WS,4)}, s{sT} offen sc1\ns_waitcnt vmcnt(0)\nv_cmp_ne_u32 vcc, s{sN}, v11\ns_cbranch_vccz {Ld}')
            A(f's_add_u32 s{sCNT}, s{sCNT}, 1\ns_cmp_lt_u32 s{sCNT}, {SPIN}\ns_cbranch_scc1 {L}')
            A.label(Ld)
    A(f's_mov_b64 exec, 0xff\nv_mov_b32 v10, s{sN}\nv_mov_b32 v11, s{sN}\nv_mov_b32 v12, s{sN}\nv_mov_b32 v13, s{sN}\ns_mov_b32 s{sT}, {WS_EPOCH}')
    A(f'buffer_store_dwordx4 v[10:13], v{vL16}, {sr(S_WS,4)}, s{sT} offen sc1\ns_mov_b64 exec, -1')
    A.label(Lx)
    prof_flush(S_WS,sW)
    A('s_endpgm')

def f32(x):
    import struct
    return '0x%08x'%struct.unpack('<I',struct.pack('<f',x))[0]
import math
aU=8; aWS=12; aOUT=16
aRE=40
aDS=56
aG=20; aTB=21; aAI=22; aWv=23; aC=24; aHF=25; aT=26; aT2=27; aWB=28; aSH=29; aLD=30; aCNT=67
KT_W=16880; KT_R=528
LA_UIMG=0; LA_T2=8192
LA_UC=67520; UC_S=4576; UPAD=480
LA_T=76672; T_S=2624
LA_C=16384; C_CH=16640; C_M=4160
LA_UIMG2=0; LA_YIMG=8192
LA_EX=16384; LA_Y=32768
XB=2047
def a_flag_store(base):
    L=A.newlabel('Lafs')
    A(f's_cmp_lg_u32 s{aWv}, 0\ns_cbranch_scc1 {L}')
    A(f's_lshl_b32 s{aT}, s{aAI}, 7\ns_add_u32 s{aT}, s{aT}, {base}\nv_mov_b32 v10, s{sN}\nv_mov_b32 v11, s{sN}\nv_mov_b32 v12, s{sN}\nv_mov_b32 v13, s{sN}\ns_mov_b64 exec, 0xff')
    A(f'buffer_store_dwordx4 v[10:13], v9, {sr(aWS,4)}, s{aT} offen sc1\ns_mov_b64 exec, -1\ns_nop 1')
    A.label(L)
def a_flag_poll(base):
    L=A.newlabel('Lafp'); Ld=A.newlabel('Lafd')
    A(f's_cmp_lg_u32 s{aWv}, 0\ns_cbranch_scc1 {Ld}')
    A(f's_lshl_b32 s{aT}, s{aG}, 12\ns_add_u32 s{aT}, s{aT}, {base}\nv_lshlrev_b32 v2, 7, v0\ns_mov_b32 s{aCNT}, 0\ns_mov_b32 exec_hi, 0')
    A.label(L)
    A(f'buffer_load_dword v3, v2, {sr(aWS,4)}, s{aT} offen sc1\ns_waitcnt vmcnt(0)')
    A(f'v_cmp_ne_u32 vcc, s{sN}, v3\ns_cbranch_vccz {Ld}')
    A(f's_sleep 2\ns_add_u32 s{aCNT}, s{aCNT}, 1\ns_cmp_lt_u32 s{aCNT}, {SPIN}\ns_cbranch_scc1 {L}')
    A.label(Ld)
    A('s_mov_b64 exec, -1\ns_waitcnt lgkmcnt(0)\ns_barrier')
    A.vm=[]

def gen_A():
    A.label('L_A')
    A.vm=[]
    if ASTOP==9:
        A('s_sleep 127\ns_sleep 127\ns_sleep 127\ns_endpgm'); return
    if '--aprio' in sys.argv: A('s_setprio 3')
    stamp('A start')
    A('s_load_dwordx16 s[40:55], s[0:1], 0\ns_load_dwordx2 s[56:57], s[0:1], 64\ns_load_dwordx2 s[58:59], s[0:1], 104\ns_load_dwordx2 s[60:61], s[0:1], 120')
    A(f'v_lshrrev_b32 v1, 6, v0\nv_and_b32 v0, 63, v0\ns_nop 0\nv_readfirstlane_b32 s{aWv}, v1')
    A((f's_and_b32 s{aT}, s2, 7\ns_cmp_eq_u32 s{aT}, 7\ns_cbranch_scc1 L_exit\ns_lshl_b32 s{aT}, s{aT}, 5\ns_lshr_b32 s{aAI}, s2, 3\ns_add_u32 s{aAI}, s{aAI}, s{aT}\n' if LOC else f's_mov_b32 s{aAI}, s2\n')+f's_lshr_b32 s{aG}, s{aAI}, 5\ns_and_b32 s{aTB}, s{aAI}, 31\nv_lshlrev_b32 v9, 4, v0\nv_lshrrev_b32 v2, 3, v0\nv_and_b32 v3, 7, v0\nv_lshlrev_b32 v3, 4, v3')
    A(f's_lshr_b32 s{aC}, s{aWv}, 1\ns_and_b32 s{aHF}, s{aWv}, 1\ns_lshl_b32 s{aWB}, s{aWv}, 11\ns_lshl_b32 s{aT}, s{aWv}, 4\nv_add_u32 v2, s{aT}, v2')
    A('v_mul_u32_u24 v4, 896, v2\nv_add_u32 v4, v4, v3')
    A('v_lshlrev_b32 v5, 7, v2\nv_add_u32 v5, v5, v3')
    sUT=31
    A(f's_mul_i32 s{sUT}, s{aTB}, 57344\ns_lshl_b32 s{aT}, s{aG}, 7\ns_add_u32 s{sUT}, s{sUT}, s{aT}')
    A(f's_lshl_b32 s{aT}, s{aAI}, 1\ns_add_u32 s{aT}, s{aT}, s{aC}\ns_lshl_b32 s{aT}, s{aT}, 9\ns_lshl_b32 s{aT2}, s{aHF}, 8\ns_add_u32 s{aT}, s{aT}, s{aT2}\nv_lshlrev_b32 v6, 2, v0\nv_add_u32 v6, s{aT}, v6')
    A('s_waitcnt lgkmcnt(0)')
    srd(aU,40,1835008)
    for j in range(2):
        A(f's_add_u32 m0, s{aWB}, {LA_UIMG+j*1024}\ns_add_u32 s{aT}, s{sUT}, {j*7168}')
        A.vm_op(f'buffer_load_dwordx4 v4, {sr(aU,4)}, s{aT} offen lds',tag='ut')
    LA_PAR=17408
    A(f's_lshl_b32 s{aT}, s{aAI}, 10\nv_add_u32 v6, s{aT}, v9')
    Lq=[A.newlabel('Lpar') for _ in range(5)]
    for w in range(4):
        A(f's_cmp_lg_u32 s{aWv}, {w}\ns_cbranch_scc1 {Lq[w]}')
        A(f's_mov_b32 m0, {LA_PAR+w*1024}\ns_nop 0\nglobal_load_lds_dwordx4 v6, s[{42+2*w}:{43+2*w}]')
        if w<2: A(f's_mov_b32 m0, {LA_PAR+(w+4)*1024}\ns_nop 0\nglobal_load_lds_dwordx4 v6, s[{42+2*(w+4)}:{43+2*(w+4)}]')
        A(f's_branch {Lq[4]}')
        A.label(Lq[w])
    A.label(Lq[4])
    A.vm.append('par')
    srd(aWS,60,WS_SIZE); srd(aOUT,58,3670016)
    A(f's_load_dword s{sN}, s[60:61], {WS_EPOCH}')
    A(f's_lshl_b32 s{aT}, s{aAI}, 2\ns_add_u32 s54, s54, s{aT}\ns_addc_u32 s55, s55, 0\ns_load_dword s{aLD}, s[54:55], 0')
    A('v_mov_b32 v10, -1\nv_mov_b32 v11, -1\nv_mov_b32 v12, -1\nv_mov_b32 v13, -1')
    if LOC: A(f's_and_b32 s34, s{aAI}, 31\ns_lshl_b32 s34, s34, 3\ns_add_u32 s34, s34, s{aG}')
    else: A(f's_mov_b32 s34, s{aAI}')
    Lc=A.newlabel('Lclr')
    def clears():
        A.label(Lc)
        if not NOCLR:
            if LOC: A('s_lshr_b32 s35, s34, 3\ns_and_b32 s36, s34, 7')
            elif M16: A('s_bfe_u32 s35, s34, 0x10002\ns_lshl_b32 s35, s35, 4\ns_bfe_u32 s36, s34, 0x40003\ns_add_u32 s35, s35, s36\ns_and_b32 s36, s34, 3\ns_lshl_b32 s36, s36, 1\ns_lshr_b32 s37, s34, 7\ns_add_u32 s36, s36, s37')
            elif M2D: A('s_bfe_u32 s35, s34, 0x20001\ns_lshl_b32 s35, s35, 3\ns_bfe_u32 s36, s34, 0x30003\ns_add_u32 s35, s35, s36\ns_and_b32 s36, s34, 1\ns_lshl_b32 s36, s36, 2\ns_lshr_b32 s37, s34, 6\ns_add_u32 s36, s36, s37')
            else: A(f's_and_b32 s35, s34, 7\ns_lshl_b32 s35, s35, 2\ns_lshr_b32 s36, s34, 3\ns_and_b32 s36, s36, 3\ns_add_u32 s35, s35, s36\ns_lshr_b32 s36, s34, 5')
            A(f's_lshl_b32 s37, s36, 5\ns_add_u32 s37, s37, s35\ns_mul_i32 s37, s37, {PSTR}\ns_add_u32 s37, s37, s{aWB}\ns_add_u32 s37, s37, {WS_PART}')
            A(f'buffer_store_dwordx4 v[10:13], v9, {sr(aWS,4)}, s37 offen{LSC}\nbuffer_store_dwordx4 v[10:13], v9, {sr(aWS,4)}, s37 offen offset:1024{LSC}')
            Lr=A.newlabel('Lred')
            A(f's_cmp_lg_u32 s{aWv}, 0\ns_cbranch_scc1 {Lr}')
            A(f's_lshl_b32 s37, s36, 13\ns_lshl_b32 s38, s35, 8\ns_add_u32 s37, s37, s38\ns_add_u32 s37, s37, {WS_RED}\ns_mov_b64 exec, 0xffff')
            A(f'buffer_store_dwordx4 v[10:13], v9, {sr(aWS,4)}, s37 offen{LSC}\ns_mov_b64 exec, -1')
            A.label(Lr)
        if not LOC: A(f's_add_u32 s34, s34, 224\ns_cmp_lt_u32 s34, 256\ns_cbranch_scc1 {Lc}')
    A(f'v_lshrrev_b32 v7, 4, v0\nv_lshlrev_b32 v7, 3, v7\nv_bfe_u32 v8, v0, 2, 2\nv_add_u32 v7, v7, v8\nv_lshlrev_b32 v7, 7, v7\nv_and_b32 v8, 3, v0\nv_lshlrev_b32 v8, 3, v8\nv_add_u32 v7, v7, v8\ns_lshl_b32 s{aT}, s{aWv}, 5\nv_add_u32 v7, s{aT}, v7')
    A(f'v_and_b32 v8, 15, v0\ns_lshl_b32 s{aT}, s{aWv}, 4\nv_add_u32 v8, s{aT}, v8\nv_mul_u32_u24 v8, 144, v8\nv_lshrrev_b32 v14, 4, v0\nv_lshlrev_b32 v14, 4, v14\nv_add_u32 v8, v8, v14')
    A('v_mul_u32_u24 v14, 144, v2\nv_add_u32 v14, v14, v3')
    sTT=63
    A(f's_mul_i32 s{sTT}, s{aAI}, {TSTR}')
    A(f's_mul_i32 s{aT}, s{aWv}, {KT_W}\nv_lshlrev_b32 v57, 3, v0\nv_add_u32 v57, s{aT}, v57')
    A(f'v_and_b32 v58, 31, v0\nv_mul_u32_u24 v58, {KT_R}, v58\nv_lshrrev_b32 v59, 5, v0\nv_lshlrev_b32 v59, 4, v59\nv_add_u32 v58, v58, v59\nv_add_u32 v58, s{aT}, v58')
    A(f'v_mul_u32_u24 v1, {T_S}, v0\nv_add_u32 v1, {LA_T+2600}, v1\nv_mov_b32 v14, 0\ns_mov_b64 exec, 3\nds_write_b32 v1, v14\ns_mov_b64 exec, -1')
    A('v_mul_u32_u24 v14, 144, v2\nv_add_u32 v14, v14, v3')
    A.vm_drain()
    A('s_barrier')
    A(f's_lshl_b32 s{aT}, s{aC}, 9\ns_lshl_b32 s{aT2}, s{aHF}, 8\ns_add_u32 s{aT}, s{aT}, s{aT2}\nv_lshlrev_b32 v6, 2, v0\nv_add_u32 v6, s{aT}, v6')
    for k in range(6): A(f'ds_read_b32 v{32+k}, v6 offset:{17408+k*1024}')
    for it in range(2):
        A(f'ds_read_b64_tr_b16 {vr(64+4*it,2)}, v7 offset:{LA_UIMG+it*4096}\nds_read_b64_tr_b16 {vr(66+4*it,2)}, v7 offset:{LA_UIMG+it*4096+512}')
    A('s_waitcnt lgkmcnt(0)')
    for it in range(2): A(f'ds_write_b128 v8, {vr(64+4*it,4)} offset:{LA_T2+64*it}')
    for j in range(2): A(f'ds_read_b128 {vr(72+4*j,4)}, v14 offset:{LA_T2+j*8*144}')
    A('s_waitcnt lgkmcnt(0)')
    for j in range(2):
        A(f's_add_u32 s{aT}, s{sTT}, {WS_UT+j*1024}')
        A.vm_op(f'buffer_store_dwordx4 {vr(72+4*j,4)}, v5, {sr(aWS,4)}, s{aT} offen'+LSC,tag='uts')
    clears()
    A('s_getpc_b64 s[64:65]')
    A.label('L_pc')
    A('s_add_u32 s64, s64, L_tab-L_pc\ns_addc_u32 s65, s65, 0')
    A(f's_lshl_b32 s{aT}, s{aWv}, 6\nv_add_u32 v1, s{aT}, v0\nv_lshlrev_b32 v6, 4, v1\nv_lshlrev_b32 v1, 3, v1\nv_add_u32 v1, {256*16}, v1')
    A.vm_op('global_load_dwordx4 v[172:175], v6, s[64:65]',tag='tab'); A.vm_op('global_load_dwordx2 v[176:177], v1, s[64:65]',tag='tab')
    stamp('A uT stored')
    if '--aprio' in sys.argv: A(f's_setprio {AP1}')
    A(f's_lshl_b32 s{aT}, s{aC}, 4\ns_lshr_b32 s{aLD}, s{aLD}, s{aT}\ns_lshl_b32 s{aLD}, s{aLD}, 16')
    A(f'v_mov_b32 v14, s{aLD}\nv_mul_f32 v14, {hex(LOG2E)}, v14\nv_exp_f32 v14, v14\ns_nop 0\nv_cvt_pk_bf16_f32 v14, v14, v14\nv_lshlrev_b32 v15, 16, v14')
    BS=[192,224]
    for st in range(2):
        B_=BS[st]
        for k in range(6):
            if st==0: A(f'v_lshlrev_b32 v{B_+k}, 16, v{32+k}')
            else: A(f'v_and_b32 v{B_+k}, 0xffff0000, v{32+k}')
        for k in range(4): A(f'v_mul_f32 v{B_+k}, v15, v{B_+k}')
    for st in range(2):
        B_=BS[st]
        A(f'v_mul_f32 v60, v{B_+5}, v{B_+3}\nv_mul_f32 v61, v{B_+5}, v{B_+2}\nv_fma_f32 v{B_+6}, v{B_+4}, v{B_+2}, -v60\nv_fma_f32 v{B_+7}, -v{B_+4}, v{B_+3}, -v61')
    for off,k,conj in ((10,8,False),(8,1,True),(12,256,True)):
        for st in range(2):
            B_=BS[st]; t=60+2*st
            A(f'v_mul_f32 v{t}, {f32(k*math.log2(math.e))}, v{B_}\nv_mul_f32 v{t+1}, {f32(k/(2*math.pi))}, v{B_+1}')
        for st in range(2):
            t=60+2*st
            A(f'v_exp_f32 v{t}, v{t}\nv_fract_f32 v{t+1}, v{t+1}')
        for st in range(2):
            B_=BS[st]; t=60+2*st
            A(f'v_cos_f32 v{B_+off}, v{t+1}\nv_sin_f32 v{B_+off+1}, v{t+1}')
        for st in range(2):
            B_=BS[st]; t=60+2*st
            A(f'v_mul_f32 v{B_+off}, v{t}, v{B_+off}')
            A(f'v_mul_f32 v{B_+off+1}, v{t}, v{B_+off+1}' if not conj else f'v_mul_f32_e64 v{B_+off+1}, -v{t}, v{B_+off+1}')
    def cm2(d,z,m):
        if '--nokv' in sys.argv: return
        for st in range(2):
            B_=BS[st]
            A(f'v_mul_f32 v{B_+30}, v{B_+z+1}, v{B_+m+1}\nv_mul_f32 v{B_+d+1}, v{B_+z+1}, v{B_+m}')
        for st in range(2):
            B_=BS[st]
            A(f'v_fmac_f32 v{B_+d+1}, v{B_+z}, v{B_+m+1}\nv_fma_f32 v{B_+d}, v{B_+z}, v{B_+m}, -v{B_+30}')
    cm2(14,12,12)
    cm2(16,14,14)
    A.vm_drain()
    A('s_barrier')
    A(f's_add_u32 s{sN}, s{sN}, {NONCE_C}')
    a_flag_store(WS_FLAGA1)
    stamp('A flag1 set')
    if ASTOP==1:
        prof_flush(aWS,aWv,256); A('s_endpgm'); return
    rot=[0]
    WT=[40,42,44,46,48,50,52,54]
    def wr2(offs,row):
        t=WT[rot[0]%len(WT)]; rot[0]+=1
        A(f'v_cvt_pk_bf16_f32 v{t}, v{BS[0]+offs}, v{BS[0]+offs+1}\nv_cvt_pk_bf16_f32 v{t+1}, v{BS[1]+offs}, v{BS[1]+offs+1}')
        if '--nokw' not in sys.argv: A(f'ds_write_b64 v57, {vr(t,2)} offset:{row*KT_R}')
    A('v_mov_b32 v54, 0x3f80\nv_mov_b32 v55, 0x3f80\nds_write_b64 v57, v[54:55] offset:0')
    wr2(10,1)
    cm2(18,10,10); wr2(18,2)
    for j in range(3,32):
        cm2(18,18,10); wr2(18,j)
    A('s_waitcnt lgkmcnt(0)')
    for kk in range(16): A(f'ds_read_b128 {vr(64+4*kk,4)}, v58 offset:{32*kk}')
    stamp('A E done')
    if ASTOP==2:
        prof_flush(aWS,aWv,256); A('s_endpgm'); return
    A('s_waitcnt lgkmcnt(0)')
    wr2(6,0)
    cm2(18,6,8); wr2(18,1)
    cm2(20,18,8); wr2(20,2)
    cm2(18,20,8); wr2(18,3)
    cm2(22,18,8); wr2(22,4)
    cm2(18,22,8); wr2(18,5)
    cm2(24,18,8); wr2(24,6)
    cm2(18,24,8); wr2(18,7)
    for r,src in enumerate((6,20,22,24)):
        cm2(18,src,12); wr2(18,8+r)
    cm2(26,6,14); wr2(26,12)
    cm2(28,22,14); wr2(28,13)
    cm2(26,26,12); wr2(26,14)
    cm2(28,28,12); wr2(28,15)
    cm2(18,6,16); wr2(18,16)
    for r in range(17,21):
        cm2(18,18,12); wr2(18,r)
    a_flag_poll(WS_FLAGA1)
    A(f'v_lshrrev_b32 v2, 3, v0\nv_mul_u32_u24 v2, {TSTR}, v2\nv_and_b32 v3, 7, v0\nv_lshlrev_b32 v3, 4, v3\nv_add_u32 v60, v2, v3')
    A(f's_lshl_b32 s{aT}, s{aG}, 5\ns_lshl_b32 s{aT2}, s{aHF}, 4\ns_add_u32 s{aT}, s{aT}, s{aT2}\ns_mul_i32 s{aT}, s{aT}, {TSTR}')
    A(f's_lshl_b32 s{aT2}, s{aAI}, 1\ns_add_u32 s{aT2}, s{aT2}, s{aC}\ns_and_b32 s{aT2}, s{aT2}, 63\ns_lshl_b32 s{aT2}, s{aT2}, 7\ns_add_u32 s62, s{aT}, s{aT2}')
    A(f's_mul_i32 s35, s{aC}, {UC_S}\ns_lshl_b32 s{aT2}, s{aHF}, 11\ns_add_u32 s35, s35, s{aT2}\ns_add_u32 s35, s35, {LA_UC+UPAD}')
    for j in range(2):
        A(f's_add_u32 m0, s35, {j*1024}\ns_add_u32 s{aT}, s62, {WS_UT+j*8*TSTR}')
        A.vm_op(f'buffer_load_dwordx4 v60, {sr(aWS,4)}, s{aT} offen sc1 lds',tag='uc')
    A('v_mov_b32 v10, 0\nv_mov_b32 v11, 0\nv_mov_b32 v12, 0\nv_mov_b32 v13, 0')
    A(f's_mul_i32 s{aT}, s{aC}, {UC_S}\ns_add_u32 s{aT}, s{aT}, {LA_UC}\nv_add_u32 v2, s{aT}, v9\ns_mov_b32 exec_lo, 0x3fffffff\ns_mov_b32 exec_hi, 0\nds_write_b128 v2, v[10:13]\ns_mov_b64 exec, -1')
    A('s_waitcnt lgkmcnt(0)')
    for g in range(4):
        for k in range(4): A(f'ds_read_b128 {vr(128+16*(g&1)+4*k,4)}, v58 offset:{32*(4*g+k)}')
        if g>=1:
            for k in range(4):
                kk=4*(g-1)+k
                A(f's_waitcnt lgkmcnt({7-k})')
                A(f'v_mfma_f32_32x32x16_bf16 v[16:31], {vr(128+16*((g-1)&1)+4*k,4)}, {vr(64+4*kk,4)}, '+('0' if kk==0 else 'v[16:31]'))
    for k in range(4):
        kk=12+k
        A(f's_waitcnt lgkmcnt({3-k})')
        A(f'v_mfma_f32_32x32x16_bf16 v[16:31], {vr(128+16+4*k,4)}, {vr(64+4*kk,4)}, v[16:31]')
    A.vm_wait('tab')
    A(f'v_mov_b32 v1, {LA_T}')
    for i in range(11):
        r=172+i//2 if i<8 else 176+(i-8)//2
        A(f'v_add_u32_sdwa v{160+i}, v1, v{r} dst_sel:DWORD dst_unused:UNUSED_PAD src0_sel:DWORD src1_sel:WORD_{i%2}')
    A(f's_mul_i32 s{aT}, s{aC}, {T_S}\ns_add_u32 s{aT}, s{aT}, {LA_T}')
    A('v_and_b32 v3, 31, v0\nv_lshrrev_b32 v4, 5, v0\nv_cmp_eq_u32 vcc, 1, v4')
    A(f'v_lshlrev_b32 v10, 5, v3\nv_lshlrev_b32 v6, 4, v4\nv_add_u32 v10, v10, v6\nv_add_u32 v10, s{aT}, v10')
    A('v_lshlrev_b32 v6, 4, v3\nv_add_u32 v6, 1024, v6\nv_lshlrev_b32 v7, 3, v3\nv_add_u32 v7, 1536, v7\nv_cndmask_b32 v6, v6, v7, vcc')
    A('v_add_u32 v7, 8, v6\nv_add_u32 v8, 256, v6\nv_cndmask_b32 v7, v7, v8, vcc')
    A(f'v_add_u32 v6, s{aT}, v6\nv_add_u32 v7, s{aT}, v7')
    A('v_lshlrev_b32 v8, 2, v3\nv_add_u32 v8, 2048, v8\nv_mov_b32 v14, 2560\nv_cndmask_b32 v8, v8, v14, vcc')
    A(f'v_add_u32 v8, s{aT}, v8')
    A(f'v_lshrrev_b32 v3, 3, v0\ns_lshl_b32 s{aT}, s{aWv}, 4\nv_add_u32 v3, s{aT}, v3\nv_and_b32 v4, 7, v0\nv_lshlrev_b32 v4, 4, v4')
    A('v_mul_u32_u24 v5, 896, v3\nv_add_u32 v5, v5, v4\nv_lshlrev_b32 v61, 7, v3\nv_add_u32 v61, v61, v4')
    A.nop(2)
    stamp('A kgen done')
    A(f's_mul_i32 s{aT}, s{aWv}, {KT_W}\nv_add_u32 v2, s{aT}, v9\ns_xor_b32 s{aT}, s{aWv}, 1\ns_mul_i32 s{aT}, s{aT}, {KT_W}\nv_add_u32 v12, s{aT}, v9')
    Lh1=A.newlabel('Lkh1'); Lh2=A.newlabel('Lkh2')
    A(f's_cmp_lg_u32 s{aHF}, 0\ns_cbranch_scc1 {Lh1}')
    A('ds_write_b128 v2, v[24:27]\ns_waitcnt lgkmcnt(0)\ns_barrier')
    A('ds_read_b128 v[64:67], v12\nds_read_b128 v[68:71], v12 offset:1024\ns_waitcnt lgkmcnt(0)')
    for k in range(8): A(f'v_add_f32 v{16+k}, v{16+k}, v{64+k}')
    A('ds_write_b128 v10, v[16:19]\nds_write_b64 v6, v[20:21]\nds_write_b64 v7, v[22:23]')
    A(f's_branch {Lh2}')
    A.label(Lh1)
    A('ds_write_b128 v2, v[16:19]\nds_write_b128 v2, v[20:23] offset:1024\ns_waitcnt lgkmcnt(0)\ns_barrier')
    A('ds_read_b128 v[64:67], v12\ns_waitcnt lgkmcnt(0)')
    A('v_add_f32 v24, v24, v64\nv_add_f32 v25, v25, v65\nv_add_f32 v26, v26, v66\nv_add_f32 v27, v27, v67')
    A('s_mov_b32 exec_hi, 1\nds_write_b32 v8, v24\ns_mov_b32 exec_hi, 0')
    A('ds_write_b32 v8, v25 offset:128\nds_write_b32 v8, v26 offset:256\nds_write_b32 v8, v27 offset:384\ns_mov_b32 exec_hi, -1')
    A.label(Lh2)
    A(f's_lshl_b32 s{aT}, s{aWv}, 6\nv_add_u32 v2, s{aT}, v0\nv_lshlrev_b32 v4, 4, v2')
    A('s_waitcnt lgkmcnt(0)')
    stamp('A adds done')
    A('s_barrier')
    for c in range(2):
        for i in range(11): A(f'ds_read_b32 v{64+16*c+i}, v{160+i} offset:{c*T_S}')
    for j in range(2):
        A(f's_add_u32 m0, s{aWB}, {LA_UIMG2+j*1024}\ns_add_u32 s{aT}, s{sUT}, {j*7168}')
        A.vm_op(f'buffer_load_dwordx4 v5, {sr(aU,4)}, s{aT} offen lds',tag='ut2')
    A(f'v_lshrrev_b32 v6, 4, v0\nv_lshlrev_b32 v6, 4, v6\ns_lshl_b32 s{aT}, s{aG}, 7\nv_add_u32 v6, s{aT}, v6')
    A.vm_op('global_load_dwordx4 v[184:187], v6, s[56:57]',tag='d'); A.vm_op('global_load_dwordx4 v[188:191], v6, s[56:57] offset:64',tag='d')
    A(f'v_lshrrev_b32 v7, 1, v0\nv_and_b32 v8, 3, v7\nv_mul_u32_u24 v8, {C_M}, v8\nv_lshrrev_b32 v7, 2, v7\nv_mul_u32_u24 v7, {C_CH}, v7\nv_add_u32 v8, v8, v7\nv_and_b32 v7, 1, v0\nv_lshlrev_b32 v7, 4, v7\nv_add_u32 v8, v8, v7')
    A('v_mov_b32 v10, 0\nv_mov_b32 v11, 0\nv_mov_b32 v12, 0\nv_mov_b32 v13, 0\ns_mov_b64 exec, 0xffff')
    A(f'ds_write_b128 v8, v[10:13] offset:{LA_C+4096}\ns_mov_b64 exec, -1')
    for c in range(2):
        A(f's_waitcnt lgkmcnt({12 if c==0 else 4})')
        g=64+16*c
        for m in range(4):
            for d in range(4): A(f'v_cvt_pk_bf16_f32 v{96+4*m+d}, v{g+m+2*d}, v{g+m+2*d+1}')
        for m in range(4): A(f'ds_write_b128 v4, {vr(96+4*m,4)} offset:{LA_C+c*C_CH+m*C_M}')
    stamp('A copies issued')
    A('v_and_b32 v2, 15, v0\nv_lshrrev_b32 v3, 4, v0\nv_and_b32 v5, 1, v3\nv_lshrrev_b32 v6, 1, v3')
    A(f'v_sub_u32 v7, 3, v2\nv_and_b32 v7, 3, v7')
    A(f'v_lshlrev_b32 v8, 4, v6\nv_add_u32 v8, v8, v2\nv_lshlrev_b32 v14, 3, v5\nv_sub_u32 v8, v8, v14\nv_add_u32 v8, v8, v7')
    A(f'v_sub_u32 v8, {XB}, v8\nv_lshlrev_b32 v8, 1, v8\nv_mul_u32_u24 v14, {C_M}, v7\nv_add_u32 v8, v8, v14')
    A(f's_mul_i32 s{aT}, s{aC}, {C_CH}\ns_lshl_b32 s{aT2}, s{aHF}, 8\ns_sub_u32 s{aT}, s{aT}, s{aT2}\ns_add_u32 s{aT}, s{aT}, {LA_C-64*59}\nv_add_u32 v48, s{aT}, v8')
    A('v_lshlrev_b32 v7, 4, v5\nv_lshlrev_b32 v8, 5, v6\nv_sub_u32 v7, v7, v8\nv_lshlrev_b32 v14, 5, v2\nv_add_u32 v14, v14, v7')
    A(f's_mul_i32 s{aT}, s{aC}, {UC_S}\ns_sub_u32 s{aT}, s{aT}, s{aT2}\ns_add_u32 s{aT}, s{aT}, {LA_UC+UPAD-192}\nv_add_u32 v56, s{aT}, v14')
    A.vm_wait('uc',' lgkmcnt(0)')
    A('s_barrier')
    stamp('A conv start')
    AB=[64,128]; BB=[96,192]
    def rdconv(rr):
        s_=rr&1
        for w in range(8): A(f'ds_read_b128 {vr(BB[s_]+4*w,4)}, v56 offset:{512*w+64*(3-rr)}')
        for q in range(8):
            o=64*(59-(8*q+rr))
            A(f'ds_read_b64 {vr(AB[s_]+4*q,2)}, v48 offset:{o}\nds_read_b64 {vr(AB[s_]+4*q+2,2)}, v48 offset:{o+8}')
    def rdlist(rr):
        s_=rr&1; L=[]
        for w in range(8): L.append(f'ds_read_b128 {vr(BB[s_]+4*w,4)}, v56 offset:{512*w+64*(3-rr)}')
        for q in range(8):
            o=64*(59-(8*q+rr))
            L.append(f'ds_read_b64 {vr(AB[s_]+4*q,2)}, v48 offset:{o}'); L.append(f'ds_read_b64 {vr(AB[s_]+4*q+2,2)}, v48 offset:{o+8}')
        return L
    for x in rdlist(0): A(x)
    for rr in range(4):
        s_=rr&1
        A('s_waitcnt lgkmcnt(0)')
        nxt=rdlist(rr+1) if rr<3 else []
        n=0
        for q in range(8):
            for w in range(8-q):
                t=q+w
                cin='0' if (rr==0 and q==0) else vr(16+4*t,4)
                A(f'v_mfma_f32_16x16x32_bf16 {vr(16+4*t,4)}, {vr(AB[s_]+4*q,4)}, {vr(BB[s_]+4*w,4)}, {cin}')
                n+=1
                if nxt and n>=2: A(nxt.pop(0))
        assert not nxt
    stamp('A conv done')
    if AP2!=AP1: A(f's_setprio {AP2}')
    A('s_barrier')
    A(f's_lshl_b32 s{aT}, s{aWv}, 12\ns_add_u32 s{aT}, s{aT}, {LA_EX}\nv_add_u32 v2, s{aT}, v9')
    A(f's_xor_b32 s{aT}, s{aWv}, 1\ns_lshl_b32 s{aT}, s{aT}, 12\ns_add_u32 s{aT}, s{aT}, {LA_EX}\nv_add_u32 v5, s{aT}, v9')
    A(f'v_and_b32 v3, 15, v0\nv_lshlrev_b32 v3, 5, v3\nv_lshrrev_b32 v4, 4, v0\nv_lshlrev_b32 v4, 3, v4\nv_add_u32 v3, v3, v4\ns_add_u32 s{aT}, s{aWB}, {LA_Y}\nv_add_u32 v3, s{aT}, v3\nv_add_u32 v4, s{aT}, v9')
    L1=A.newlabel('Lcx'); L2=A.newlabel('Lcy')
    def fin(keep,send):
        for k in range(4): A(f'ds_write_b128 v2, {vr(send+4*k,4)} offset:{k*1024}')
        A('s_waitcnt lgkmcnt(0)\ns_barrier')
        for k in range(4): A(f'ds_read_b128 {vr(64+4*k,4)}, v5 offset:{k*1024}')
        A('s_waitcnt lgkmcnt(0)')
        for k in range(16): A(f'v_add_f32 v{keep+k}, v{keep+k}, v{64+k}')
        for k in range(8): A(f'v_cvt_pk_bf16_f32 v{64+k}, v{keep+2*k}, v{keep+1+2*k}')
    A(f's_cmp_lg_u32 s{aHF}, 0\ns_cbranch_scc1 {L1}')
    fin(16,32)
    A(f's_branch {L2}')
    A.label(L1)
    fin(32,16)
    A.label(L2)
    for k in range(4): A(f'ds_write_b64 v3, {vr(64+2*k,2)} offset:{512*k}')
    A('ds_read_b128 v[72:75], v4\nds_read_b128 v[76:79], v4 offset:1024')
    A(f's_add_u32 s{aT}, s62, {WS_YT}\ns_add_u32 s{aT2}, s62, {WS_YT+8*TSTR}')
    A('s_waitcnt lgkmcnt(0)')
    A.vm_op(f'buffer_store_dwordx4 v[72:75], v60, {sr(aWS,4)}, s{aT} offen'+LSC,tag='ys')
    A.vm_op(f'buffer_store_dwordx4 v[76:79], v60, {sr(aWS,4)}, s{aT2} offen'+LSC,tag='ys')
    A(f'v_lshrrev_b32 v7, 4, v0\nv_lshlrev_b32 v7, 3, v7\nv_bfe_u32 v8, v0, 2, 2\nv_add_u32 v7, v7, v8\nv_lshlrev_b32 v7, 7, v7\nv_and_b32 v8, 3, v0\nv_lshlrev_b32 v8, 3, v8\nv_add_u32 v7, v7, v8\ns_lshl_b32 s{aT}, s{aWv}, 5\nv_add_u32 v7, s{aT}, v7')
    A(f'v_and_b32 v8, 15, v0\ns_lshl_b32 s{aT}, s{aWv}, 4\nv_add_u32 v8, s{aT}, v8\nv_lshlrev_b32 v14, 7, v8\nv_lshrrev_b32 v6, 4, v0\nv_lshlrev_b32 v6, 4, v6\nv_add_u32 v14, v14, v6')
    LA_OIMG=16384
    A(f'v_mul_u32_u24 v50, 144, v8\nv_add_u32 v50, v50, v6\nv_add_u32 v50, {LA_OIMG}, v50')
    A(f'v_lshrrev_b32 v51, 3, v0\ns_lshl_b32 s{aT}, s{aWv}, 4\nv_add_u32 v51, s{aT}, v51\nv_and_b32 v52, 7, v0\nv_lshlrev_b32 v52, 4, v52')
    A(f'v_mul_u32_u24 v53, 144, v51\nv_add_u32 v53, v53, v52\nv_add_u32 v53, {LA_OIMG}, v53')
    A(f's_lshl_b32 s{aT}, s{aTB}, 6\nv_add_u32 v51, s{aT}, v51\nv_mul_u32_u24 v51, 1792, v51\nv_add_u32 v51, v51, v52\ns_lshl_b32 s34, s{aG}, 7\ns_add_u32 s35, s34, {8*1792}')
    A.vm_wait('d')
    for it in range(2):
        for k in range(4):
            A(f'v_lshlrev_b32 v{192+8*it+2*k}, 16, v{184+4*it+k}\nv_and_b32 v{193+8*it+2*k}, 0xffff0000, v{184+4*it+k}')
    A.vm_drain()
    A('s_barrier')
    a_flag_store(WS_FLAGA2)
    stamp('A flag2 set')
    for it in range(2): A(f'ds_read_b128 {vr(72+4*it,4)}, v14 offset:{LA_UIMG2+64*it}')
    A('s_waitcnt lgkmcnt(0)')
    for it in range(2):
        for k in range(4):
            A(f'v_lshlrev_b32 v{208+8*it+2*k}, 16, v{72+4*it+k}\nv_and_b32 v{209+8*it+2*k}, 0xffff0000, v{72+4*it+k}')
    for k in range(16): A(f'v_mul_f32 v{208+k}, v{208+k}, v{192+k}')
    a_flag_poll(WS_FLAGA2)
    stamp('A flag2 seen')
    for j in range(2):
        A(f's_add_u32 m0, s{aWB}, {LA_YIMG+j*1024}\ns_add_u32 s{aT}, s{sTT}, {WS_YT+j*1024}')
        A.vm_op(f'buffer_load_dwordx4 v61, {sr(aWS,4)}, s{aT} offen sc1 lds',tag='yt')
    A.vm_drain()
    A('s_barrier')
    for it in range(2):
        A(f'ds_read_b64_tr_b16 {vr(64+4*it,2)}, v7 offset:{LA_YIMG+it*4096}\nds_read_b64_tr_b16 {vr(66+4*it,2)}, v7 offset:{LA_YIMG+it*4096+512}')
    for it in range(2):
        A(f's_waitcnt lgkmcnt({2*(1-it)+it})')
        for k in range(4):
            y=64+4*it+k
            A(f'v_lshlrev_b32 v96, 16, v{y}\nv_and_b32 v97, 0xffff0000, v{y}')
            A(f'v_add_f32 v96, v96, v{208+8*it+2*k}\nv_add_f32 v97, v97, v{209+8*it+2*k}')
            A(f'v_cvt_pk_bf16_f32 v{104+4*it+k}, v96, v97')
        A(f'ds_write_b128 v50, {vr(104+4*it,4)} offset:{64*it}')
    A('ds_read_b128 v[112:115], v53\nds_read_b128 v[116:119], v53 offset:1152')
    A(f's_waitcnt lgkmcnt(1)\nbuffer_store_dwordx4 v[112:115], v51, {sr(aOUT,4)}, s34 offen'+OSC+f'\ns_waitcnt lgkmcnt(0)\nbuffer_store_dwordx4 v[116:119], v51, {sr(aOUT,4)}, s35 offen'+OSC)
    stamp('A end')
    prof_flush(aWS,aWv,256)
    A('s_endpgm')

def main():
    hdr=f'''; S4 conv (A) + hedgehog linear attention (B), single launch, 256 B-workgroups + 224 A-workgroups
; @launch grid=({NB+NA},1,1) block=(256,1,1) lds={LDS_BYTES}
.amdgcn_target "amdgcn-amd-amdhsa--gfx950"
.text
.globl {KN}
.p2align 8
.type {KN},@function
{KN}:
'''
    if '--pf' in sys.argv:
        A('s_getpc_b64 s[4:5]')
        A.label('L_pf')
        A(f's_lshr_b32 s6, s2, 3\ns_and_b32 s6, s6, 31\ns_lshl_b32 s6, s6, 10\nv_and_b32 v1, 7, v0\nv_lshlrev_b32 v1, 7, v1\nv_add_u32 v1, s6, v1\nv_min_u32 v1, L_end-'+KN+'-4, v1')
        A('s_sub_u32 s4, s4, L_pf-'+KN+'\ns_subb_u32 s5, s5, 0')
        A(f's_cmp_ge_u32 s2, {NB+NA}\ns_cbranch_scc1 L_exit')
        A('v_cmp_gt_u32 vcc, 8, v0\ns_and_saveexec_b64 s[6:7], vcc\ns_cbranch_execz L_pfd\nglobal_load_dword v255, v1, s[4:5]')
        A.label('L_pfd')
        A('s_mov_b64 exec, -1')
    A(f's_cmp_ge_u32 s2, {NB+NA}\ns_cbranch_scc1 L_exit\ns_cmp_lt_u32 s2, {NA}\ns_cbranch_scc1 L_A\ns_sub_u32 s2, s2, {NA}')
    if NOB: A('s_endpgm')
    else: gen_B()
    if NOA: A.label('L_A'); A('s_endpgm')
    else: gen_A()
    A.label('L_exit'); A('s_endpgm')
    tail=f'''.section .rodata,"a"
.p2align 6
.amdhsa_kernel {KN}
  .amdhsa_next_free_vgpr 256
  .amdhsa_next_free_sgpr 102
  .amdhsa_accum_offset 256
  .amdhsa_group_segment_fixed_size 0
  .amdhsa_kernarg_size 128
  .amdhsa_user_sgpr_count 2
  .amdhsa_user_sgpr_kernarg_segment_ptr 1
  .amdhsa_system_sgpr_workgroup_id_x 1
.end_amdhsa_kernel
'''
    body=A.text()
    data=''
    if not NOA:
        import numpy as np
        def idx(l):
            if l<0 or l>2047: return 650
            u=np.array([float(l)],np.float32).view(np.uint32)[0]
            bits=int((int(u)+0x7FFF+((int(u)>>16)&1))>>16)
            return l if l<128 else bits-17024
        t4=[];t2=[]
        for t in range(256):
            g=[4*idx(2047-8*t-i) for i in range(11)]+[0]
            t4+=g[:8]; t2+=g[8:12]
        data='.p2align 4\nL_tab:\n'
        for arr in (t4,t2):
            for i in range(0,len(arr),16): data+='  .short '+', '.join(str(x) for x in arr[i:i+16])+'\n'
    data+='L_end:\n'
    open(OUTF,'w').write(hdr+body+data+tail)
    import subprocess
    r=subprocess.run(['clang','-x','assembler','-target','amdgcn-amd-amdhsa','-mcpu=gfx950','-c',OUTF,'-o','chk.o'],capture_output=True,text=True)
    if r.returncode: print('ASM ERRORS:\n'+r.stderr[:3000])
    errs=lint.lint(body)
    for e in errs: print('LINT',e)
    print('wrote',OUTF,len(body.split(chr(10))),'lines;',len(errs),'lint findings')
main()
```

```python
import sys
from asmlib import Asm, vr, sr
import lint
KN='concat_heads__ssm_conv_s4__linear_kernel_hedgehog__prompt_kernel'
PROF = '--prof' in sys.argv
NOA  = '--noA' in sys.argv
NOB  = '--noB' in sys.argv
NOCLR = '--noclr' in sys.argv
KST = '--kst' in sys.argv
PST = '--pst' in sys.argv
WOE = '--woe' in sys.argv
ROT = [tuple(int(x) for x in a.split('=')[1].split(',')) for a in sys.argv if a.startswith('--rot=')]
ROT = ROT[0] if ROT else None
M16 = '--map16' in sys.argv
M2D = '--map2d' in sys.argv
OSC = ' sc1' if '--osc1' in sys.argv else (' nt' if '--ont' in sys.argv else '')
PSL = int([a.split('=')[1] for a in sys.argv if a.startswith('--psl=')][0]) if any(a.startswith('--psl=') for a in sys.argv) else 0
KDMA = '--kdma' in sys.argv
LOC = '--loc' in sys.argv
LSC = '' if LOC else ' sc1'
BPRIO = [int(a.split('=')[1]) for a in sys.argv if a.startswith('--bprio=')]
BPRIO = BPRIO[0] if BPRIO else 2
BPRIO0 = [int(a.split('=')[1]) for a in sys.argv if a.startswith('--bprio0=')]
BPRIO0 = BPRIO0[0] if BPRIO0 else BPRIO
AP1 = [int(a.split('=')[1]) for a in sys.argv if a.startswith('--ap1=')]
AP1 = AP1[0] if AP1 else 0
AP2 = [int(a.split('=')[1]) for a in sys.argv if a.startswith('--ap2=')]
AP2 = AP2[0] if AP2 else AP1
KDEPTH = [int(a.split('=')[1]) for a in sys.argv if a.startswith('--kd=')]
KDEPTH = KDEPTH[0] if KDEPTH else 3
ASTOP = [int(a.split('=')[1]) for a in sys.argv if a.startswith('--astop=')]
ASTOP = ASTOP[0] if ASTOP else 99
OUTF = [a for a in sys.argv[1:] if not a.startswith('--')]
OUTF = OUTF[0] if OUTF else 'out.s'

WS_EPOCH=0; WS_FLAGA1=0x10000; WS_FLAGA2=0x20000; WS_FLAGB2=0x30000
PSTR=8448; TSTR=8448
WS_PART=0x100000; WS_OBUF=WS_PART+256*PSTR; WS_RED=WS_OBUF+0x200000; CLR_KB=(256*PSTR+0x200000+0x10000)//1024
WS_UT=0x600000; WS_YT=0x800000; WS_PROF=0xA00000
WS_SIZE=0xC00000
NONCE_C=0x9E3779B9
LDS_BYTES=81920
NB=256; NA=256 if '--loc' in sys.argv else 224
SPIN=20000 if '--shortspin' not in sys.argv else 20
LOG2E=0x3fb8aa3b

A=Asm()
prof_n=[0]
def stamp(name):
    if not PROF: return
    i=prof_n[0]; prof_n[0]+=1
    if PST and i>=12 : prof_n[0]-=1; return
    assert i<16, name
    A(f's_memrealtime s[{70+2*i}:{71+2*i}]')
    A.c('stamp %d %s'%(i,name))
def cstamp(name):
    if not PROF: return
    i=prof_n[0]; prof_n[0]+=1
    assert i<16, name
    A(f's_memtime s[{70+2*i}:{71+2*i}]')
    A.c('stamp %d %s'%(i,name))
def prof_flush(srd_ws, wavereg, add=0):
    if not PROF: return
    n=prof_n[0]; prof_n[0]=0
    A('s_waitcnt lgkmcnt(0) vmcnt(0)')
    A(f's_add_u32 s68, s2, {add}\ns_lshl_b32 s68, s68, 2\ns_add_u32 s68, s68, s{wavereg}\ns_lshl_b32 s68, s68, 7\ns_add_u32 s68, s68, {WS_PROF}')
    A('v_mov_b32 v10, 0')
    for i in range(n):
        A(f'v_writelane_b32 v10, s{70+2*i}, {i}')
    A('v_lshlrev_b32 v11, 2, v0\ns_mov_b64 exec, 0xffff')
    A(f'buffer_store_dword v10, v11, {sr(srd_ws,4)}, s68 offen')
    A('s_mov_b64 exec, -1')

def srd(dst, base, nrec):
    A(f's_mov_b32 s{dst}, s{base}\ns_and_b32 s{dst+1}, s{base+1}, 0xffff')
    if isinstance(nrec,int): A(f's_mov_b32 s{dst+2}, {nrec}')
    else: A(f's_mov_b32 s{dst+2}, {nrec}')
    A(f's_mov_b32 s{dst+3}, 0x20000')

S_X=8; S_W=12; S_WO=16; S_WP=20; S_WS=24; S_OUT=28
sN=32; sW=33; sRT=34; sA=35; sRB=36; sP=37; sT=38; sT2=39
sWB=48
sP112=49
sCP=50
sHI=58
sLO=60
sC2=62
sPART=64; sOB=65; sRED=66; sCNT=67
vXA0=1; vXA1=2; vWA=3; vXR=4; vWR=8; vL16=9
vT=10
accA=16; accB=32; wf=48; wpf=64; EP=72; EN=88; PK=104; vU=120
XF=128
SLOT=8192; NSLOT=7
L_PHI=57344; PHI_H=8704
L_WP=L_PHI
L_KVF=L_PHI

def dma(voff, srdb, soff, ldsbase_imm):
    A(f's_add_u32 m0, s{sWB}, {ldsbase_imm}')
    return f'buffer_load_dwordx4 v{voff}, {sr(srdb,4)}, s{soff} offen lds'

def slotaddr(u):
    if KDMA: return (u%7)*8192
    if u<14: return ((u//2)&1)*16384 + (u&1)*8192
    c=(u-14)%7
    return 32768+c*8192 if c<3 else (c-3)*8192
def w_soff(c,sec,j):
    A(f's_mul_i32 s{sT}, s{sCP+c}, 172032')
    A(f's_add_u32 s{sT}, s{sT}, s{sP112}')
    A(f's_add_u32 s{sT}, s{sT}, {sec*896+j*21504}')
def issue_reg(c):
    for j in range(2):
        A(f's_lshl_b32 s{sT}, s{sCP+c}, 7')
        A.vm_op(f'buffer_load_dwordx4 {vr(XF+16*c+4*j,4)}, v{vXA0+j}, {sr(S_X,4)}, s{sT} offen', tag=('k',c))
    for j in range(2):
        w_soff(c,1,j)
        A.vm_op(f'buffer_load_dwordx4 {vr(XF+16*c+8+4*j,4)}, v{vWA}, {sr(S_W,4)}, s{sT} offen', tag=('k',c))
def write_k(c,vLW):
    b=(c&1)*16384
    for j in range(2):
        A(f'ds_write_b128 v{vLW}, {vr(XF+16*c+4*j,4)} offset:{b+j*1024}')
        A(f'ds_write_b128 v{vLW}, {vr(XF+16*c+8+4*j,4)} offset:{b+8192+j*1024}')
def issue_unit(u):
    slot=slotaddr(u)
    if u<14:
        c=u//2
        for j in range(2):
            A(f's_add_u32 m0, s{sWB}, {slot+j*1024}')
            if u&1:
                w_soff(c,1,j)
                A.vm_op(f'buffer_load_dwordx4 v{vWA}, {sr(S_W,4)}, s{sT} offen lds', tag=('u',u))
            else:
                A(f's_lshl_b32 s{sT}, s{sCP+c}, 7')
                A.vm_op(f'buffer_load_dwordx4 v{vXA0+j}, {sr(S_X,4)}, s{sT} offen lds', tag=('u',u))
        return
    c=(u-14)%7; sec=2 if u<21 else 0
    for j in range(2):
        A(f's_add_u32 m0, s{sWB}, {slot+j*1024}')
        w_soff(c,sec,j)
        A.vm_op(f'buffer_load_dwordx4 v{vWA}, {sr(S_W,4)}, s{sT} offen lds', tag=('u',u))

def read_wfrags(u):
    slot=slotaddr(u)
    for kk in range(4):
        A(f'ds_read_b64_tr_b16 {vr(wf+4*kk,2)}, v{vWR} offset:{slot+2048*kk}')
        A(f'ds_read_b64_tr_b16 {vr(wf+4*kk+2,2)}, v{vWR} offset:{slot+2048*kk+512}')

def softmax(D, tagname, mid=None):
    t=vT
    u=vU
    A.c('softmax '+tagname)
    for r in range(12,16): A(f'v_cndmask_b32 v{D+r}, v{D+r}, v{D}, {sr(sHI,2)}')
    for op,o in (('v_max3_f32',0),('v_min3_f32',4)):
        A(f'{op} v{u+o}, v{D}, v{D+1}, v{D+2}')
        A(f'{op} v{u+o+1}, v{D+3}, v{D+4}, v{D+5}')
        A(f'{op} v{u+o+2}, v{D+6}, v{D+7}, v{D+8}')
        A(f'{op} v{u+o+3}, v{D+9}, v{D+10}, v{D+11}')
    for op,o in (('v_max3_f32',0),('v_min3_f32',4)):
        A(f'{op} v{u+o}, v{u+o}, v{D+12}, v{D+13}')
        A(f'{op} v{u+o+1}, v{u+o+1}, v{D+14}, v{D+15}')
    for op,op2,o in (('v_max3_f32','v_max_f32',0),('v_min3_f32','v_min_f32',4)):
        A(f'{op} v{u+o}, v{u+o}, v{u+o+1}, v{u+o+2}')
    A(f'v_max_f32 v{u}, v{u}, v{u+3}\nv_min_f32 v{u+4}, v{u+4}, v{u+7}')
    A(f'v_mov_b32 v{u+1}, v{u}\nv_mov_b32 v{u+5}, v{u+4}\ns_nop 1')
    A(f'v_permlane32_swap_b32 v{u}, v{u+1}\nv_permlane32_swap_b32 v{u+4}, v{u+5}')
    A(f'v_max_f32 v{u}, v{u}, v{u+1}\nv_min_f32 v{u+4}, v{u+4}, v{u+5}')
    A(f'v_mul_f32 v{t}, s{sC2}, v{u}\nv_mul_f32 v{t+2}, s{sC2}, v{u+4}')
    for r in range(12):
        A(f'v_fma_f32 v{EP+r}, v{D+r}, s{sC2}, -v{t}')
        A(f'v_fma_f32 v{EN+r}, -v{D+r}, s{sC2}, v{t+2}')
    for k in range(4):
        A(f'v_fma_f32 v{u+k}, v{D+12+k}, s{sC2}, -v{t}')
        A(f'v_fma_f32 v{u+4+k}, -v{D+12+k}, s{sC2}, v{t+2}')
    for r in range(12):
        A(f'v_exp_f32 v{EP+r}, v{EP+r}\nv_exp_f32 v{EN+r}, v{EN+r}')
    A(f's_mov_b64 exec, {sr(sLO,2)}')
    for k in range(4):
        A(f'v_exp_f32 v{EP+12+k}, v{u+k}\nv_exp_f32 v{EN+12+k}, v{u+4+k}')
    A('s_mov_b64 exec, -1')
    if mid: mid()
    for k in range(4):
        A(f'v_add_f32 v{u+k}, v{EP+k}, v{EP+4+k}\nv_add_f32 v{u+4+k}, v{EN+k}, v{EN+4+k}')
    for k in range(4):
        A(f'v_add_f32 v{u+k}, v{u+k}, v{EP+8+k}\nv_add_f32 v{u+4+k}, v{u+4+k}, v{EN+8+k}')
    for k in range(4):
        A(f'v_add_f32 v{u+k}, v{u+k}, v{EP+12+k}\nv_add_f32 v{u+4+k}, v{u+4+k}, v{EN+12+k}')
    A(f'v_add_f32 v{u}, v{u}, v{u+1}\nv_add_f32 v{u+4}, v{u+4}, v{u+5}\nv_add_f32 v{u+2}, v{u+2}, v{u+3}\nv_add_f32 v{u+6}, v{u+6}, v{u+7}')
    A(f'v_add_f32 v{u}, v{u}, v{u+2}\nv_add_f32 v{u+4}, v{u+4}, v{u+6}')
    A(f'v_mov_b32 v{u+1}, v{u}\nv_mov_b32 v{u+5}, v{u+4}\ns_nop 1')
    A(f'v_permlane32_swap_b32 v{u}, v{u+1}\nv_permlane32_swap_b32 v{u+4}, v{u+5}')
    A(f'v_add_f32 v{u}, v{u}, v{u+1}\nv_add_f32 v{u+4}, v{u+4}, v{u+5}')
    A(f'v_rcp_f32 v{u}, v{u}\nv_rcp_f32 v{u+4}, v{u+4}\ns_nop 0')
    for r in range(16):
        A(f'v_mul_f32 v{EP+r}, v{u}, v{EP+r}\nv_mul_f32 v{EN+r}, v{u+4}, v{EN+r}')
    for r in range(0,16,2):
        A(f'v_cvt_pk_bf16_f32 v{PK+r//2}, v{EP+r}, v{EP+r+1}')
        A(f'v_cvt_pk_bf16_f32 v{PK+8+r//2}, v{EN+r}, v{EN+r+1}')

def pack_and_phi(acc):
    for r in range(0,16,2):
        A(f'v_cvt_pk_bf16_f32 v{wf+r//2}, v{acc+r}, v{acc+r+1}')
    A(f'v_cndmask_b32 v{wf+6}, v{wf+6}, 0, {sr(sHI,2)}' .replace(', 0, ',', v15, ') )
    A(f'v_cndmask_b32 v{wf+7}, v{wf+7}, v15, {sr(sHI,2)}')
    A('s_nop 1')
    A(f'v_mfma_f32_32x32x16_bf16 {vr(acc,16)}, {vr(wpf,4)}, {vr(wf,4)}, 0')
    A(f'v_mfma_f32_32x32x16_bf16 {vr(acc,16)}, {vr(wpf+4,4)}, {vr(wf+4,4)}, {vr(acc,16)}')
    A.nop(16)

def poll_flags_all(nflags_bytes, base, reg, srd_ws, name):
    L=A.newlabel('Lpf'); Ld=A.newlabel('Lpfd')
    A(f's_mov_b32 s{sCNT}, 0\ns_mov_b32 s{sT}, {base}')
    A.label(L)
    A(f'buffer_load_dwordx4 {vr(reg,4)}, v{vL16}, {sr(srd_ws,4)}, s{sT} offen sc1')
    A('s_waitcnt vmcnt(0)')
    A(f'v_xor_b32 v{reg}, s{sN}, v{reg}\nv_xor_b32 v{reg+1}, s{sN}, v{reg+1}\nv_xor_b32 v{reg+2}, s{sN}, v{reg+2}\nv_xor_b32 v{reg+3}, s{sN}, v{reg+3}')
    A(f'v_or3_b32 v{reg}, v{reg}, v{reg+1}, v{reg+2}\nv_or_b32 v{reg}, v{reg}, v{reg+3}')
    A(f'v_cmp_ne_u32 vcc, 0, v{reg}')
    A(f's_cbranch_vccz {Ld}')
    A(f's_add_u32 s{sCNT}, s{sCNT}, 1\ns_cmp_lt_u32 s{sCNT}, {SPIN}\ns_cbranch_scc1 {L}')
    A.label(Ld)
    A.vm=[]

def chk_flags(reg,addr,base,srd_ws):
    Ld=A.newlabel('Lcf'); L=A.newlabel('Lcfp')
    A(f's_mov_b32 s{sCNT}, 0\ns_mov_b32 s{sT}, {base}')
    A.label(L)
    A(f'v_cmp_ne_u32 vcc, s{sN}, v{reg}')
    A(f's_cbranch_vccz {Ld}')
    A(f's_sleep 4\nbuffer_load_dword v{reg}, v{addr}, {sr(srd_ws,4)}, s{sT} offen sc1\ns_waitcnt vmcnt(0)')
    A(f's_add_u32 s{sCNT}, s{sCNT}, 1\ns_cmp_lt_u32 s{sCNT}, {SPIN}\ns_cbranch_scc1 {L}')
    A.label(Ld)

def gen_B():
    A.label('L_B')
    A(f's_setprio {BPRIO0}')
    stamp('B start')
    A(f's_load_dwordx4 s[4:7], s[0:1], 72\ns_load_dwordx4 s[40:43], s[0:1], 88\ns_load_dwordx2 s[44:45], s[0:1], 104\ns_load_dwordx2 s[46:47], s[0:1], 120')
    A(f'v_lshrrev_b32 v10, 6, v0\nv_and_b32 v0, 63, v0\ns_nop 0\nv_readfirstlane_b32 s{sW}, v10')
    if LOC: A(f's_and_b32 s{sP}, s2, 7\ns_lshr_b32 s{sRB}, s2, 3\ns_and_b32 s{sT2}, s{sRB}, 3')
    elif M16: A(f's_bfe_u32 s{sT}, s2, 0x10002\ns_lshl_b32 s{sT}, s{sT}, 4\ns_bfe_u32 s{sT2}, s2, 0x40003\ns_add_u32 s{sRB}, s{sT}, s{sT2}\ns_and_b32 s{sT}, s2, 3\ns_lshl_b32 s{sT}, s{sT}, 1\ns_lshr_b32 s{sP}, s2, 7\ns_add_u32 s{sP}, s{sP}, s{sT}\ns_and_b32 s{sT2}, s{sRB}, 3')
    elif M2D: A(f's_bfe_u32 s{sT}, s2, 0x20001\ns_lshl_b32 s{sT}, s{sT}, 3\ns_bfe_u32 s{sT2}, s2, 0x30003\ns_add_u32 s{sRB}, s{sT}, s{sT2}\ns_and_b32 s{sT}, s2, 1\ns_lshl_b32 s{sT}, s{sT}, 2\ns_lshr_b32 s{sP}, s2, 6\ns_add_u32 s{sP}, s{sP}, s{sT}\ns_and_b32 s{sT2}, s{sRB}, 3')
    else: A(f's_and_b32 s{sT}, s2, 7\ns_lshl_b32 s{sT}, s{sT}, 2\ns_lshr_b32 s{sT2}, s2, 3\ns_and_b32 s{sT2}, s{sT2}, 3\ns_add_u32 s{sRB}, s{sT}, s{sT2}\ns_lshr_b32 s{sP}, s2, 5')
    A(f's_lshr_b32 s{sRT}, s{sW}, 1\ns_and_b32 s{sA}, s{sW}, 1\ns_lshl_b32 s{sWB}, s{sW}, 11\ns_mul_i32 s{sP112}, s{sP}, 112')
    if LOC:
        A(f's_mul_i32 s{sT}, s{sRB}, 37\ns_lshr_b32 s{sT}, s{sT}, 8\ns_mul_i32 s{sT}, s{sT}, 7\ns_sub_u32 s{sCP}, s{sRB}, s{sT}')
    elif ROT:
        A(f's_mul_i32 s{sT}, s{sRB}, {ROT[0]}\ns_mul_i32 s{sT2}, s{sP}, {ROT[1]}\ns_add_u32 s{sT}, s{sT}, s{sT2}\ns_mul_i32 s{sT2}, s{sT}, 9363\ns_lshr_b32 s{sT2}, s{sT2}, 16\ns_mul_i32 s{sT2}, s{sT2}, 7\ns_sub_u32 s{sCP}, s{sT}, s{sT2}')
    else:
        A(f's_lshl_b32 s{sT2}, s{sT2}, 1\ns_add_u32 s{sT}, s{sP}, s{sT2}')
        A(f's_cmp_ge_u32 s{sT}, 7\ns_cselect_b32 s{sT2}, 7, 0\ns_sub_u32 s{sCP}, s{sT}, s{sT2}')
    for c in range(1,7):
        A(f's_add_u32 s{sT}, s{sCP+c-1}, 1\ns_cmp_ge_u32 s{sT}, 7\ns_cselect_b32 s{sCP+c}, 0, s{sT}')
    A(f's_mov_b32 s{sHI}, 0\ns_mov_b32 s{sHI+1}, -1\ns_mov_b32 s{sLO}, -1\ns_mov_b32 s{sLO+1}, 0')
    A(f's_mov_b32 s{sC2}, {LOG2E}\ns_mov_b32 s{sC2+1}, {LOG2E}')
    A(f'v_lshlrev_b32 v{vL16}, 4, v0')
    A(f'v_lshrrev_b32 v10, 3, v0\nv_lshrrev_b32 v11, 4, v0\nv_and_b32 v12, 7, v0')
    A(f's_lshl_b32 s{sT}, s{sW}, 4\nv_add_u32 v13, s{sT}, v10')
    A(f'v_xor_b32 v14, v12, v11\nv_lshlrev_b32 v14, 4, v14\nv_mul_u32_u24 v{vXA0}, 896, v13\nv_add_u32 v{vXA0}, v{vXA0}, v14')
    A(f'v_add_u32 v14, 4, v11\nv_xor_b32 v14, v12, v14\nv_lshlrev_b32 v14, 4, v14\nv_add_u32 v15, 8, v13\nv_mul_u32_u24 v{vXA1}, 896, v15\nv_add_u32 v{vXA1}, v{vXA1}, v14')
    A(f'v_and_b32 v14, 1, v11\nv_lshlrev_b32 v14, 2, v14\nv_xor_b32 v14, v12, v14\nv_lshrrev_b32 v15, 2, v14\nv_sub_u32 v14, v14, v15\nv_lshlrev_b32 v14, 4, v14')
    A(f'v_mul_u32_u24 v{vWA}, 2688, v13\nv_add_u32 v{vWA}, v{vWA}, v14')
    L2PF='--l2pf' in sys.argv
    if L2PF:
        A(f's_lshr_b32 s68, s2, 3\ns_bfe_u32 s69, s2, 0x20001\ns_lshl_b32 s69, s69, 9\ns_lshl_b32 s{sT}, s68, 4\ns_add_u32 s69, s69, s{sT}')
        A(f's_mul_i32 s{sT}, s{sW}, 56\nv_add_u32 v120, s{sT}, v0\nv_mul_u32_u24 v121, 9363, v120\nv_lshrrev_b32 v121, 16, v121\nv_mul_u32_u24 v122, 7, v121\nv_sub_u32 v122, v120, v122')
        A(f'v_add_u32 v121, s69, v121\nv_mul_u32_u24 v121, 896, v121\nv_lshl_add_u32 v121, v122, 7, v121')
        A(f's_add_u32 s{sT}, s{sW}, 2\ns_and_b32 s{sT}, s{sT}, 3\ns_lshl_b32 s{sT}, s{sT}, 6\nv_add_u32 v123, s{sT}, v0\nv_mul_u32_u24 v124, 5462, v123\nv_lshrrev_b32 v124, 16, v124\nv_mul_u32_u24 v125, 12, v124\nv_sub_u32 v125, v123, v125')
        A(f's_mul_i32 s{sT}, s68, 14\nv_add_u32 v124, s{sT}, v124\nv_mul_u32_u24 v124, 2688, v124\nv_lshrrev_b32 v126, 2, v125\nv_mul_u32_u24 v126, 896, v126\nv_add_u32 v124, v124, v126\nv_and_b32 v125, 3, v125\nv_lshl_add_u32 v124, v125, 7, v124')
        A(f's_and_b32 s{sT}, s2, 1\ns_mul_i32 s{sT}, s{sT}, 384\nv_add_u32 v124, s{sT}, v124')
    A('s_waitcnt lgkmcnt(0)')
    stamp('kernarg loaded')
    if L2PF:
        A(f'v_cmp_gt_u32 vcc, 168, v123\ns_and_saveexec_b64 s[68:69], vcc\ns_cbranch_execz L_pf2')
        A('global_load_dword v254, v124, s[6:7]')
        A.label('L_pf2')
        A('s_mov_b64 exec, -1')
        A(f's_cmp_gt_u32 s{sW}, 1\ns_cbranch_scc1 L_pf3\ns_mov_b32 exec_hi, 0x00ffffff\nglobal_load_dword v255, v121, s[4:5]\ns_mov_b32 exec_hi, -1')
        A.label('L_pf3')
    A(f's_mul_i32 s{sT}, s{sRB}, 57344\ns_add_u32 s4, s4, s{sT}\ns_addc_u32 s5, s5, 0')
    srd(S_X,4,57344); srd(S_W,6,1204224); srd(S_WO,42,401408); srd(S_WS,46,WS_SIZE); srd(S_OUT,44,3670016)
    A(f's_lshl_b32 s{sT}, s{sP}, 1\ns_add_u32 s{sT}, s{sT}, s{sA}\ns_mul_i32 s{sT}, s{sT}, 1568\ns_add_u32 s40, s40, s{sT}\ns_addc_u32 s41, s41, 0\ns_sub_u32 s{sT2}, 25088, s{sT}')
    srd(S_WP,40,f's{sT2}')
    A(f's_load_dword s{sN}, s[46:47], {WS_EPOCH}')
    A(f's_lshl_b32 s{sT}, s{sP}, 5\ns_add_u32 s{sT}, s{sT}, s{sRB}\ns_mul_i32 s{sPART}, s{sT}, {PSTR}\ns_add_u32 s{sPART}, s{sPART}, {WS_PART}')
    A(f's_lshl_b32 s{sRED}, s{sP}, 13\ns_add_u32 s{sRED}, s{sRED}, {WS_RED}')
    A(f's_lshl_b32 s{sT}, s{sRB}, 1\ns_add_u32 s{sT}, s{sT}, s{sRT}\ns_lshl_b32 s{sT}, s{sT}, 4\ns_lshl_b32 s{sT2}, s{sP}, 1\ns_add_u32 s{sT}, s{sT}, s{sT2}\ns_add_u32 s{sT}, s{sT}, s{sA}\ns_lshl_b32 s{sOB}, s{sT}, 11\ns_add_u32 s{sOB}, s{sOB}, {WS_OBUF}')
    if KDMA:
        for u in range(4): issue_unit(u)
    else:
        for c in range(KDEPTH):
            issue_reg(c)
            if PST and c in (0,1,2,3,6): stamp('chunk %d issued'%c)
    A(f's_lshl_b32 s{sT}, s{sA}, 12\ns_lshl_b32 s{sT2}, s{sRT}, 11\ns_add_u32 s{sT}, s{sT}, s{sT2}\ns_add_u32 s{sPART}, s{sPART}, s{sT}')
    if '--wopf' in sys.argv:
        Lpf=A.newlabel('Lpf')
        A(f's_cmp_gt_u32 s{sW}, 1\ns_cbranch_scc1 {Lpf}')
        A(f's_lshr_b32 s{sT}, s2, 3\ns_mul_i32 s{sT}, s{sT}, {98*128}\ns_lshl_b32 s{sT2}, s{sW}, 13\ns_add_u32 s{sT}, s{sT}, s{sT2}\nv_lshlrev_b32 v10, 7, v0')
        A(f'buffer_load_dword v255, v10, {sr(S_WO,4)}, s{sT} offen')
        A.label(Lpf)
    A(f'v_and_b32 v10, 31, v0\nv_lshrrev_b32 v11, 5, v0\nv_lshrrev_b32 v12, 1, v10\nv_and_b32 v12, 7, v12')
    A(f's_lshl_b32 s{sT}, s{sRT}, 5\nv_add_u32 v13, s{sT}, v10\nv_lshlrev_b32 v13, 7, v13')
    for kk in range(4):
        A(f'v_add_u32 v14, {2*kk}, v11\nv_xor_b32 v14, v14, v12\nv_lshlrev_b32 v14, 4, v14\nv_add_u32 v{vXR+kk}, v13, v14')
    A(f'v_lshrrev_b32 v10, 4, v0\nv_and_b32 v10, 1, v10\nv_bfe_u32 v12, v0, 2, 2\nv_and_b32 v13, 3, v0')
    A(f'v_and_b32 v14, v13, v10\nv_lshrrev_b32 v15, 1, v13\nv_and_b32 v14, v14, v15\nv_sub_u32 v120, v13, v14')
    A(f'v_lshlrev_b32 v14, 3, v11\nv_add_u32 v14, v14, v12\nv_lshlrev_b32 v{vWR}, 7, v14')
    A(f'v_lshrrev_b32 v14, 1, v12\nv_xor_b32 v14, s{sA}, v14\nv_lshlrev_b32 v14, 6, v14\nv_add_u32 v{vWR}, v{vWR}, v14')
    A(f's_lshl_b32 s{sT}, s{sA}, 3\nv_lshlrev_b32 v14, 5, v10\nv_add_u32 v{vWR}, s{sT}, v{vWR}\nv_add_u32 v{vWR}, v{vWR}, v14\nv_lshlrev_b32 v14, 3, v120\nv_add_u32 v{vWR}, v{vWR}, v14')
    A(f'v_lshlrev_b32 v14, 2, v11\nv_add_u32 v14, v14, v12\nv_mul_u32_u24 v121, 56, v14\nv_lshlrev_b32 v14, 5, v10\nv_add_u32 v121, v121, v14\nv_lshlrev_b32 v14, 3, v13\nv_add_u32 v121, v121, v14\nv_add_u32 v121, s{sWB}, v121')
    A(f's_mul_i32 s{sT}, s{sA}, {PHI_H}\ns_add_u32 s{sT}, s{sT}, {L_PHI}')
    A(f'v_and_b32 v14, 31, v0\ns_lshl_b32 s{sT2}, s{sRT}, 5\nv_add_u32 v14, s{sT2}, v14\nv_mul_u32_u24 v122, 136, v14\nv_lshlrev_b32 v14, 3, v11\nv_add_u32 v122, v122, v14\nv_add_u32 v122, s{sT}, v122')
    A(f'v_lshlrev_b32 v14, 2, v11\nv_add_u32 v14, v14, v12\nv_mul_u32_u24 v123, 136, v14\nv_lshlrev_b32 v14, 5, v10\nv_add_u32 v123, v123, v14\nv_lshlrev_b32 v14, 3, v13\nv_add_u32 v123, v123, v14')
    A(f's_lshl_b32 s{sT2}, s{sRT}, 6\ns_add_u32 s{sT}, s{sT}, s{sT2}\nv_add_u32 v123, s{sT}, v123')
    vWPA=240; vPHW=241; vPHR=242; vFA=243; vFV=244; vF2A=4; vF2V=5; v1A=247; vSEL=248
    A(f'v_mov_b32 v{vWPA}, v121\nv_mov_b32 v{vPHW}, v122\nv_mov_b32 v{vPHR}, v123')
    A('v_mov_b32 v15, 0')
    for k in range(4): A(f'v_mov_b32 v{EP+12+k}, 0\nv_mov_b32 v{EN+12+k}, 0')
    if LOC:
        A(f'v_and_b32 v10, 31, v0\nv_lshlrev_b32 v11, 3, v10\nv_add_u32 v11, s{sP}, v11\nv_mov_b32 v12, v11')
    elif M16:
        A(f'v_and_b32 v10, 31, v0\nv_lshrrev_b32 v11, 4, v10\nv_lshlrev_b32 v11, 2, v11\nv_and_b32 v12, 15, v10\nv_lshl_add_u32 v11, v12, 3, v11\ns_lshr_b32 s{sT}, s{sP}, 1\ns_and_b32 s{sT2}, s{sP}, 1\ns_lshl_b32 s{sT2}, s{sT2}, 7\ns_add_u32 s{sT}, s{sT}, s{sT2}\nv_add_u32 v11, s{sT}, v11\nv_mov_b32 v12, v11')
    elif M2D:
        A(f'v_and_b32 v10, 31, v0\nv_lshrrev_b32 v11, 3, v10\nv_lshlrev_b32 v11, 1, v11\nv_and_b32 v12, 7, v10\nv_lshl_add_u32 v11, v12, 3, v11\ns_lshr_b32 s{sT}, s{sP}, 2\ns_and_b32 s{sT2}, s{sP}, 3\ns_lshl_b32 s{sT2}, s{sT2}, 6\ns_add_u32 s{sT}, s{sT}, s{sT2}\nv_add_u32 v11, s{sT}, v11\nv_mov_b32 v12, v11')
    else:
        A(f'v_and_b32 v10, 31, v0\nv_lshrrev_b32 v11, 2, v10\nv_and_b32 v12, 3, v10\nv_lshlrev_b32 v12, 3, v12\nv_add_u32 v11, v11, v12\ns_lshl_b32 s{sT}, s{sP}, 5\nv_add_u32 v11, s{sT}, v11')
        A(f'v_and_b32 v12, 7, v0\nv_lshlrev_b32 v12, 5, v12\ns_and_b32 s{sT}, s2, 31\nv_add_u32 v12, s{sT}, v12')
    A(f'v_cndmask_b32 v11, v11, v12, {sr(sHI,2)}')
    A(f'v_subrev_u32 v12, 224, v11\nv_cmp_gt_u32 vcc, 224, v11\ns_nop 1\nv_cndmask_b32 v11, v12, v11, vcc\nv_lshlrev_b32 v{vFA}, 7, v11')
    A(f'v_lshrrev_b32 v10, 4, v0\nv_mul_u32_u24 v10, {PSTR}, v10\nv_and_b32 v11, 15, v0\nv_lshlrev_b32 v12, 4, v11\nv_add_u32 v{v1A}, v10, v12')
    A(f'v_and_b32 v12, 1, v11\nv_lshlrev_b32 v12, 4, v12\nv_mov_b32 v13, 0x3f80\nv_lshlrev_b32 v12, v12, v13\nv_lshrrev_b32 v11, 1, v11')
    for q in range(4):
        A(f'v_cmp_eq_u32 vcc, {q}, v11\ns_nop 1\nv_cndmask_b32 v{vSEL+q}, v15, v12, vcc')
    stamp('B prologue issued')
    BUF=[[wf,wf+4,wf+8,wf+12],[72,76,80,88]]
    def rd_unit(u,buf):
        slot=slotaddr(u)
        for kk in range(4):
            A(f'ds_read_b64_tr_b16 {vr(buf[kk],2)}, v{vWR} offset:{slot+2048*kk}')
            A(f'ds_read_b64_tr_b16 {vr(buf[kk]+2,2)}, v{vWR} offset:{slot+2048*kk+512}')
    def gemm_group(units,c0,acc,x_is_A,first,pre=None):
        rd_unit(units[0],BUF[0])
        if pre: pre()
        for i,u in enumerate(units):
            nxt = i+1<len(units)
            if nxt: rd_unit(units[i+1],BUF[(i+1)&1])
            c=c0+i
            for kk in range(4):
                extra = 8 if nxt else 0
                if i==0 and pre: extra += 0
                A(f's_waitcnt lgkmcnt({min(15,2*(3-kk)+extra)})')
                cin='0' if (first and i==0 and kk==0) else vr(acc,16)
                wfr=vr(BUF[i&1][kk],4); xfr=vr(XF+16*c+4*kk,4)
                A(f'v_mfma_f32_32x32x16_bf16 {vr(acc,16)}, '+(f'{xfr}, {wfr}' if x_is_A else f'{wfr}, {xfr}')+f', {cin}')
    if KDMA:
        for u in (4,5,6): issue_unit(u)
        for j in range(2):
            A(f's_add_u32 m0, s{sWB}, {L_WP+j*1024}\ns_mov_b32 s{sT}, {j*1024}')
            A.vm_op(f'buffer_load_dwordx4 v{vL16}, {sr(S_WP,4)}, s{sT} offen lds',tag='wp')
        for c in range(7):
            A.vm_wait(('u',2*c+1))
            A('s_barrier')
            if c>=1:
                issue_unit(2*c+5); issue_unit(2*c+6)
            sx=slotaddr(2*c)
            for kk in range(4):
                A(f'ds_read_b128 {vr(XF+16*c+4*kk,4)}, v{vXR+kk} offset:{sx}')
            read_wfrags(2*c+1)
            if c==4:
                for j in range(2):
                    A(f'ds_read_b64_tr_b16 {vr(wpf+4*j,2)}, v{vWPA} offset:{L_WP+896*j}')
                    A(f'ds_read_b64_tr_b16 {vr(wpf+4*j+2,2)}, v{vWPA} offset:{L_WP+896*j+448}')
            ex = 4 if c==4 else 0
            for kk in range(4):
                A(f's_waitcnt lgkmcnt({2*(3-kk)+ex})')
                cin = '0' if (c==0 and kk==0) else vr(accA,16)
                A(f'v_mfma_f32_32x32x16_bf16 {vr(accA,16)}, {vr(wf+4*kk,4)}, {vr(XF+16*c+4*kk,4)}, {cin}')
            if c==4:
                A('s_waitcnt lgkmcnt(0)')
                A(f'v_cndmask_b32 v{wpf+6}, v{wpf+6}, v15, {sr(sHI,2)}\nv_cndmask_b32 v{wpf+7}, v{wpf+7}, v15, {sr(sHI,2)}')
            if c==0: stamp('K0 done')
        A('s_barrier')
        A(f's_mov_b32 s{sT}, {WS_FLAGA1}')
        A.vm_op(f'buffer_load_dword v{vFV}, v{vFA}, {sr(S_WS,4)}, s{sT} offen sc1',tag='flagc')
        issue_unit(19); issue_unit(20)
    else:
        vLW=252
        A(f'v_add_u32 v{vLW}, s{sWB}, v{vL16}')
        A.vm_wait(('k',0))
        write_k(0,vLW)
        A('s_waitcnt lgkmcnt(0)\ns_barrier')
        vleft=[14,15,16]
        for c in range(7):
            sx=(c&1)*16384
            for kk in range(4):
                A(f'ds_read_b128 {vr(XF+16*c+4*kk,4)}, v{vXR+kk} offset:{sx}')
            read_wfrags(2*c+1)
            nw=0
            if c<6:
                A.vm_wait(('k',c+1))
                write_k(c+1,vLW); nw=4
            if c+KDEPTH<=6: issue_reg(c+KDEPTH)
            if c+KDEPTH==7:
                for j in range(2):
                    A(f's_add_u32 m0, s{sWB}, {L_WP+j*1024}\ns_mov_b32 s{sT}, {j*1024}')
                    A.vm_op(f'buffer_load_dwordx4 v{vL16}, {sr(S_WP,4)}, s{sT} offen lds',tag='wp')
            if c+KDEPTH>=7 and vleft: issue_unit(vleft.pop(0))
            if c==5:
                while vleft: issue_unit(vleft.pop(0))
            if c==6:
                A.vm_wait('wp')
                for j in range(2):
                    A(f'ds_read_b64_tr_b16 {vr(wpf+4*j,2)}, v{vWPA} offset:{L_WP+896*j}')
                    A(f'ds_read_b64_tr_b16 {vr(wpf+4*j+2,2)}, v{vWPA} offset:{L_WP+896*j+448}')
                nw+=4
            for kk in range(4):
                A(f's_waitcnt lgkmcnt({min(15,2*(3-kk)+nw)})')
                cin = '0' if (c==0 and kk==0) else vr(accA,16)
                A(f'v_mfma_f32_32x32x16_bf16 {vr(accA,16)}, {vr(wf+4*kk,4)}, {vr(XF+16*c+4*kk,4)}, {cin}')
            A('s_waitcnt lgkmcnt(0)')
            if c==6:
                A(f'v_cndmask_b32 v{wpf+6}, v{wpf+6}, v15, {sr(sHI,2)}\nv_cndmask_b32 v{wpf+7}, v{wpf+7}, v15, {sr(sHI,2)}')
            A('s_barrier')
            if c==0: stamp('K0 done')
        A(f's_mov_b32 s{sT}, {WS_FLAGA1}')
        A.vm_op(f'buffer_load_dword v{vFV}, v{vFA}, {sr(S_WS,4)}, s{sT} offen sc1',tag='flagc')
        for u in (17,18,19,20): issue_unit(u)
    stamp('K phase done')
    if BPRIO0!=BPRIO: A(f's_setprio {BPRIO}')
    A.nop(6)
    pack_and_phi(accA)
    softmax(accA,'k')
    for jj in range(4):
        A(f'ds_write_b64 v{vPHW}, {vr(PK+2*jj,2)} offset:{16*jj}')
        A(f'ds_write_b64 v{vPHW}, {vr(PK+8+2*jj,2)} offset:{64+16*jj}')
    stamp('softmax k done')
    AF=[PK,PK+4,PK+8,PK+12]
    A.vm_wait(('u',16),' lgkmcnt(0)')
    A('s_barrier')
    gemm_group([14,15,16],0,accB,True,True)
    for m in range(4):
        A(f'ds_read_b64_tr_b16 {vr(AF[m],2)}, v{vPHR} offset:{16*m*136}')
        A(f'ds_read_b64_tr_b16 {vr(AF[m]+2,2)}, v{vPHR} offset:{16*m*136+8*136}')
    A.vm_wait(('u',18),' lgkmcnt(0)')
    A('s_barrier')
    issue_unit(21); issue_unit(22); issue_unit(23)
    gemm_group([17,18],3,accB,True,False)
    A.vm_wait(('u',20))
    A('s_barrier')
    issue_unit(24); issue_unit(25)
    gemm_group([19,20],5,accB,True,False)
    stamp('V phase done')
    A(f'v_and_b32 v10, 31, v0\nv_cmp_eq_u32 vcc, 28, v10\nv_mov_b32 v11, 0x3f803f80')
    A(f'v_add_u32 v12, s{sWB}, v{vL16}\ns_xor_b32 s{sT}, s{sWB}, 4096\nv_add_u32 v13, s{sT}, v{vL16}')
    A(f's_waitcnt lgkmcnt(0)\ns_add_u32 s{sN}, s{sN}, {NONCE_C}')
    A.nop(6)
    for r in range(0,16,2):
        A(f'v_cvt_pk_bf16_f32 v{wf+r//2}, v{accB+r}, v{accB+r+1}')
    for k in range(8): A(f'v_cndmask_b32 v{wf+k}, v{wf+k}, v11, vcc')
    L_VX=slotaddr(19)
    A('s_barrier')
    A(f'ds_write_b128 v12, {vr(wf,4)} offset:{L_VX}\nds_write_b128 v12, {vr(wf+4,4)} offset:{L_VX+1024}')
    A('s_waitcnt lgkmcnt(0)\ns_barrier')
    A(f'ds_read_b128 {vr(wf+8,4)}, v13 offset:{L_VX}\nds_read_b128 {vr(wf+12,4)}, v13 offset:{L_VX+1024}')
    issue_unit(27)
    A.vm_wait('flagc')
    chk_flags(vFV,vFA,WS_FLAGA1,S_WS)
    Lr1=A.newlabel('Lrt1'); Lr2=A.newlabel('Lrtd')
    order0=[wf,wf+4,wf+8,wf+12]; order1=[wf+8,wf+12,wf,wf+4]
    A(f's_cmp_lg_u32 s{sRT}, 0\ns_cbranch_scc1 {Lr1}')
    for m in range(4):
        if m==2: A('s_waitcnt lgkmcnt(0)')
        A(f'v_mfma_f32_32x32x16_bf16 {vr(accA,16)}, {vr(AF[m],4)}, {vr(order0[m],4)}, '+('0' if m==0 else vr(accA,16)))
    A(f's_branch {Lr2}')
    A.label(Lr1)
    for n,m in enumerate((2,3,0,1)):
        if n==2: A('s_waitcnt lgkmcnt(0)')
        A(f'v_mfma_f32_32x32x16_bf16 {vr(accA,16)}, {vr(AF[m],4)}, {vr(order1[m],4)}, '+('0' if n==0 else vr(accA,16)))
    A.label(Lr2)
    A.nop(14)
    for r in range(0,16,2):
        A(f'v_cvt_pk_bf16_f32 v{72+r//2}, v{accA+r}, v{accA+r+1}')
    A.vm_op(f'buffer_store_dwordx4 v[72:75], v{vL16}, {sr(S_WS,4)}, s{sPART} offen'+LSC,tag='part')
    A.vm_op(f'buffer_store_dwordx4 v[76:79], v{vL16}, {sr(S_WS,4)}, s{sPART} offen offset:1024'+LSC,tag='part')
    stamp('partial published')
    if not NOCLR:
        A('v_mov_b32 v10, -1\nv_mov_b32 v11, -1\nv_mov_b32 v12, -1\nv_mov_b32 v13, -1')
        A.vm_op(f'buffer_store_dwordx4 v[10:13], v{vL16}, {sr(S_WS,4)}, s{sOB} offen sc1',tag='oclr')
        A.vm_op(f'buffer_store_dwordx4 v[10:13], v{vL16}, {sr(S_WS,4)}, s{sOB} offen offset:1024 sc1',tag='oclr')
    A.vm_wait(('u',25))
    A('s_barrier')
    issue_unit(26)
    E1A='--early1a' in sys.argv
    LD=[32,36,40,44,104,108,112,116]
    def issue_1a():
        for m in range(8):
            A(f's_add_u32 s{sT}, s40, {m*4*PSTR}')
            A(f'buffer_load_dwordx4 {vr(LD[m],4)}, v{v1A}, {sr(S_WS,4)}, s{sT} offen sc1')
    def blk_1a():
        L1i=A.newlabel('L1a_i')
        A(f's_cmp_lg_u32 s{sW}, 0\ns_cbranch_scc1 {L1i}')
        A(f's_mul_i32 s{sT}, s{sP}, {32*PSTR}\ns_lshl_b32 s{sT2}, s{sRB}, 8\ns_add_u32 s{sT}, s{sT}, s{sT2}\ns_add_u32 s40, s{sT}, {WS_PART}')
        issue_1a()
        A.label(L1i)
    if E1A==1 and '--e1pos=0' in sys.argv: blk_1a()
    gemm_group([21,22,23,24,25],0,accA,False,True)
    if E1A and '--e1pos=0' not in sys.argv: blk_1a()
    vWO=1; vWOR=2
    sWOB=41; sCOL=42; sACT=43
    A((f's_lshr_b32 s{sT}, s{sP}, 1' if '--s3map' in sys.argv else f's_and_b32 s{sT}, s{sP}, 3')+f'\ns_lshl_b32 s45, s{sT}, 8\ns_lshl_b32 s{sT}, s{sT}, 7\ns_lshl_b32 s{sT2}, s{sW}, 5\ns_add_u32 s{sCOL}, s{sT}, s{sT2}')
    A(f's_cmp_lt_u32 s{sCOL}, 448\ns_cselect_b32 s{sACT}, 1, 0\ns_lshl_b32 s{sWOB}, s{sW}, 10')
    A(f'v_lshrrev_b32 v10, 4, v0\nv_mul_u32_u24 v{vWO}, 896, v10\nv_lshlrev_b32 v11, 2, v10\nv_and_b32 v12, 15, v0\nv_xor_b32 v11, v11, v12\nv_lshlrev_b32 v11, 4, v11\nv_add_u32 v{vWO}, v{vWO}, v11\nv_add_u32 v{vWO}, s45, v{vWO}')
    A(f'v_lshrrev_b32 v10, 5, v0\nv_lshlrev_b32 v10, 2, v10\nv_bfe_u32 v11, v0, 2, 2\nv_add_u32 v10, v10, v11\nv_lshlrev_b32 v10, 8, v10\nv_xor_b32 v11, s{sW}, v11\nv_lshlrev_b32 v11, 6, v11\nv_add_u32 v10, v10, v11')
    A(f'v_bfe_u32 v11, v0, 4, 1\nv_lshlrev_b32 v11, 5, v11\nv_add_u32 v10, v10, v11\nv_and_b32 v11, 3, v0\nv_lshlrev_b32 v11, 3, v11\nv_add_u32 v{vWOR}, v10, v11')
    if E1A:
        Lq=A.newlabel('Lq26'); Lq2=A.newlabel('Lq26b')
        A(f's_cmp_lg_u32 s{sW}, 0\ns_cbranch_scc1 {Lq}\ns_waitcnt vmcnt(8)\ns_branch {Lq2}')
        A.label(Lq); A('s_waitcnt vmcnt(0)'); A.label(Lq2); A.vm=[]
    else:
        A.vm_wait(('u',26))
    A('s_barrier')
    Lf2=A.newlabel('Lfb2')
    A(f's_cmp_lg_u32 s{sW}, 3\ns_cbranch_scc1 {Lf2}')
    A(f's_lshl_b32 s{sT}, s2, 7\ns_add_u32 s{sT}, s{sT}, {WS_FLAGB2}\nv_mov_b32 v10, s{sN}\nv_mov_b32 v11, s{sN}\nv_mov_b32 v12, s{sN}\nv_mov_b32 v13, s{sN}\ns_mov_b64 exec, 0xff')
    A(f'buffer_store_dwordx4 v[10:13], v{vL16}, {sr(S_WS,4)}, s{sT} offen sc1\ns_mov_b64 exec, -1\ns_nop 1')
    A.label(Lf2)
    if not E1A: blk_1a()
    gemm_group([26,27],5,accA,False,False)
    stamp('Q gemm done')
    A('s_waitcnt lgkmcnt(0)\ns_barrier')
    def wo_dma(row0,k0,k1):
        for k in range(k0,k1):
            A(f's_add_u32 m0, s{sWOB}, {k*4096}\ns_add_u32 s{sT}, s46, {(row0+16*k)*896}')
            A(f'buffer_load_dwordx4 v{vWO}, {sr(S_WO,4)}, s{sT} offen lds')
    def wo_frags(h0,h1,row0):
        for h in range(h0,h1):
            for j in range(2):
                b_=XF+8*h+4*j; o=(28*h-row0+16*j)*256
                if o+2048<65536:
                    A(f'ds_read_b64_tr_b16 {vr(b_,2)}, v{vWOR} offset:{o}\nds_read_b64_tr_b16 {vr(b_+2,2)}, v{vWOR} offset:{o+2048}')
                else:
                    A(f'ds_read_b64_tr_b16 {vr(b_,2)}, v6 offset:{o-32768}\nds_read_b64_tr_b16 {vr(b_+2,2)}, v6 offset:{o+2048-32768}')
    A(f's_mul_i32 s46, s{sW}, 3584\nv_add_u32 v6, 32768, v{vWOR}')
    A.nop(8)
    pack_and_phi(accA)
    L1a=A.newlabel('L1a_skip')
    A(f's_cmp_lg_u32 s{sW}, 0\ns_cbranch_scc1 {L1a}')
    A(f'v_and_b32 v10, 15, v0\nv_lshlrev_b32 v10, 4, v10\nv_lshrrev_b32 v11, 4, v0\nv_lshlrev_b32 v11, 3, v11\nv_add_u32 v10, v10, v11')
    A(f's_lshl_b32 s47, s{sRB}, 8\ns_add_u32 s47, s47, s{sRED}\ns_mov_b32 s{sCNT}, 0')
    Lp=A.newlabel('L1a_poll'); Lpd=A.newlabel('L1a_done')
    A.label(Lp)
    for m in range(8):
        A(f's_waitcnt vmcnt({7-m})')
        A(f'v_mfma_f32_16x16x32_bf16 v[48:51], {vr(vSEL,4)}, {vr(LD[m],4)}, '+('0' if m==0 else 'v[48:51]'))
    A.nop(8)
    A(f'v_cmp_u_f32 vcc, v48, v48\ns_cbranch_vccz {Lpd}')
    if PSL: A(f's_sleep {PSL}')
    issue_1a()
    A(f's_add_u32 s{sCNT}, s{sCNT}, 1\ns_cmp_lt_u32 s{sCNT}, {SPIN}\ns_cbranch_scc1 {Lp}')
    A('s_waitcnt vmcnt(0)')
    A.label(Lpd)
    A('v_cvt_pk_bf16_f32 v52, v48, v49\nv_cvt_pk_bf16_f32 v53, v50, v51')
    A(f's_mov_b64 exec, {sr(sLO,2)}')
    A(f'buffer_store_dwordx2 v[52:53], v10, {sr(S_WS,4)}, s47 offen'+LSC)
    A('s_mov_b64 exec, -1')
    A.label(L1a)
    stamp('1a done')
    wo_dma(0,0,7)
    softmax(accA,'q',mid=lambda: wo_dma(0,7,14))
    wo_dma(0,14,20)
    stamp('softmax q done')
    if LOC: A(f'v_and_b32 v12, 7, v0\ns_lshl_b32 s{sT}, s{sRB}, 3\nv_add_u32 v12, s{sT}, v12\nv_lshlrev_b32 v{vF2A}, 7, v12')
    elif M16:
        A(f'v_and_b32 v12, 7, v0\nv_lshrrev_b32 v11, 1, v12\nv_and_b32 v12, 1, v12\nv_lshl_add_u32 v12, v12, 7, v11\ns_lshr_b32 s{sT}, s{sRB}, 4\ns_lshl_b32 s{sT}, s{sT}, 2\ns_and_b32 s{sT2}, s{sRB}, 15\ns_lshl_b32 s{sT2}, s{sT2}, 3\ns_add_u32 s{sT}, s{sT}, s{sT2}\nv_add_u32 v12, s{sT}, v12\nv_lshlrev_b32 v{vF2A}, 7, v12')
    elif M2D:
        A(f'v_and_b32 v12, 7, v0\nv_lshrrev_b32 v11, 2, v12\nv_and_b32 v12, 3, v12\nv_lshl_add_u32 v12, v12, 6, v11\ns_lshr_b32 s{sT}, s{sRB}, 3\ns_lshl_b32 s{sT}, s{sT}, 1\ns_and_b32 s{sT2}, s{sRB}, 7\ns_lshl_b32 s{sT2}, s{sT2}, 3\ns_add_u32 s{sT}, s{sT}, s{sT2}\nv_add_u32 v12, s{sT}, v12\nv_lshlrev_b32 v{vF2A}, 7, v12')
    else: A(f'v_and_b32 v12, 7, v0\nv_lshlrev_b32 v12, 5, v12\ns_and_b32 s{sT}, s2, 31\nv_add_u32 v12, s{sT}, v12\nv_lshlrev_b32 v{vF2A}, 7, v12')
    A(f's_mov_b32 s{sT}, {WS_FLAGB2}')
    A(f'buffer_load_dword v{vF2V}, v{vF2A}, {sr(S_WS,4)}, s{sT} offen sc1')
    if WOE:
        A('s_waitcnt vmcnt(0)\ns_barrier')
        Lw2=A.newlabel('Lwo2e')
        A(f's_cmp_eq_u32 s{sACT}, 0\ns_cbranch_scc1 {Lw2}')
        wo_frags(0,11,0)
        A.label(Lw2)
        A('s_waitcnt lgkmcnt(0)\ns_barrier')
        wo_dma(308,0,9)
    Lp=A.newlabel('L1b_poll'); Lpd=A.newlabel('L1b_done')
    A(f's_lshl_b32 s{sT}, s{sA}, 12\ns_add_u32 s40, s{sT}, s{sRED}\ns_mov_b32 s{sCNT}, 0')
    A.label(Lp)
    for m in range(4):
        A(f'buffer_load_dwordx4 {vr(32+4*m,4)}, v{vL16}, {sr(S_WS,4)}, s40 offen offset:{m*1024} sc1')
    A('s_waitcnt vmcnt(0)')
    A('v_max3_u32 v10, v32, v33, v34')
    for k in range(35,47,2): A(f'v_max3_u32 v10, v10, v{k}, v{k+1}')
    A('v_max_u32 v10, v10, v47\nv_cmp_eq_u32 vcc, -1, v10')
    A(f's_cbranch_vccz {Lpd}')
    if PSL: A(f's_sleep {PSL}')
    A(f's_add_u32 s{sCNT}, s{sCNT}, 1\ns_cmp_lt_u32 s{sCNT}, {SPIN}\ns_cbranch_scc1 {Lp}')
    A.label(Lpd)
    A.vm=[]
    stamp('1b done')
    for m in range(4):
        A(f'v_mfma_f32_32x32x16_bf16 {vr(accA,16)}, {vr(32+4*m,4)}, {vr(PK+4*m,4)}, '+('0' if m==0 else vr(accA,16)))
    A.nop(16)
    A(f'v_mov_b32 v10, v{accA+12}\nv_mov_b32 v11, v{accA+12}\ns_nop 1\nv_permlane32_swap_b32 v10, v11')
    A('v_add_f32 v11, 0x358637bd, v11\nv_rcp_f32 v12, v11\ns_nop 0')
    for r in range(16):
        A(f'v_mul_f32 v{accA+r}, v12, v{accA+r}')
    for r in range(0,16,2):
        A(f'v_cvt_pk_bf16_f32 v{48+r//2}, v{accA+r}, v{accA+r+1}')
    A(f'v_cndmask_b32 v54, v54, v15, {sr(sHI,2)}\nv_cndmask_b32 v55, v55, v15, {sr(sHI,2)}')
    A.vm_op(f'buffer_store_dwordx4 v[48:51], v{vL16}, {sr(S_WS,4)}, s{sOB} offen sc1',tag='o')
    A.vm_op(f'buffer_store_dwordx4 v[52:55], v{vL16}, {sr(S_WS,4)}, s{sOB} offen offset:1024 sc1',tag='o')
    stamp('o published')
    A(f's_lshl_b32 s{sT}, s{sRB}, 1\n'+(f's_and_b32 s{sT2}, s{sP}, 1' if '--s3map' in sys.argv else f's_lshr_b32 s{sT2}, s{sP}, 2')+f'\ns_add_u32 s{sT}, s{sT}, s{sT2}\ns_mov_b32 s44, s{sT}\ns_lshl_b32 s{sT}, s{sT}, 15\ns_lshl_b32 s{sT2}, s{sW}, 13\ns_add_u32 s{sT}, s{sT}, s{sT2}\ns_add_u32 s40, s{sT}, {WS_OBUF}')
    if WOE:
        A('s_waitcnt vmcnt(0)')
    else:
        A('s_barrier')
        Lw2=A.newlabel('Lwo2')
        A(f's_cmp_eq_u32 s{sACT}, 0\ns_cbranch_scc1 {Lw2}')
        wo_frags(0,11,0)
        A.label(Lw2)
        A('s_waitcnt lgkmcnt(0)\ns_barrier')
        NB4=int([a.split('=')[1] for a in sys.argv if a.startswith('--nb4=')][0]) if any(a.startswith('--nb4=') for a in sys.argv) else 5
        wo_dma(308,0,NB4)
        A(f's_waitcnt vmcnt({NB4})')
    chk_flags(vF2V,vF2A,WS_FLAGB2,S_WS)
    def issue_h2():
        for m in range(8):
            A(f's_add_u32 s{sT}, s40, {(m//4)*4096}')
            A(f'buffer_load_dwordx4 {vr(72+4*m,4)}, v{vL16}, {sr(S_WS,4)}, s{sT} offen offset:{(m%4)*1024} sc1')
    issue_h2()
    if not WOE: wo_dma(308,NB4,9)
    L_O=36864; L_OUT=69632
    A(f's_lshl_b32 s{sT}, s{sW}, 13\ns_add_u32 s{sT}, s{sT}, {L_O}\nv_add_u32 v7, s{sT}, v{vL16}\nv_add_u32 v8, {L_O}, v{vL16}')
    Lp=A.newlabel('Lh2_poll'); Lpd=A.newlabel('Lh2_done')
    A(f's_mov_b32 s{sCNT}, 0')
    A.label(Lp)
    A('s_waitcnt vmcnt(0)')
    A('v_max3_u32 v10, v72, v73, v74')
    for k in range(75,103,2): A(f'v_max3_u32 v10, v10, v{k}, v{k+1}')
    A('v_max_u32 v10, v10, v103\nv_cmp_eq_u32 vcc, -1, v10')
    A(f's_cbranch_vccz {Lpd}')
    if PSL: A(f's_sleep {PSL}')
    issue_h2()
    A(f's_add_u32 s{sCNT}, s{sCNT}, 1\ns_cmp_lt_u32 s{sCNT}, {SPIN}\ns_cbranch_scc1 {Lp}')
    A('s_waitcnt vmcnt(0)')
    A.label(Lpd)
    stamp('hop2 loaded')
    for m in range(8): A(f'ds_write_b128 v7, {vr(72+4*m,4)} offset:{m*1024}')
    A('s_waitcnt lgkmcnt(0)\ns_barrier')
    Le=A.newlabel('LB_s3skip')
    A(f's_cmp_eq_u32 s{sACT}, 0\ns_cbranch_scc1 {Le}')
    wo_frags(11,16,308)
    OB=[[32,36,40,44],[48,52,56,60]]
    def rdo(g):
        for m in range(4): A(f'ds_read_b128 {vr(OB[g&1][m],4)}, v8 offset:{(g*4+m)*1024}')
    rdo(0)
    for g in range(8):
        if g+1<8: rdo(g+1)
        for m in range(4):
            f=g*4+m
            A(f's_waitcnt lgkmcnt({(3-m)+(4 if g+1<8 else 0)})')
            A(f'v_mfma_f32_32x32x16_bf16 {vr(accA,16)}, {vr(XF+4*f,4)}, {vr(OB[g&1][m],4)}, '+('0' if f==0 else vr(accA,16)))
    A(f'v_and_b32 v10, 31, v0\nv_mul_u32_u24 v10, 272, v10\nv_lshrrev_b32 v11, 5, v0\nv_lshlrev_b32 v11, 4, v11\nv_add_u32 v10, v10, v11\ns_lshl_b32 s{sT}, s{sW}, 6\ns_add_u32 s{sT}, s{sT}, {L_OUT}\nv_add_u32 v10, s{sT}, v10')
    A.nop(6)
    for r in range(0,16,2):
        A(f'v_cvt_pk_bf16_f32 v{64+r//2}, v{accA+r}, v{accA+r+1}')
    A('s_nop 1')
    A('v_permlane32_swap_b32 v64, v66\nv_permlane32_swap_b32 v65, v67\nv_permlane32_swap_b32 v68, v70\nv_permlane32_swap_b32 v69, v71')
    A('s_nop 0\nds_write_b128 v10, v[64:67]\nds_write_b128 v10, v[68:71] offset:32')
    A.label(Le)
    A(f'v_lshrrev_b32 v10, 4, v0\ns_lshl_b32 s{sT}, s{sW}, 3\nv_add_u32 v10, s{sT}, v10\nv_and_b32 v11, 15, v0\nv_lshlrev_b32 v11, 4, v11')
    A(f'v_mul_u32_u24 v12, 272, v10\nv_add_u32 v12, v12, v11\nv_add_u32 v12, {L_OUT}, v12')
    A(f's_lshl_b32 s{sT}, s44, 5\nv_add_u32 v10, s{sT}, v10\nv_mul_u32_u24 v10, 1792, v10\nv_add_u32 v10, v10, v11\ns_add_u32 s{sT}, s45, 896')
    A('s_waitcnt lgkmcnt(0)\ns_barrier')
    A('ds_read_b128 v[64:67], v12\nds_read_b128 v[68:71], v12 offset:1088')
    Lm=A.newlabel('Lmask')
    A(f's_cmp_lg_u32 s45, 768\ns_cbranch_scc1 {Lm}\ns_mov_b32 exec_lo, 0x00ff00ff\ns_mov_b32 exec_hi, 0x00ff00ff')
    A.label(Lm)
    A('s_waitcnt lgkmcnt(0)')
    A(f'buffer_store_dwordx4 v[64:67], v10, {sr(S_OUT,4)}, s{sT} offen'+OSC)
    A(f's_add_u32 s{sT}, s{sT}, {4*1792}')
    A(f'buffer_store_dwordx4 v[68:71], v10, {sr(S_OUT,4)}, s{sT} offen'+OSC+'\ns_mov_b64 exec, -1')
    stamp('B end')
    Lx=A.newlabel('LB_exit')
    A(f's_or_b32 s{sT}, s2, s{sW}\ns_cmp_lg_u32 s{sT}, 0\ns_cbranch_scc1 {Lx}')
    if not NOA:
        for k in range(4):
            L=A.newlabel('Lep'); Ld=A.newlabel('Lepd')
            A(f'v_lshlrev_b32 v10, 7, v0\ns_mov_b32 s{sT}, {WS_FLAGA1+k*64*128}\ns_mov_b32 s{sCNT}, 0')
            if k==3: A('s_mov_b32 exec_hi, 0')
            A.label(L)
            A(f'buffer_load_dword v11, v10, {sr(S_WS,4)}, s{sT} offen sc1\ns_waitcnt vmcnt(0)\nv_cmp_ne_u32 vcc, s{sN}, v11\ns_cbranch_vccz {Ld}')
            A(f's_add_u32 s{sCNT}, s{sCNT}, 1\ns_cmp_lt_u32 s{sCNT}, {SPIN}\ns_cbranch_scc1 {L}')
            A.label(Ld)
    A(f's_mov_b64 exec, 0xff\nv_mov_b32 v10, s{sN}\nv_mov_b32 v11, s{sN}\nv_mov_b32 v12, s{sN}\nv_mov_b32 v13, s{sN}\ns_mov_b32 s{sT}, {WS_EPOCH}')
    A(f'buffer_store_dwordx4 v[10:13], v{vL16}, {sr(S_WS,4)}, s{sT} offen sc1\ns_mov_b64 exec, -1')
    A.label(Lx)
    prof_flush(S_WS,sW)
    A('s_endpgm')

def f32(x):
    import struct
    return '0x%08x'%struct.unpack('<I',struct.pack('<f',x))[0]
import math
aU=8; aWS=12; aOUT=16
aRE=40
aDS=56
aG=20; aTB=21; aAI=22; aWv=23; aC=24; aHF=25; aT=26; aT2=27; aWB=28; aSH=29; aLD=30; aCNT=67
KT_W=16880; KT_R=528
LA_UIMG=0; LA_T2=8192
LA_UC=67520; UC_S=4576; UPAD=480
LA_T=76672; T_S=2624
LA_C=16384; C_CH=16640; C_M=4160
LA_UIMG2=0; LA_YIMG=8192
LA_EX=16384; LA_Y=32768
XB=2047
def a_flag_store(base):
    L=A.newlabel('Lafs')
    A(f's_cmp_lg_u32 s{aWv}, 0\ns_cbranch_scc1 {L}')
    A(f's_lshl_b32 s{aT}, s{aAI}, 7\ns_add_u32 s{aT}, s{aT}, {base}\nv_mov_b32 v10, s{sN}\nv_mov_b32 v11, s{sN}\nv_mov_b32 v12, s{sN}\nv_mov_b32 v13, s{sN}\ns_mov_b64 exec, 0xff')
    A(f'buffer_store_dwordx4 v[10:13], v9, {sr(aWS,4)}, s{aT} offen sc1\ns_mov_b64 exec, -1\ns_nop 1')
    A.label(L)
def a_flag_poll(base):
    L=A.newlabel('Lafp'); Ld=A.newlabel('Lafd')
    A(f's_cmp_lg_u32 s{aWv}, 0\ns_cbranch_scc1 {Ld}')
    A(f's_lshl_b32 s{aT}, s{aG}, 12\ns_add_u32 s{aT}, s{aT}, {base}\nv_lshlrev_b32 v2, 7, v0\ns_mov_b32 s{aCNT}, 0\ns_mov_b32 exec_hi, 0')
    A.label(L)
    A(f'buffer_load_dword v3, v2, {sr(aWS,4)}, s{aT} offen sc1\ns_waitcnt vmcnt(0)')
    A(f'v_cmp_ne_u32 vcc, s{sN}, v3\ns_cbranch_vccz {Ld}')
    A(f's_sleep 2\ns_add_u32 s{aCNT}, s{aCNT}, 1\ns_cmp_lt_u32 s{aCNT}, {SPIN}\ns_cbranch_scc1 {L}')
    A.label(Ld)
    A('s_mov_b64 exec, -1\ns_waitcnt lgkmcnt(0)\ns_barrier')
    A.vm=[]

def gen_A():
    A.label('L_A')
    A.vm=[]
    if ASTOP==9:
        A('s_sleep 127\ns_sleep 127\ns_sleep 127\ns_endpgm'); return
    if '--aprio' in sys.argv: A('s_setprio 3')
    stamp('A start')
    A('s_load_dwordx16 s[40:55], s[0:1], 0\ns_load_dwordx2 s[56:57], s[0:1], 64\ns_load_dwordx2 s[58:59], s[0:1], 104\ns_load_dwordx2 s[60:61], s[0:1], 120')
    A(f'v_lshrrev_b32 v1, 6, v0\nv_and_b32 v0, 63, v0\ns_nop 0\nv_readfirstlane_b32 s{aWv}, v1')
    A((f's_and_b32 s{aT}, s2, 7\ns_cmp_eq_u32 s{aT}, 7\ns_cbranch_scc1 L_exit\ns_lshl_b32 s{aT}, s{aT}, 5\ns_lshr_b32 s{aAI}, s2, 3\ns_add_u32 s{aAI}, s{aAI}, s{aT}\n' if LOC else f's_mov_b32 s{aAI}, s2\n')+f's_lshr_b32 s{aG}, s{aAI}, 5\ns_and_b32 s{aTB}, s{aAI}, 31\nv_lshlrev_b32 v9, 4, v0\nv_lshrrev_b32 v2, 3, v0\nv_and_b32 v3, 7, v0\nv_lshlrev_b32 v3, 4, v3')
    A(f's_lshr_b32 s{aC}, s{aWv}, 1\ns_and_b32 s{aHF}, s{aWv}, 1\ns_lshl_b32 s{aWB}, s{aWv}, 11\ns_lshl_b32 s{aT}, s{aWv}, 4\nv_add_u32 v2, s{aT}, v2')
    A('v_mul_u32_u24 v4, 896, v2\nv_add_u32 v4, v4, v3')
    A('v_lshlrev_b32 v5, 7, v2\nv_add_u32 v5, v5, v3')
    sUT=31
    A(f's_mul_i32 s{sUT}, s{aTB}, 57344\ns_lshl_b32 s{aT}, s{aG}, 7\ns_add_u32 s{sUT}, s{sUT}, s{aT}')
    A(f's_lshl_b32 s{aT}, s{aAI}, 1\ns_add_u32 s{aT}, s{aT}, s{aC}\ns_lshl_b32 s{aT}, s{aT}, 9\ns_lshl_b32 s{aT2}, s{aHF}, 8\ns_add_u32 s{aT}, s{aT}, s{aT2}\nv_lshlrev_b32 v6, 2, v0\nv_add_u32 v6, s{aT}, v6')
    A('s_waitcnt lgkmcnt(0)')
    srd(aU,40,1835008)
    for j in range(2):
        A(f's_add_u32 m0, s{aWB}, {LA_UIMG+j*1024}\ns_add_u32 s{aT}, s{sUT}, {j*7168}')
        A.vm_op(f'buffer_load_dwordx4 v4, {sr(aU,4)}, s{aT} offen lds',tag='ut')
    LA_PAR=17408
    A(f's_lshl_b32 s{aT}, s{aAI}, 10\nv_add_u32 v6, s{aT}, v9')
    Lq=[A.newlabel('Lpar') for _ in range(5)]
    for w in range(4):
        A(f's_cmp_lg_u32 s{aWv}, {w}\ns_cbranch_scc1 {Lq[w]}')
        A(f's_mov_b32 m0, {LA_PAR+w*1024}\ns_nop 0\nglobal_load_lds_dwordx4 v6, s[{42+2*w}:{43+2*w}]')
        if w<2: A(f's_mov_b32 m0, {LA_PAR+(w+4)*1024}\ns_nop 0\nglobal_load_lds_dwordx4 v6, s[{42+2*(w+4)}:{43+2*(w+4)}]')
        A(f's_branch {Lq[4]}')
        A.label(Lq[w])
    A.label(Lq[4])
    A.vm.append('par')
    srd(aWS,60,WS_SIZE); srd(aOUT,58,3670016)
    A(f's_load_dword s{sN}, s[60:61], {WS_EPOCH}')
    A(f's_lshl_b32 s{aT}, s{aAI}, 2\ns_add_u32 s54, s54, s{aT}\ns_addc_u32 s55, s55, 0\ns_load_dword s{aLD}, s[54:55], 0')
    A('v_mov_b32 v10, -1\nv_mov_b32 v11, -1\nv_mov_b32 v12, -1\nv_mov_b32 v13, -1')
    if LOC: A(f's_and_b32 s34, s{aAI}, 31\ns_lshl_b32 s34, s34, 3\ns_add_u32 s34, s34, s{aG}')
    else: A(f's_mov_b32 s34, s{aAI}')
    Lc=A.newlabel('Lclr')
    def clears():
        A.label(Lc)
        if not NOCLR:
            if LOC: A('s_lshr_b32 s35, s34, 3\ns_and_b32 s36, s34, 7')
            elif M16: A('s_bfe_u32 s35, s34, 0x10002\ns_lshl_b32 s35, s35, 4\ns_bfe_u32 s36, s34, 0x40003\ns_add_u32 s35, s35, s36\ns_and_b32 s36, s34, 3\ns_lshl_b32 s36, s36, 1\ns_lshr_b32 s37, s34, 7\ns_add_u32 s36, s36, s37')
            elif M2D: A('s_bfe_u32 s35, s34, 0x20001\ns_lshl_b32 s35, s35, 3\ns_bfe_u32 s36, s34, 0x30003\ns_add_u32 s35, s35, s36\ns_and_b32 s36, s34, 1\ns_lshl_b32 s36, s36, 2\ns_lshr_b32 s37, s34, 6\ns_add_u32 s36, s36, s37')
            else: A(f's_and_b32 s35, s34, 7\ns_lshl_b32 s35, s35, 2\ns_lshr_b32 s36, s34, 3\ns_and_b32 s36, s36, 3\ns_add_u32 s35, s35, s36\ns_lshr_b32 s36, s34, 5')
            A(f's_lshl_b32 s37, s36, 5\ns_add_u32 s37, s37, s35\ns_mul_i32 s37, s37, {PSTR}\ns_add_u32 s37, s37, s{aWB}\ns_add_u32 s37, s37, {WS_PART}')
            A(f'buffer_store_dwordx4 v[10:13], v9, {sr(aWS,4)}, s37 offen{LSC}\nbuffer_store_dwordx4 v[10:13], v9, {sr(aWS,4)}, s37 offen offset:1024{LSC}')
            Lr=A.newlabel('Lred')
            A(f's_cmp_lg_u32 s{aWv}, 0\ns_cbranch_scc1 {Lr}')
            A(f's_lshl_b32 s37, s36, 13\ns_lshl_b32 s38, s35, 8\ns_add_u32 s37, s37, s38\ns_add_u32 s37, s37, {WS_RED}\ns_mov_b64 exec, 0xffff')
            A(f'buffer_store_dwordx4 v[10:13], v9, {sr(aWS,4)}, s37 offen{LSC}\ns_mov_b64 exec, -1')
            A.label(Lr)
        if not LOC: A(f's_add_u32 s34, s34, 224\ns_cmp_lt_u32 s34, 256\ns_cbranch_scc1 {Lc}')
    A(f'v_lshrrev_b32 v7, 4, v0\nv_lshlrev_b32 v7, 3, v7\nv_bfe_u32 v8, v0, 2, 2\nv_add_u32 v7, v7, v8\nv_lshlrev_b32 v7, 7, v7\nv_and_b32 v8, 3, v0\nv_lshlrev_b32 v8, 3, v8\nv_add_u32 v7, v7, v8\ns_lshl_b32 s{aT}, s{aWv}, 5\nv_add_u32 v7, s{aT}, v7')
    A(f'v_and_b32 v8, 15, v0\ns_lshl_b32 s{aT}, s{aWv}, 4\nv_add_u32 v8, s{aT}, v8\nv_mul_u32_u24 v8, 144, v8\nv_lshrrev_b32 v14, 4, v0\nv_lshlrev_b32 v14, 4, v14\nv_add_u32 v8, v8, v14')
    A('v_mul_u32_u24 v14, 144, v2\nv_add_u32 v14, v14, v3')
    sTT=63
    A(f's_mul_i32 s{sTT}, s{aAI}, {TSTR}')
    A(f's_mul_i32 s{aT}, s{aWv}, {KT_W}\nv_lshlrev_b32 v57, 3, v0\nv_add_u32 v57, s{aT}, v57')
    A(f'v_and_b32 v58, 31, v0\nv_mul_u32_u24 v58, {KT_R}, v58\nv_lshrrev_b32 v59, 5, v0\nv_lshlrev_b32 v59, 4, v59\nv_add_u32 v58, v58, v59\nv_add_u32 v58, s{aT}, v58')
    A(f'v_mul_u32_u24 v1, {T_S}, v0\nv_add_u32 v1, {LA_T+2600}, v1\nv_mov_b32 v14, 0\ns_mov_b64 exec, 3\nds_write_b32 v1, v14\ns_mov_b64 exec, -1')
    A('v_mul_u32_u24 v14, 144, v2\nv_add_u32 v14, v14, v3')
    A.vm_drain()
    A('s_barrier')
    A(f's_lshl_b32 s{aT}, s{aC}, 9\ns_lshl_b32 s{aT2}, s{aHF}, 8\ns_add_u32 s{aT}, s{aT}, s{aT2}\nv_lshlrev_b32 v6, 2, v0\nv_add_u32 v6, s{aT}, v6')
    for k in range(6): A(f'ds_read_b32 v{32+k}, v6 offset:{17408+k*1024}')
    for it in range(2):
        A(f'ds_read_b64_tr_b16 {vr(64+4*it,2)}, v7 offset:{LA_UIMG+it*4096}\nds_read_b64_tr_b16 {vr(66+4*it,2)}, v7 offset:{LA_UIMG+it*4096+512}')
    A('s_waitcnt lgkmcnt(0)')
    for it in range(2): A(f'ds_write_b128 v8, {vr(64+4*it,4)} offset:{LA_T2+64*it}')
    for j in range(2): A(f'ds_read_b128 {vr(72+4*j,4)}, v14 offset:{LA_T2+j*8*144}')
    A('s_waitcnt lgkmcnt(0)')
    for j in range(2):
        A(f's_add_u32 s{aT}, s{sTT}, {WS_UT+j*1024}')
        A.vm_op(f'buffer_store_dwordx4 {vr(72+4*j,4)}, v5, {sr(aWS,4)}, s{aT} offen'+LSC,tag='uts')
    clears()
    A('s_getpc_b64 s[64:65]')
    A.label('L_pc')
    A('s_add_u32 s64, s64, L_tab-L_pc\ns_addc_u32 s65, s65, 0')
    A(f's_lshl_b32 s{aT}, s{aWv}, 6\nv_add_u32 v1, s{aT}, v0\nv_lshlrev_b32 v6, 4, v1\nv_lshlrev_b32 v1, 3, v1\nv_add_u32 v1, {256*16}, v1')
    A.vm_op('global_load_dwordx4 v[172:175], v6, s[64:65]',tag='tab'); A.vm_op('global_load_dwordx2 v[176:177], v1, s[64:65]',tag='tab')
    stamp('A uT stored')
    if '--aprio' in sys.argv: A(f's_setprio {AP1}')
    A(f's_lshl_b32 s{aT}, s{aC}, 4\ns_lshr_b32 s{aLD}, s{aLD}, s{aT}\ns_lshl_b32 s{aLD}, s{aLD}, 16')
    A(f'v_mov_b32 v14, s{aLD}\nv_mul_f32 v14, {hex(LOG2E)}, v14\nv_exp_f32 v14, v14\ns_nop 0\nv_cvt_pk_bf16_f32 v14, v14, v14\nv_lshlrev_b32 v15, 16, v14')
    BS=[192,224]
    for st in range(2):
        B_=BS[st]
        for k in range(6):
            if st==0: A(f'v_lshlrev_b32 v{B_+k}, 16, v{32+k}')
            else: A(f'v_and_b32 v{B_+k}, 0xffff0000, v{32+k}')
        for k in range(4): A(f'v_mul_f32 v{B_+k}, v15, v{B_+k}')
    for st in range(2):
        B_=BS[st]
        A(f'v_mul_f32 v60, v{B_+5}, v{B_+3}\nv_mul_f32 v61, v{B_+5}, v{B_+2}\nv_fma_f32 v{B_+6}, v{B_+4}, v{B_+2}, -v60\nv_fma_f32 v{B_+7}, -v{B_+4}, v{B_+3}, -v61')
    for off,k,conj in ((10,8,False),(8,1,True),(12,256,True)):
        for st in range(2):
            B_=BS[st]; t=60+2*st
            A(f'v_mul_f32 v{t}, {f32(k*math.log2(math.e))}, v{B_}\nv_mul_f32 v{t+1}, {f32(k/(2*math.pi))}, v{B_+1}')
        for st in range(2):
            t=60+2*st
            A(f'v_exp_f32 v{t}, v{t}\nv_fract_f32 v{t+1}, v{t+1}')
        for st in range(2):
            B_=BS[st]; t=60+2*st
            A(f'v_cos_f32 v{B_+off}, v{t+1}\nv_sin_f32 v{B_+off+1}, v{t+1}')
        for st in range(2):
            B_=BS[st]; t=60+2*st
            A(f'v_mul_f32 v{B_+off}, v{t}, v{B_+off}')
            A(f'v_mul_f32 v{B_+off+1}, v{t}, v{B_+off+1}' if not conj else f'v_mul_f32_e64 v{B_+off+1}, -v{t}, v{B_+off+1}')
    def cm2(d,z,m):
        if '--nokv' in sys.argv: return
        for st in range(2):
            B_=BS[st]
            A(f'v_mul_f32 v{B_+30}, v{B_+z+1}, v{B_+m+1}\nv_mul_f32 v{B_+d+1}, v{B_+z+1}, v{B_+m}')
        for st in range(2):
            B_=BS[st]
            A(f'v_fmac_f32 v{B_+d+1}, v{B_+z}, v{B_+m+1}\nv_fma_f32 v{B_+d}, v{B_+z}, v{B_+m}, -v{B_+30}')
    cm2(14,12,12)
    cm2(16,14,14)
    A.vm_drain()
    A('s_barrier')
    A(f's_add_u32 s{sN}, s{sN}, {NONCE_C}')
    a_flag_store(WS_FLAGA1)
    stamp('A flag1 set')
    if ASTOP==1:
        prof_flush(aWS,aWv,256); A('s_endpgm'); return
    rot=[0]
    WT=[40,42,44,46,48,50,52,54]
    def wr2(offs,row):
        t=WT[rot[0]%len(WT)]; rot[0]+=1
        A(f'v_cvt_pk_bf16_f32 v{t}, v{BS[0]+offs}, v{BS[0]+offs+1}\nv_cvt_pk_bf16_f32 v{t+1}, v{BS[1]+offs}, v{BS[1]+offs+1}')
        if '--nokw' not in sys.argv: A(f'ds_write_b64 v57, {vr(t,2)} offset:{row*KT_R}')
    A('v_mov_b32 v54, 0x3f80\nv_mov_b32 v55, 0x3f80\nds_write_b64 v57, v[54:55] offset:0')
    wr2(10,1)
    cm2(18,10,10); wr2(18,2)
    for j in range(3,32):
        cm2(18,18,10); wr2(18,j)
    A('s_waitcnt lgkmcnt(0)')
    for kk in range(16): A(f'ds_read_b128 {vr(64+4*kk,4)}, v58 offset:{32*kk}')
    stamp('A E done')
    if ASTOP==2:
        prof_flush(aWS,aWv,256); A('s_endpgm'); return
    A('s_waitcnt lgkmcnt(0)')
    wr2(6,0)
    cm2(18,6,8); wr2(18,1)
    cm2(20,18,8); wr2(20,2)
    cm2(18,20,8); wr2(18,3)
    cm2(22,18,8); wr2(22,4)
    cm2(18,22,8); wr2(18,5)
    cm2(24,18,8); wr2(24,6)
    cm2(18,24,8); wr2(18,7)
    for r,src in enumerate((6,20,22,24)):
        cm2(18,src,12); wr2(18,8+r)
    cm2(26,6,14); wr2(26,12)
    cm2(28,22,14); wr2(28,13)
    cm2(26,26,12); wr2(26,14)
    cm2(28,28,12); wr2(28,15)
    cm2(18,6,16); wr2(18,16)
    for r in range(17,21):
        cm2(18,18,12); wr2(18,r)
    a_flag_poll(WS_FLAGA1)
    A(f'v_lshrrev_b32 v2, 3, v0\nv_mul_u32_u24 v2, {TSTR}, v2\nv_and_b32 v3, 7, v0\nv_lshlrev_b32 v3, 4, v3\nv_add_u32 v60, v2, v3')
    A(f's_lshl_b32 s{aT}, s{aG}, 5\ns_lshl_b32 s{aT2}, s{aHF}, 4\ns_add_u32 s{aT}, s{aT}, s{aT2}\ns_mul_i32 s{aT}, s{aT}, {TSTR}')
    A(f's_lshl_b32 s{aT2}, s{aAI}, 1\ns_add_u32 s{aT2}, s{aT2}, s{aC}\ns_and_b32 s{aT2}, s{aT2}, 63\ns_lshl_b32 s{aT2}, s{aT2}, 7\ns_add_u32 s62, s{aT}, s{aT2}')
    A(f's_mul_i32 s35, s{aC}, {UC_S}\ns_lshl_b32 s{aT2}, s{aHF}, 11\ns_add_u32 s35, s35, s{aT2}\ns_add_u32 s35, s35, {LA_UC+UPAD}')
    for j in range(2):
        A(f's_add_u32 m0, s35, {j*1024}\ns_add_u32 s{aT}, s62, {WS_UT+j*8*TSTR}')
        A.vm_op(f'buffer_load_dwordx4 v60, {sr(aWS,4)}, s{aT} offen sc1 lds',tag='uc')
    A('v_mov_b32 v10, 0\nv_mov_b32 v11, 0\nv_mov_b32 v12, 0\nv_mov_b32 v13, 0')
    A(f's_mul_i32 s{aT}, s{aC}, {UC_S}\ns_add_u32 s{aT}, s{aT}, {LA_UC}\nv_add_u32 v2, s{aT}, v9\ns_mov_b32 exec_lo, 0x3fffffff\ns_mov_b32 exec_hi, 0\nds_write_b128 v2, v[10:13]\ns_mov_b64 exec, -1')
    A('s_waitcnt lgkmcnt(0)')
    for g in range(4):
        for k in range(4): A(f'ds_read_b128 {vr(128+16*(g&1)+4*k,4)}, v58 offset:{32*(4*g+k)}')
        if g>=1:
            for k in range(4):
                kk=4*(g-1)+k
                A(f's_waitcnt lgkmcnt({7-k})')
                A(f'v_mfma_f32_32x32x16_bf16 v[16:31], {vr(128+16*((g-1)&1)+4*k,4)}, {vr(64+4*kk,4)}, '+('0' if kk==0 else 'v[16:31]'))
    for k in range(4):
        kk=12+k
        A(f's_waitcnt lgkmcnt({3-k})')
        A(f'v_mfma_f32_32x32x16_bf16 v[16:31], {vr(128+16+4*k,4)}, {vr(64+4*kk,4)}, v[16:31]')
    A.vm_wait('tab')
    A(f'v_mov_b32 v1, {LA_T}')
    for i in range(11):
        r=172+i//2 if i<8 else 176+(i-8)//2
        A(f'v_add_u32_sdwa v{160+i}, v1, v{r} dst_sel:DWORD dst_unused:UNUSED_PAD src0_sel:DWORD src1_sel:WORD_{i%2}')
    A(f's_mul_i32 s{aT}, s{aC}, {T_S}\ns_add_u32 s{aT}, s{aT}, {LA_T}')
    A('v_and_b32 v3, 31, v0\nv_lshrrev_b32 v4, 5, v0\nv_cmp_eq_u32 vcc, 1, v4')
    A(f'v_lshlrev_b32 v10, 5, v3\nv_lshlrev_b32 v6, 4, v4\nv_add_u32 v10, v10, v6\nv_add_u32 v10, s{aT}, v10')
    A('v_lshlrev_b32 v6, 4, v3\nv_add_u32 v6, 1024, v6\nv_lshlrev_b32 v7, 3, v3\nv_add_u32 v7, 1536, v7\nv_cndmask_b32 v6, v6, v7, vcc')
    A('v_add_u32 v7, 8, v6\nv_add_u32 v8, 256, v6\nv_cndmask_b32 v7, v7, v8, vcc')
    A(f'v_add_u32 v6, s{aT}, v6\nv_add_u32 v7, s{aT}, v7')
    A('v_lshlrev_b32 v8, 2, v3\nv_add_u32 v8, 2048, v8\nv_mov_b32 v14, 2560\nv_cndmask_b32 v8, v8, v14, vcc')
    A(f'v_add_u32 v8, s{aT}, v8')
    A(f'v_lshrrev_b32 v3, 3, v0\ns_lshl_b32 s{aT}, s{aWv}, 4\nv_add_u32 v3, s{aT}, v3\nv_and_b32 v4, 7, v0\nv_lshlrev_b32 v4, 4, v4')
    A('v_mul_u32_u24 v5, 896, v3\nv_add_u32 v5, v5, v4\nv_lshlrev_b32 v61, 7, v3\nv_add_u32 v61, v61, v4')
    A.nop(2)
    stamp('A kgen done')
    A(f's_mul_i32 s{aT}, s{aWv}, {KT_W}\nv_add_u32 v2, s{aT}, v9\ns_xor_b32 s{aT}, s{aWv}, 1\ns_mul_i32 s{aT}, s{aT}, {KT_W}\nv_add_u32 v12, s{aT}, v9')
    Lh1=A.newlabel('Lkh1'); Lh2=A.newlabel('Lkh2')
    A(f's_cmp_lg_u32 s{aHF}, 0\ns_cbranch_scc1 {Lh1}')
    A('ds_write_b128 v2, v[24:27]\ns_waitcnt lgkmcnt(0)\ns_barrier')
    A('ds_read_b128 v[64:67], v12\nds_read_b128 v[68:71], v12 offset:1024\ns_waitcnt lgkmcnt(0)')
    for k in range(8): A(f'v_add_f32 v{16+k}, v{16+k}, v{64+k}')
    A('ds_write_b128 v10, v[16:19]\nds_write_b64 v6, v[20:21]\nds_write_b64 v7, v[22:23]')
    A(f's_branch {Lh2}')
    A.label(Lh1)
    A('ds_write_b128 v2, v[16:19]\nds_write_b128 v2, v[20:23] offset:1024\ns_waitcnt lgkmcnt(0)\ns_barrier')
    A('ds_read_b128 v[64:67], v12\ns_waitcnt lgkmcnt(0)')
    A('v_add_f32 v24, v24, v64\nv_add_f32 v25, v25, v65\nv_add_f32 v26, v26, v66\nv_add_f32 v27, v27, v67')
    A('s_mov_b32 exec_hi, 1\nds_write_b32 v8, v24\ns_mov_b32 exec_hi, 0')
    A('ds_write_b32 v8, v25 offset:128\nds_write_b32 v8, v26 offset:256\nds_write_b32 v8, v27 offset:384\ns_mov_b32 exec_hi, -1')
    A.label(Lh2)
    A(f's_lshl_b32 s{aT}, s{aWv}, 6\nv_add_u32 v2, s{aT}, v0\nv_lshlrev_b32 v4, 4, v2')
    A('s_waitcnt lgkmcnt(0)')
    stamp('A adds done')
    A('s_barrier')
    for c in range(2):
        for i in range(11): A(f'ds_read_b32 v{64+16*c+i}, v{160+i} offset:{c*T_S}')
    for j in range(2):
        A(f's_add_u32 m0, s{aWB}, {LA_UIMG2+j*1024}\ns_add_u32 s{aT}, s{sUT}, {j*7168}')
        A.vm_op(f'buffer_load_dwordx4 v5, {sr(aU,4)}, s{aT} offen lds',tag='ut2')
    A(f'v_lshrrev_b32 v6, 4, v0\nv_lshlrev_b32 v6, 4, v6\ns_lshl_b32 s{aT}, s{aG}, 7\nv_add_u32 v6, s{aT}, v6')
    A.vm_op('global_load_dwordx4 v[184:187], v6, s[56:57]',tag='d'); A.vm_op('global_load_dwordx4 v[188:191], v6, s[56:57] offset:64',tag='d')
    A(f'v_lshrrev_b32 v7, 1, v0\nv_and_b32 v8, 3, v7\nv_mul_u32_u24 v8, {C_M}, v8\nv_lshrrev_b32 v7, 2, v7\nv_mul_u32_u24 v7, {C_CH}, v7\nv_add_u32 v8, v8, v7\nv_and_b32 v7, 1, v0\nv_lshlrev_b32 v7, 4, v7\nv_add_u32 v8, v8, v7')
    A('v_mov_b32 v10, 0\nv_mov_b32 v11, 0\nv_mov_b32 v12, 0\nv_mov_b32 v13, 0\ns_mov_b64 exec, 0xffff')
    A(f'ds_write_b128 v8, v[10:13] offset:{LA_C+4096}\ns_mov_b64 exec, -1')
    for c in range(2):
        A(f's_waitcnt lgkmcnt({12 if c==0 else 4})')
        g=64+16*c
        for m in range(4):
            for d in range(4): A(f'v_cvt_pk_bf16_f32 v{96+4*m+d}, v{g+m+2*d}, v{g+m+2*d+1}')
        for m in range(4): A(f'ds_write_b128 v4, {vr(96+4*m,4)} offset:{LA_C+c*C_CH+m*C_M}')
    stamp('A copies issued')
    A('v_and_b32 v2, 15, v0\nv_lshrrev_b32 v3, 4, v0\nv_and_b32 v5, 1, v3\nv_lshrrev_b32 v6, 1, v3')
    A(f'v_sub_u32 v7, 3, v2\nv_and_b32 v7, 3, v7')
    A(f'v_lshlrev_b32 v8, 4, v6\nv_add_u32 v8, v8, v2\nv_lshlrev_b32 v14, 3, v5\nv_sub_u32 v8, v8, v14\nv_add_u32 v8, v8, v7')
    A(f'v_sub_u32 v8, {XB}, v8\nv_lshlrev_b32 v8, 1, v8\nv_mul_u32_u24 v14, {C_M}, v7\nv_add_u32 v8, v8, v14')
    A(f's_mul_i32 s{aT}, s{aC}, {C_CH}\ns_lshl_b32 s{aT2}, s{aHF}, 8\ns_sub_u32 s{aT}, s{aT}, s{aT2}\ns_add_u32 s{aT}, s{aT}, {LA_C-64*59}\nv_add_u32 v48, s{aT}, v8')
    A('v_lshlrev_b32 v7, 4, v5\nv_lshlrev_b32 v8, 5, v6\nv_sub_u32 v7, v7, v8\nv_lshlrev_b32 v14, 5, v2\nv_add_u32 v14, v14, v7')
    A(f's_mul_i32 s{aT}, s{aC}, {UC_S}\ns_sub_u32 s{aT}, s{aT}, s{aT2}\ns_add_u32 s{aT}, s{aT}, {LA_UC+UPAD-192}\nv_add_u32 v56, s{aT}, v14')
    A.vm_wait('uc',' lgkmcnt(0)')
    A('s_barrier')
    stamp('A conv start')
    AB=[64,128]; BB=[96,192]
    def rdconv(rr):
        s_=rr&1
        for w in range(8): A(f'ds_read_b128 {vr(BB[s_]+4*w,4)}, v56 offset:{512*w+64*(3-rr)}')
        for q in range(8):
            o=64*(59-(8*q+rr))
            A(f'ds_read_b64 {vr(AB[s_]+4*q,2)}, v48 offset:{o}\nds_read_b64 {vr(AB[s_]+4*q+2,2)}, v48 offset:{o+8}')
    def rdlist(rr):
        s_=rr&1; L=[]
        for w in range(8): L.append(f'ds_read_b128 {vr(BB[s_]+4*w,4)}, v56 offset:{512*w+64*(3-rr)}')
        for q in range(8):
            o=64*(59-(8*q+rr))
            L.append(f'ds_read_b64 {vr(AB[s_]+4*q,2)}, v48 offset:{o}'); L.append(f'ds_read_b64 {vr(AB[s_]+4*q+2,2)}, v48 offset:{o+8}')
        return L
    for x in rdlist(0): A(x)
    for rr in range(4):
        s_=rr&1
        A('s_waitcnt lgkmcnt(0)')
        nxt=rdlist(rr+1) if rr<3 else []
        n=0
        for q in range(8):
            for w in range(8-q):
                t=q+w
                cin='0' if (rr==0 and q==0) else vr(16+4*t,4)
                A(f'v_mfma_f32_16x16x32_bf16 {vr(16+4*t,4)}, {vr(AB[s_]+4*q,4)}, {vr(BB[s_]+4*w,4)}, {cin}')
                n+=1
                if nxt and n>=2: A(nxt.pop(0))
        assert not nxt
    stamp('A conv done')
    if AP2!=AP1: A(f's_setprio {AP2}')
    A('s_barrier')
    A(f's_lshl_b32 s{aT}, s{aWv}, 12\ns_add_u32 s{aT}, s{aT}, {LA_EX}\nv_add_u32 v2, s{aT}, v9')
    A(f's_xor_b32 s{aT}, s{aWv}, 1\ns_lshl_b32 s{aT}, s{aT}, 12\ns_add_u32 s{aT}, s{aT}, {LA_EX}\nv_add_u32 v5, s{aT}, v9')
    A(f'v_and_b32 v3, 15, v0\nv_lshlrev_b32 v3, 5, v3\nv_lshrrev_b32 v4, 4, v0\nv_lshlrev_b32 v4, 3, v4\nv_add_u32 v3, v3, v4\ns_add_u32 s{aT}, s{aWB}, {LA_Y}\nv_add_u32 v3, s{aT}, v3\nv_add_u32 v4, s{aT}, v9')
    L1=A.newlabel('Lcx'); L2=A.newlabel('Lcy')
    def fin(keep,send):
        for k in range(4): A(f'ds_write_b128 v2, {vr(send+4*k,4)} offset:{k*1024}')
        A('s_waitcnt lgkmcnt(0)\ns_barrier')
        for k in range(4): A(f'ds_read_b128 {vr(64+4*k,4)}, v5 offset:{k*1024}')
        A('s_waitcnt lgkmcnt(0)')
        for k in range(16): A(f'v_add_f32 v{keep+k}, v{keep+k}, v{64+k}')
        for k in range(8): A(f'v_cvt_pk_bf16_f32 v{64+k}, v{keep+2*k}, v{keep+1+2*k}')
    A(f's_cmp_lg_u32 s{aHF}, 0\ns_cbranch_scc1 {L1}')
    fin(16,32)
    A(f's_branch {L2}')
    A.label(L1)
    fin(32,16)
    A.label(L2)
    for k in range(4): A(f'ds_write_b64 v3, {vr(64+2*k,2)} offset:{512*k}')
    A('ds_read_b128 v[72:75], v4\nds_read_b128 v[76:79], v4 offset:1024')
    A(f's_add_u32 s{aT}, s62, {WS_YT}\ns_add_u32 s{aT2}, s62, {WS_YT+8*TSTR}')
    A('s_waitcnt lgkmcnt(0)')
    A.vm_op(f'buffer_store_dwordx4 v[72:75], v60, {sr(aWS,4)}, s{aT} offen'+LSC,tag='ys')
    A.vm_op(f'buffer_store_dwordx4 v[76:79], v60, {sr(aWS,4)}, s{aT2} offen'+LSC,tag='ys')
    A(f'v_lshrrev_b32 v7, 4, v0\nv_lshlrev_b32 v7, 3, v7\nv_bfe_u32 v8, v0, 2, 2\nv_add_u32 v7, v7, v8\nv_lshlrev_b32 v7, 7, v7\nv_and_b32 v8, 3, v0\nv_lshlrev_b32 v8, 3, v8\nv_add_u32 v7, v7, v8\ns_lshl_b32 s{aT}, s{aWv}, 5\nv_add_u32 v7, s{aT}, v7')
    A(f'v_and_b32 v8, 15, v0\ns_lshl_b32 s{aT}, s{aWv}, 4\nv_add_u32 v8, s{aT}, v8\nv_lshlrev_b32 v14, 7, v8\nv_lshrrev_b32 v6, 4, v0\nv_lshlrev_b32 v6, 4, v6\nv_add_u32 v14, v14, v6')
    LA_OIMG=16384
    A(f'v_mul_u32_u24 v50, 144, v8\nv_add_u32 v50, v50, v6\nv_add_u32 v50, {LA_OIMG}, v50')
    A(f'v_lshrrev_b32 v51, 3, v0\ns_lshl_b32 s{aT}, s{aWv}, 4\nv_add_u32 v51, s{aT}, v51\nv_and_b32 v52, 7, v0\nv_lshlrev_b32 v52, 4, v52')
    A(f'v_mul_u32_u24 v53, 144, v51\nv_add_u32 v53, v53, v52\nv_add_u32 v53, {LA_OIMG}, v53')
    A(f's_lshl_b32 s{aT}, s{aTB}, 6\nv_add_u32 v51, s{aT}, v51\nv_mul_u32_u24 v51, 1792, v51\nv_add_u32 v51, v51, v52\ns_lshl_b32 s34, s{aG}, 7\ns_add_u32 s35, s34, {8*1792}')
    A.vm_wait('d')
    for it in range(2):
        for k in range(4):
            A(f'v_lshlrev_b32 v{192+8*it+2*k}, 16, v{184+4*it+k}\nv_and_b32 v{193+8*it+2*k}, 0xffff0000, v{184+4*it+k}')
    A.vm_drain()
    A('s_barrier')
    a_flag_store(WS_FLAGA2)
    stamp('A flag2 set')
    for it in range(2): A(f'ds_read_b128 {vr(72+4*it,4)}, v14 offset:{LA_UIMG2+64*it}')
    A('s_waitcnt lgkmcnt(0)')
    for it in range(2):
        for k in range(4):
            A(f'v_lshlrev_b32 v{208+8*it+2*k}, 16, v{72+4*it+k}\nv_and_b32 v{209+8*it+2*k}, 0xffff0000, v{72+4*it+k}')
    for k in range(16): A(f'v_mul_f32 v{208+k}, v{208+k}, v{192+k}')
    a_flag_poll(WS_FLAGA2)
    stamp('A flag2 seen')
    for j in range(2):
        A(f's_add_u32 m0, s{aWB}, {LA_YIMG+j*1024}\ns_add_u32 s{aT}, s{sTT}, {WS_YT+j*1024}')
        A.vm_op(f'buffer_load_dwordx4 v61, {sr(aWS,4)}, s{aT} offen sc1 lds',tag='yt')
    A.vm_drain()
    A('s_barrier')
    for it in range(2):
        A(f'ds_read_b64_tr_b16 {vr(64+4*it,2)}, v7 offset:{LA_YIMG+it*4096}\nds_read_b64_tr_b16 {vr(66+4*it,2)}, v7 offset:{LA_YIMG+it*4096+512}')
    for it in range(2):
        A(f's_waitcnt lgkmcnt({2*(1-it)+it})')
        for k in range(4):
            y=64+4*it+k
            A(f'v_lshlrev_b32 v96, 16, v{y}\nv_and_b32 v97, 0xffff0000, v{y}')
            A(f'v_add_f32 v96, v96, v{208+8*it+2*k}\nv_add_f32 v97, v97, v{209+8*it+2*k}')
            A(f'v_cvt_pk_bf16_f32 v{104+4*it+k}, v96, v97')
        A(f'ds_write_b128 v50, {vr(104+4*it,4)} offset:{64*it}')
    A('ds_read_b128 v[112:115], v53\nds_read_b128 v[116:119], v53 offset:1152')
    A(f's_waitcnt lgkmcnt(1)\nbuffer_store_dwordx4 v[112:115], v51, {sr(aOUT,4)}, s34 offen'+OSC+f'\ns_waitcnt lgkmcnt(0)\nbuffer_store_dwordx4 v[116:119], v51, {sr(aOUT,4)}, s35 offen'+OSC)
    stamp('A end')
    prof_flush(aWS,aWv,256)
    A('s_endpgm')

def main():
    hdr=f'''; S4 conv (A) + hedgehog linear attention (B), single launch, 256 B-workgroups + 224 A-workgroups
; @launch grid=({NB+NA},1,1) block=(256,1,1) lds={LDS_BYTES}
.amdgcn_target "amdgcn-amd-amdhsa--gfx950"
.text
.globl {KN}
.p2align 8
.type {KN},@function
{KN}:
'''
    if '--pf' in sys.argv:
        A('s_getpc_b64 s[4:5]')
        A.label('L_pf')
        A(f's_lshr_b32 s6, s2, 3\ns_and_b32 s6, s6, 31\ns_lshl_b32 s6, s6, 10\nv_and_b32 v1, 7, v0\nv_lshlrev_b32 v1, 7, v1\nv_add_u32 v1, s6, v1\nv_min_u32 v1, L_end-'+KN+'-4, v1')
        A('s_sub_u32 s4, s4, L_pf-'+KN+'\ns_subb_u32 s5, s5, 0')
        A(f's_cmp_ge_u32 s2, {NB+NA}\ns_cbranch_scc1 L_exit')
        A('v_cmp_gt_u32 vcc, 8, v0\ns_and_saveexec_b64 s[6:7], vcc\ns_cbranch_execz L_pfd\nglobal_load_dword v255, v1, s[4:5]')
        A.label('L_pfd')
        A('s_mov_b64 exec, -1')
    A(f's_cmp_ge_u32 s2, {NB+NA}\ns_cbranch_scc1 L_exit\ns_cmp_lt_u32 s2, {NA}\ns_cbranch_scc1 L_A\ns_sub_u32 s2, s2, {NA}')
    if NOB: A('s_endpgm')
    else: gen_B()
    if NOA: A.label('L_A'); A('s_endpgm')
    else: gen_A()
    A.label('L_exit'); A('s_endpgm')
    tail=f'''.section .rodata,"a"
.p2align 6
.amdhsa_kernel {KN}
  .amdhsa_next_free_vgpr 256
  .amdhsa_next_free_sgpr 102
  .amdhsa_accum_offset 256
  .amdhsa_group_segment_fixed_size 0
  .amdhsa_kernarg_size 128
  .amdhsa_user_sgpr_count 2
  .amdhsa_user_sgpr_kernarg_segment_ptr 1
  .amdhsa_system_sgpr_workgroup_id_x 1
.end_amdhsa_kernel
'''
    body=A.text()
    data=''
    if not NOA:
        import numpy as np
        def idx(l):
            if l<0 or l>2047: return 650
            u=np.array([float(l)],np.float32).view(np.uint32)[0]
            bits=int((int(u)+0x7FFF+((int(u)>>16)&1))>>16)
            return l if l<128 else bits-17024
        t4=[];t2=[]
        for t in range(256):
            g=[4*idx(2047-8*t-i) for i in range(11)]+[0]
            t4+=g[:8]; t2+=g[8:12]
        data='.p2align 4\nL_tab:\n'
        for arr in (t4,t2):
            for i in range(0,len(arr),16): data+='  .short '+', '.join(str(x) for x in arr[i:i+16])+'\n'
    data+='L_end:\n'
    open(OUTF,'w').write(hdr+body+data+tail)
    import subprocess
    r=subprocess.run(['clang','-x','assembler','-target','amdgcn-amd-amdhsa','-mcpu=gfx950','-c',OUTF,'-o','chk.o'],capture_output=True,text=True)
    if r.returncode: print('ASM ERRORS:\n'+r.stderr[:3000])
    errs=lint.lint(body)
    for e in errs: print('LINT',e)
    print('wrote',OUTF,len(body.split(chr(10))),'lines;',len(errs),'lint findings')
main()
```

```python
import sys
from asmlib import Asm, vr, sr
import lint
KN='concat_heads__ssm_conv_s4__linear_kernel_hedgehog__prompt_kernel'
PROF = '--prof' in sys.argv
NOA  = '--noA' in sys.argv
NOB  = '--noB' in sys.argv
NOCLR = '--noclr' in sys.argv
KST = '--kst' in sys.argv
PST = '--pst' in sys.argv
WOE = '--woe' in sys.argv
ROT = [tuple(int(x) for x in a.split('=')[1].split(',')) for a in sys.argv if a.startswith('--rot=')]
ROT = ROT[0] if ROT else None
M16 = '--map16' in sys.argv
M2D = '--map2d' in sys.argv
OSC = ' sc1' if '--osc1' in sys.argv else (' nt' if '--ont' in sys.argv else '')
PSL = int([a.split('=')[1] for a in sys.argv if a.startswith('--psl=')][0]) if any(a.startswith('--psl=') for a in sys.argv) else 0
KDMA = '--kdma' in sys.argv
LOC = '--loc' in sys.argv
LSC = '' if LOC else ' sc1'
BPRIO = [int(a.split('=')[1]) for a in sys.argv if a.startswith('--bprio=')]
BPRIO = BPRIO[0] if BPRIO else 2
BPRIO0 = [int(a.split('=')[1]) for a in sys.argv if a.startswith('--bprio0=')]
BPRIO0 = BPRIO0[0] if BPRIO0 else BPRIO
AP1 = [int(a.split('=')[1]) for a in sys.argv if a.startswith('--ap1=')]
AP1 = AP1[0] if AP1 else 0
AP2 = [int(a.split('=')[1]) for a in sys.argv if a.startswith('--ap2=')]
AP2 = AP2[0] if AP2 else AP1
KDEPTH = [int(a.split('=')[1]) for a in sys.argv if a.startswith('--kd=')]
KDEPTH = KDEPTH[0] if KDEPTH else 3
ASTOP = [int(a.split('=')[1]) for a in sys.argv if a.startswith('--astop=')]
ASTOP = ASTOP[0] if ASTOP else 99
OUTF = [a for a in sys.argv[1:] if not a.startswith('--')]
OUTF = OUTF[0] if OUTF else 'out.s'

WS_EPOCH=0; WS_FLAGA1=0x10000; WS_FLAGA2=0x20000; WS_FLAGB2=0x30000
PSTR=8448; TSTR=8448
WS_PART=0x100000; WS_OBUF=WS_PART+256*PSTR; WS_RED=WS_OBUF+0x200000; CLR_KB=(256*PSTR+0x200000+0x10000)//1024
WS_UT=0x600000; WS_YT=0x800000; WS_PROF=0xA00000
WS_SIZE=0xC00000
NONCE_C=0x9E3779B9
LDS_BYTES=81920
NB=256; NA=256 if '--loc' in sys.argv else 224
SPIN=20000 if '--shortspin' not in sys.argv else 20
LOG2E=0x3fb8aa3b

A=Asm()
prof_n=[0]
def stamp(name):
    if not PROF: return
    i=prof_n[0]; prof_n[0]+=1
    if PST and i>=12 : prof_n[0]-=1; return
    assert i<16, name
    A(f's_memrealtime s[{70+2*i}:{71+2*i}]')
    A.c('stamp %d %s'%(i,name))
def cstamp(name):
    if not PROF: return
    i=prof_n[0]; prof_n[0]+=1
    assert i<16, name
    A(f's_memtime s[{70+2*i}:{71+2*i}]')
    A.c('stamp %d %s'%(i,name))
def prof_flush(srd_ws, wavereg, add=0):
    if not PROF: return
    n=prof_n[0]; prof_n[0]=0
    A('s_waitcnt lgkmcnt(0) vmcnt(0)')
    A(f's_add_u32 s68, s2, {add}\ns_lshl_b32 s68, s68, 2\ns_add_u32 s68, s68, s{wavereg}\ns_lshl_b32 s68, s68, 7\ns_add_u32 s68, s68, {WS_PROF}')
    A('v_mov_b32 v10, 0')
    for i in range(n):
        A(f'v_writelane_b32 v10, s{70+2*i}, {i}')
    A('v_lshlrev_b32 v11, 2, v0\ns_mov_b64 exec, 0xffff')
    A(f'buffer_store_dword v10, v11, {sr(srd_ws,4)}, s68 offen')
    A('s_mov_b64 exec, -1')

def srd(dst, base, nrec):
    A(f's_mov_b32 s{dst}, s{base}\ns_and_b32 s{dst+1}, s{base+1}, 0xffff')
    if isinstance(nrec,int): A(f's_mov_b32 s{dst+2}, {nrec}')
    else: A(f's_mov_b32 s{dst+2}, {nrec}')
    A(f's_mov_b32 s{dst+3}, 0x20000')

S_X=8; S_W=12; S_WO=16; S_WP=20; S_WS=24; S_OUT=28
sN=32; sW=33; sRT=34; sA=35; sRB=36; sP=37; sT=38; sT2=39
sWB=48
sP112=49
sCP=50
sHI=58
sLO=60
sC2=62
sPART=64; sOB=65; sRED=66; sCNT=67
vXA0=1; vXA1=2; vWA=3; vXR=4; vWR=8; vL16=9
vT=10
accA=16; accB=32; wf=48; wpf=64; EP=72; EN=88; PK=104; vU=120
XF=128
SLOT=8192; NSLOT=7
L_PHI=57344; PHI_H=8704
L_WP=L_PHI
L_KVF=L_PHI

def dma(voff, srdb, soff, ldsbase_imm):
    A(f's_add_u32 m0, s{sWB}, {ldsbase_imm}')
    return f'buffer_load_dwordx4 v{voff}, {sr(srdb,4)}, s{soff} offen lds'

def slotaddr(u):
    if KDMA: return (u%7)*8192
    if u<14: return ((u//2)&1)*16384 + (u&1)*8192
    c=(u-14)%7
    return 32768+c*8192 if c<3 else (c-3)*8192
def w_soff(c,sec,j):
    A(f's_mul_i32 s{sT}, s{sCP+c}, 172032')
    A(f's_add_u32 s{sT}, s{sT}, s{sP112}')
    A(f's_add_u32 s{sT}, s{sT}, {sec*896+j*21504}')
def issue_reg(c):
    for j in range(2):
        A(f's_lshl_b32 s{sT}, s{sCP+c}, 7')
        A.vm_op(f'buffer_load_dwordx4 {vr(XF+16*c+4*j,4)}, v{vXA0+j}, {sr(S_X,4)}, s{sT} offen', tag=('k',c))
    for j in range(2):
        w_soff(c,1,j)
        A.vm_op(f'buffer_load_dwordx4 {vr(XF+16*c+8+4*j,4)}, v{vWA}, {sr(S_W,4)}, s{sT} offen', tag=('k',c))
def write_k(c,vLW):
    b=(c&1)*16384
    for j in range(2):
        A(f'ds_write_b128 v{vLW}, {vr(XF+16*c+4*j,4)} offset:{b+j*1024}')
        A(f'ds_write_b128 v{vLW}, {vr(XF+16*c+8+4*j,4)} offset:{b+8192+j*1024}')
def issue_unit(u):
    slot=slotaddr(u)
    if u<14:
        c=u//2
        for j in range(2):
            A(f's_add_u32 m0, s{sWB}, {slot+j*1024}')
            if u&1:
                w_soff(c,1,j)
                A.vm_op(f'buffer_load_dwordx4 v{vWA}, {sr(S_W,4)}, s{sT} offen lds', tag=('u',u))
            else:
                A(f's_lshl_b32 s{sT}, s{sCP+c}, 7')
                A.vm_op(f'buffer_load_dwordx4 v{vXA0+j}, {sr(S_X,4)}, s{sT} offen lds', tag=('u',u))
        return
    c=(u-14)%7; sec=2 if u<21 else 0
    for j in range(2):
        A(f's_add_u32 m0, s{sWB}, {slot+j*1024}')
        w_soff(c,sec,j)
        A.vm_op(f'buffer_load_dwordx4 v{vWA}, {sr(S_W,4)}, s{sT} offen lds', tag=('u',u))

def read_wfrags(u):
    slot=slotaddr(u)
    for kk in range(4):
        A(f'ds_read_b64_tr_b16 {vr(wf+4*kk,2)}, v{vWR} offset:{slot+2048*kk}')
        A(f'ds_read_b64_tr_b16 {vr(wf+4*kk+2,2)}, v{vWR} offset:{slot+2048*kk+512}')

def softmax(D, tagname, mid=None):
    t=vT
    u=vU
    A.c('softmax '+tagname)
    for r in range(12,16): A(f'v_cndmask_b32 v{D+r}, v{D+r}, v{D}, {sr(sHI,2)}')
    for op,o in (('v_max3_f32',0),('v_min3_f32',4)):
        A(f'{op} v{u+o}, v{D}, v{D+1}, v{D+2}')
        A(f'{op} v{u+o+1}, v{D+3}, v{D+4}, v{D+5}')
        A(f'{op} v{u+o+2}, v{D+6}, v{D+7}, v{D+8}')
        A(f'{op} v{u+o+3}, v{D+9}, v{D+10}, v{D+11}')
    for op,o in (('v_max3_f32',0),('v_min3_f32',4)):
        A(f'{op} v{u+o}, v{u+o}, v{D+12}, v{D+13}')
        A(f'{op} v{u+o+1}, v{u+o+1}, v{D+14}, v{D+15}')
    for op,op2,o in (('v_max3_f32','v_max_f32',0),('v_min3_f32','v_min_f32',4)):
        A(f'{op} v{u+o}, v{u+o}, v{u+o+1}, v{u+o+2}')
    A(f'v_max_f32 v{u}, v{u}, v{u+3}\nv_min_f32 v{u+4}, v{u+4}, v{u+7}')
    A(f'v_mov_b32 v{u+1}, v{u}\nv_mov_b32 v{u+5}, v{u+4}\ns_nop 1')
    A(f'v_permlane32_swap_b32 v{u}, v{u+1}\nv_permlane32_swap_b32 v{u+4}, v{u+5}')
    A(f'v_max_f32 v{u}, v{u}, v{u+1}\nv_min_f32 v{u+4}, v{u+4}, v{u+5}')
    A(f'v_mul_f32 v{t}, s{sC2}, v{u}\nv_mul_f32 v{t+2}, s{sC2}, v{u+4}')
    for r in range(12):
        A(f'v_fma_f32 v{EP+r}, v{D+r}, s{sC2}, -v{t}')
        A(f'v_fma_f32 v{EN+r}, -v{D+r}, s{sC2}, v{t+2}')
    for k in range(4):
        A(f'v_fma_f32 v{u+k}, v{D+12+k}, s{sC2}, -v{t}')
        A(f'v_fma_f32 v{u+4+k}, -v{D+12+k}, s{sC2}, v{t+2}')
    for r in range(12):
        A(f'v_exp_f32 v{EP+r}, v{EP+r}\nv_exp_f32 v{EN+r}, v{EN+r}')
    A(f's_mov_b64 exec, {sr(sLO,2)}')
    for k in range(4):
        A(f'v_exp_f32 v{EP+12+k}, v{u+k}\nv_exp_f32 v{EN+12+k}, v{u+4+k}')
    A('s_mov_b64 exec, -1')
    if mid: mid()
    for k in range(4):
        A(f'v_add_f32 v{u+k}, v{EP+k}, v{EP+4+k}\nv_add_f32 v{u+4+k}, v{EN+k}, v{EN+4+k}')
    for k in range(4):
        A(f'v_add_f32 v{u+k}, v{u+k}, v{EP+8+k}\nv_add_f32 v{u+4+k}, v{u+4+k}, v{EN+8+k}')
    for k in range(4):
        A(f'v_add_f32 v{u+k}, v{u+k}, v{EP+12+k}\nv_add_f32 v{u+4+k}, v{u+4+k}, v{EN+12+k}')
    A(f'v_add_f32 v{u}, v{u}, v{u+1}\nv_add_f32 v{u+4}, v{u+4}, v{u+5}\nv_add_f32 v{u+2}, v{u+2}, v{u+3}\nv_add_f32 v{u+6}, v{u+6}, v{u+7}')
    A(f'v_add_f32 v{u}, v{u}, v{u+2}\nv_add_f32 v{u+4}, v{u+4}, v{u+6}')
    A(f'v_mov_b32 v{u+1}, v{u}\nv_mov_b32 v{u+5}, v{u+4}\ns_nop 1')
    A(f'v_permlane32_swap_b32 v{u}, v{u+1}\nv_permlane32_swap_b32 v{u+4}, v{u+5}')
    A(f'v_add_f32 v{u}, v{u}, v{u+1}\nv_add_f32 v{u+4}, v{u+4}, v{u+5}')
    A(f'v_rcp_f32 v{u}, v{u}\nv_rcp_f32 v{u+4}, v{u+4}\ns_nop 0')
    for r in range(16):
        A(f'v_mul_f32 v{EP+r}, v{u}, v{EP+r}\nv_mul_f32 v{EN+r}, v{u+4}, v{EN+r}')
    for r in range(0,16,2):
        A(f'v_cvt_pk_bf16_f32 v{PK+r//2}, v{EP+r}, v{EP+r+1}')
        A(f'v_cvt_pk_bf16_f32 v{PK+8+r//2}, v{EN+r}, v{EN+r+1}')

def pack_and_phi(acc):
    for r in range(0,16,2):
        A(f'v_cvt_pk_bf16_f32 v{wf+r//2}, v{acc+r}, v{acc+r+1}')
    A(f'v_cndmask_b32 v{wf+6}, v{wf+6}, 0, {sr(sHI,2)}' .replace(', 0, ',', v15, ') )
    A(f'v_cndmask_b32 v{wf+7}, v{wf+7}, v15, {sr(sHI,2)}')
    A('s_nop 1')
    A(f'v_mfma_f32_32x32x16_bf16 {vr(acc,16)}, {vr(wpf,4)}, {vr(wf,4)}, 0')
    A(f'v_mfma_f32_32x32x16_bf16 {vr(acc,16)}, {vr(wpf+4,4)}, {vr(wf+4,4)}, {vr(acc,16)}')
    A.nop(16)

def poll_flags_all(nflags_bytes, base, reg, srd_ws, name):
    L=A.newlabel('Lpf'); Ld=A.newlabel('Lpfd')
    A(f's_mov_b32 s{sCNT}, 0\ns_mov_b32 s{sT}, {base}')
    A.label(L)
    A(f'buffer_load_dwordx4 {vr(reg,4)}, v{vL16}, {sr(srd_ws,4)}, s{sT} offen sc1')
    A('s_waitcnt vmcnt(0)')
    A(f'v_xor_b32 v{reg}, s{sN}, v{reg}\nv_xor_b32 v{reg+1}, s{sN}, v{reg+1}\nv_xor_b32 v{reg+2}, s{sN}, v{reg+2}\nv_xor_b32 v{reg+3}, s{sN}, v{reg+3}')
    A(f'v_or3_b32 v{reg}, v{reg}, v{reg+1}, v{reg+2}\nv_or_b32 v{reg}, v{reg}, v{reg+3}')
    A(f'v_cmp_ne_u32 vcc, 0, v{reg}')
    A(f's_cbranch_vccz {Ld}')
    A(f's_add_u32 s{sCNT}, s{sCNT}, 1\ns_cmp_lt_u32 s{sCNT}, {SPIN}\ns_cbranch_scc1 {L}')
    A.label(Ld)
    A.vm=[]

def chk_flags(reg,addr,base,srd_ws):
    Ld=A.newlabel('Lcf'); L=A.newlabel('Lcfp')
    A(f's_mov_b32 s{sCNT}, 0\ns_mov_b32 s{sT}, {base}')
    A.label(L)
    A(f'v_cmp_ne_u32 vcc, s{sN}, v{reg}')
    A(f's_cbranch_vccz {Ld}')
    A(f's_sleep 4\nbuffer_load_dword v{reg}, v{addr}, {sr(srd_ws,4)}, s{sT} offen sc1\ns_waitcnt vmcnt(0)')
    A(f's_add_u32 s{sCNT}, s{sCNT}, 1\ns_cmp_lt_u32 s{sCNT}, {SPIN}\ns_cbranch_scc1 {L}')
    A.label(Ld)

def gen_B():
    A.label('L_B')
    A(f's_setprio {BPRIO0}')
    stamp('B start')
    A(f's_load_dwordx4 s[4:7], s[0:1], 72\ns_load_dwordx4 s[40:43], s[0:1], 88\ns_load_dwordx2 s[44:45], s[0:1], 104\ns_load_dwordx2 s[46:47], s[0:1], 120')
    A(f'v_lshrrev_b32 v10, 6, v0\nv_and_b32 v0, 63, v0\ns_nop 0\nv_readfirstlane_b32 s{sW}, v10')
    if LOC: A(f's_and_b32 s{sP}, s2, 7\ns_lshr_b32 s{sRB}, s2, 3\ns_and_b32 s{sT2}, s{sRB}, 3')
    elif M16: A(f's_bfe_u32 s{sT}, s2, 0x10002\ns_lshl_b32 s{sT}, s{sT}, 4\ns_bfe_u32 s{sT2}, s2, 0x40003\ns_add_u32 s{sRB}, s{sT}, s{sT2}\ns_and_b32 s{sT}, s2, 3\ns_lshl_b32 s{sT}, s{sT}, 1\ns_lshr_b32 s{sP}, s2, 7\ns_add_u32 s{sP}, s{sP}, s{sT}\ns_and_b32 s{sT2}, s{sRB}, 3')
    elif M2D: A(f's_bfe_u32 s{sT}, s2, 0x20001\ns_lshl_b32 s{sT}, s{sT}, 3\ns_bfe_u32 s{sT2}, s2, 0x30003\ns_add_u32 s{sRB}, s{sT}, s{sT2}\ns_and_b32 s{sT}, s2, 1\ns_lshl_b32 s{sT}, s{sT}, 2\ns_lshr_b32 s{sP}, s2, 6\ns_add_u32 s{sP}, s{sP}, s{sT}\ns_and_b32 s{sT2}, s{sRB}, 3')
    else: A(f's_and_b32 s{sT}, s2, 7\ns_lshl_b32 s{sT}, s{sT}, 2\ns_lshr_b32 s{sT2}, s2, 3\ns_and_b32 s{sT2}, s{sT2}, 3\ns_add_u32 s{sRB}, s{sT}, s{sT2}\ns_lshr_b32 s{sP}, s2, 5')
    A(f's_lshr_b32 s{sRT}, s{sW}, 1\ns_and_b32 s{sA}, s{sW}, 1\ns_lshl_b32 s{sWB}, s{sW}, 11\ns_mul_i32 s{sP112}, s{sP}, 112')
    if LOC:
        A(f's_mul_i32 s{sT}, s{sRB}, 37\ns_lshr_b32 s{sT}, s{sT}, 8\ns_mul_i32 s{sT}, s{sT}, 7\ns_sub_u32 s{sCP}, s{sRB}, s{sT}')
    elif ROT:
        A(f's_mul_i32 s{sT}, s{sRB}, {ROT[0]}\ns_mul_i32 s{sT2}, s{sP}, {ROT[1]}\ns_add_u32 s{sT}, s{sT}, s{sT2}\ns_mul_i32 s{sT2}, s{sT}, 9363\ns_lshr_b32 s{sT2}, s{sT2}, 16\ns_mul_i32 s{sT2}, s{sT2}, 7\ns_sub_u32 s{sCP}, s{sT}, s{sT2}')
    else:
        A(f's_lshl_b32 s{sT2}, s{sT2}, 1\ns_add_u32 s{sT}, s{sP}, s{sT2}')
        A(f's_cmp_ge_u32 s{sT}, 7\ns_cselect_b32 s{sT2}, 7, 0\ns_sub_u32 s{sCP}, s{sT}, s{sT2}')
    for c in range(1,7):
        A(f's_add_u32 s{sT}, s{sCP+c-1}, 1\ns_cmp_ge_u32 s{sT}, 7\ns_cselect_b32 s{sCP+c}, 0, s{sT}')
    A(f's_mov_b32 s{sHI}, 0\ns_mov_b32 s{sHI+1}, -1\ns_mov_b32 s{sLO}, -1\ns_mov_b32 s{sLO+1}, 0')
    A(f's_mov_b32 s{sC2}, {LOG2E}\ns_mov_b32 s{sC2+1}, {LOG2E}')
    A(f'v_lshlrev_b32 v{vL16}, 4, v0')
    A(f'v_lshrrev_b32 v10, 3, v0\nv_lshrrev_b32 v11, 4, v0\nv_and_b32 v12, 7, v0')
    A(f's_lshl_b32 s{sT}, s{sW}, 4\nv_add_u32 v13, s{sT}, v10')
    A(f'v_xor_b32 v14, v12, v11\nv_lshlrev_b32 v14, 4, v14\nv_mul_u32_u24 v{vXA0}, 896, v13\nv_add_u32 v{vXA0}, v{vXA0}, v14')
    A(f'v_add_u32 v14, 4, v11\nv_xor_b32 v14, v12, v14\nv_lshlrev_b32 v14, 4, v14\nv_add_u32 v15, 8, v13\nv_mul_u32_u24 v{vXA1}, 896, v15\nv_add_u32 v{vXA1}, v{vXA1}, v14')
    A(f'v_and_b32 v14, 1, v11\nv_lshlrev_b32 v14, 2, v14\nv_xor_b32 v14, v12, v14\nv_lshrrev_b32 v15, 2, v14\nv_sub_u32 v14, v14, v15\nv_lshlrev_b32 v14, 4, v14')
    A(f'v_mul_u32_u24 v{vWA}, 2688, v13\nv_add_u32 v{vWA}, v{vWA}, v14')
    L2PF='--l2pf' in sys.argv
    if L2PF:
        A(f's_lshr_b32 s68, s2, 3\ns_bfe_u32 s69, s2, 0x20001\ns_lshl_b32 s69, s69, 9\ns_lshl_b32 s{sT}, s68, 4\ns_add_u32 s69, s69, s{sT}')
        A(f's_mul_i32 s{sT}, s{sW}, 56\nv_add_u32 v120, s{sT}, v0\nv_mul_u32_u24 v121, 9363, v120\nv_lshrrev_b32 v121, 16, v121\nv_mul_u32_u24 v122, 7, v121\nv_sub_u32 v122, v120, v122')
        A(f'v_add_u32 v121, s69, v121\nv_mul_u32_u24 v121, 896, v121\nv_lshl_add_u32 v121, v122, 7, v121')
        A(f's_add_u32 s{sT}, s{sW}, 2\ns_and_b32 s{sT}, s{sT}, 3\ns_lshl_b32 s{sT}, s{sT}, 6\nv_add_u32 v123, s{sT}, v0\nv_mul_u32_u24 v124, 5462, v123\nv_lshrrev_b32 v124, 16, v124\nv_mul_u32_u24 v125, 12, v124\nv_sub_u32 v125, v123, v125')
        A(f's_mul_i32 s{sT}, s68, 14\nv_add_u32 v124, s{sT}, v124\nv_mul_u32_u24 v124, 2688, v124\nv_lshrrev_b32 v126, 2, v125\nv_mul_u32_u24 v126, 896, v126\nv_add_u32 v124, v124, v126\nv_and_b32 v125, 3, v125\nv_lshl_add_u32 v124, v125, 7, v124')
        A(f's_and_b32 s{sT}, s2, 1\ns_mul_i32 s{sT}, s{sT}, 384\nv_add_u32 v124, s{sT}, v124')
    A('s_waitcnt lgkmcnt(0)')
    stamp('kernarg loaded')
    if L2PF:
        A(f'v_cmp_gt_u32 vcc, 168, v123\ns_and_saveexec_b64 s[68:69], vcc\ns_cbranch_execz L_pf2')
        A('global_load_dword v254, v124, s[6:7]')
        A.label('L_pf2')
        A('s_mov_b64 exec, -1')
        A(f's_cmp_gt_u32 s{sW}, 1\ns_cbranch_scc1 L_pf3\ns_mov_b32 exec_hi, 0x00ffffff\nglobal_load_dword v255, v121, s[4:5]\ns_mov_b32 exec_hi, -1')
        A.label('L_pf3')
    A(f's_mul_i32 s{sT}, s{sRB}, 57344\ns_add_u32 s4, s4, s{sT}\ns_addc_u32 s5, s5, 0')
    srd(S_X,4,57344); srd(S_W,6,1204224); srd(S_WO,42,401408); srd(S_WS,46,WS_SIZE); srd(S_OUT,44,3670016)
    A(f's_lshl_b32 s{sT}, s{sP}, 1\ns_add_u32 s{sT}, s{sT}, s{sA}\ns_mul_i32 s{sT}, s{sT}, 1568\ns_add_u32 s40, s40, s{sT}\ns_addc_u32 s41, s41, 0\ns_sub_u32 s{sT2}, 25088, s{sT}')
    srd(S_WP,40,f's{sT2}')
    A(f's_load_dword s{sN}, s[46:47], {WS_EPOCH}')
    A(f's_lshl_b32 s{sT}, s{sP}, 5\ns_add_u32 s{sT}, s{sT}, s{sRB}\ns_mul_i32 s{sPART}, s{sT}, {PSTR}\ns_add_u32 s{sPART}, s{sPART}, {WS_PART}')
    A(f's_lshl_b32 s{sRED}, s{sP}, 13\ns_add_u32 s{sRED}, s{sRED}, {WS_RED}')
    A(f's_lshl_b32 s{sT}, s{sRB}, 1\ns_add_u32 s{sT}, s{sT}, s{sRT}\ns_lshl_b32 s{sT}, s{sT}, 4\ns_lshl_b32 s{sT2}, s{sP}, 1\ns_add_u32 s{sT}, s{sT}, s{sT2}\ns_add_u32 s{sT}, s{sT}, s{sA}\ns_lshl_b32 s{sOB}, s{sT}, 11\ns_add_u32 s{sOB}, s{sOB}, {WS_OBUF}')
    if KDMA:
        for u in range(4): issue_unit(u)
    else:
        for c in range(KDEPTH):
            issue_reg(c)
            if PST and c in (0,1,2,3,6): stamp('chunk %d issued'%c)
    A(f's_lshl_b32 s{sT}, s{sA}, 12\ns_lshl_b32 s{sT2}, s{sRT}, 11\ns_add_u32 s{sT}, s{sT}, s{sT2}\ns_add_u32 s{sPART}, s{sPART}, s{sT}')
    if '--wopf' in sys.argv:
        Lpf=A.newlabel('Lpf')
        A(f's_cmp_gt_u32 s{sW}, 1\ns_cbranch_scc1 {Lpf}')
        A(f's_lshr_b32 s{sT}, s2, 3\ns_mul_i32 s{sT}, s{sT}, {98*128}\ns_lshl_b32 s{sT2}, s{sW}, 13\ns_add_u32 s{sT}, s{sT}, s{sT2}\nv_lshlrev_b32 v10, 7, v0')
        A(f'buffer_load_dword v255, v10, {sr(S_WO,4)}, s{sT} offen')
        A.label(Lpf)
    A(f'v_and_b32 v10, 31, v0\nv_lshrrev_b32 v11, 5, v0\nv_lshrrev_b32 v12, 1, v10\nv_and_b32 v12, 7, v12')
    A(f's_lshl_b32 s{sT}, s{sRT}, 5\nv_add_u32 v13, s{sT}, v10\nv_lshlrev_b32 v13, 7, v13')
    for kk in range(4):
        A(f'v_add_u32 v14, {2*kk}, v11\nv_xor_b32 v14, v14, v12\nv_lshlrev_b32 v14, 4, v14\nv_add_u32 v{vXR+kk}, v13, v14')
    A(f'v_lshrrev_b32 v10, 4, v0\nv_and_b32 v10, 1, v10\nv_bfe_u32 v12, v0, 2, 2\nv_and_b32 v13, 3, v0')
    A(f'v_and_b32 v14, v13, v10\nv_lshrrev_b32 v15, 1, v13\nv_and_b32 v14, v14, v15\nv_sub_u32 v120, v13, v14')
    A(f'v_lshlrev_b32 v14, 3, v11\nv_add_u32 v14, v14, v12\nv_lshlrev_b32 v{vWR}, 7, v14')
    A(f'v_lshrrev_b32 v14, 1, v12\nv_xor_b32 v14, s{sA}, v14\nv_lshlrev_b32 v14, 6, v14\nv_add_u32 v{vWR}, v{vWR}, v14')
    A(f's_lshl_b32 s{sT}, s{sA}, 3\nv_lshlrev_b32 v14, 5, v10\nv_add_u32 v{vWR}, s{sT}, v{vWR}\nv_add_u32 v{vWR}, v{vWR}, v14\nv_lshlrev_b32 v14, 3, v120\nv_add_u32 v{vWR}, v{vWR}, v14')
    A(f'v_lshlrev_b32 v14, 2, v11\nv_add_u32 v14, v14, v12\nv_mul_u32_u24 v121, 56, v14\nv_lshlrev_b32 v14, 5, v10\nv_add_u32 v121, v121, v14\nv_lshlrev_b32 v14, 3, v13\nv_add_u32 v121, v121, v14\nv_add_u32 v121, s{sWB}, v121')
    A(f's_mul_i32 s{sT}, s{sA}, {PHI_H}\ns_add_u32 s{sT}, s{sT}, {L_PHI}')
    A(f'v_and_b32 v14, 31, v0\ns_lshl_b32 s{sT2}, s{sRT}, 5\nv_add_u32 v14, s{sT2}, v14\nv_mul_u32_u24 v122, 136, v14\nv_lshlrev_b32 v14, 3, v11\nv_add_u32 v122, v122, v14\nv_add_u32 v122, s{sT}, v122')
    A(f'v_lshlrev_b32 v14, 2, v11\nv_add_u32 v14, v14, v12\nv_mul_u32_u24 v123, 136, v14\nv_lshlrev_b32 v14, 5, v10\nv_add_u32 v123, v123, v14\nv_lshlrev_b32 v14, 3, v13\nv_add_u32 v123, v123, v14')
    A(f's_lshl_b32 s{sT2}, s{sRT}, 6\ns_add_u32 s{sT}, s{sT}, s{sT2}\nv_add_u32 v123, s{sT}, v123')
    vWPA=240; vPHW=241; vPHR=242; vFA=243; vFV=244; vF2A=4; vF2V=5; v1A=247; vSEL=248
    A(f'v_mov_b32 v{vWPA}, v121\nv_mov_b32 v{vPHW}, v122\nv_mov_b32 v{vPHR}, v123')
    A('v_mov_b32 v15, 0')
    for k in range(4): A(f'v_mov_b32 v{EP+12+k}, 0\nv_mov_b32 v{EN+12+k}, 0')
    if LOC:
        A(f'v_and_b32 v10, 31, v0\nv_lshlrev_b32 v11, 3, v10\nv_add_u32 v11, s{sP}, v11\nv_mov_b32 v12, v11')
    elif M16:
        A(f'v_and_b32 v10, 31, v0\nv_lshrrev_b32 v11, 4, v10\nv_lshlrev_b32 v11, 2, v11\nv_and_b32 v12, 15, v10\nv_lshl_add_u32 v11, v12, 3, v11\ns_lshr_b32 s{sT}, s{sP}, 1\ns_and_b32 s{sT2}, s{sP}, 1\ns_lshl_b32 s{sT2}, s{sT2}, 7\ns_add_u32 s{sT}, s{sT}, s{sT2}\nv_add_u32 v11, s{sT}, v11\nv_mov_b32 v12, v11')
    elif M2D:
        A(f'v_and_b32 v10, 31, v0\nv_lshrrev_b32 v11, 3, v10\nv_lshlrev_b32 v11, 1, v11\nv_and_b32 v12, 7, v10\nv_lshl_add_u32 v11, v12, 3, v11\ns_lshr_b32 s{sT}, s{sP}, 2\ns_and_b32 s{sT2}, s{sP}, 3\ns_lshl_b32 s{sT2}, s{sT2}, 6\ns_add_u32 s{sT}, s{sT}, s{sT2}\nv_add_u32 v11, s{sT}, v11\nv_mov_b32 v12, v11')
    else:
        A(f'v_and_b32 v10, 31, v0\nv_lshrrev_b32 v11, 2, v10\nv_and_b32 v12, 3, v10\nv_lshlrev_b32 v12, 3, v12\nv_add_u32 v11, v11, v12\ns_lshl_b32 s{sT}, s{sP}, 5\nv_add_u32 v11, s{sT}, v11')
        A(f'v_and_b32 v12, 7, v0\nv_lshlrev_b32 v12, 5, v12\ns_and_b32 s{sT}, s2, 31\nv_add_u32 v12, s{sT}, v12')
    A(f'v_cndmask_b32 v11, v11, v12, {sr(sHI,2)}')
    A(f'v_subrev_u32 v12, 224, v11\nv_cmp_gt_u32 vcc, 224, v11\ns_nop 1\nv_cndmask_b32 v11, v12, v11, vcc\nv_lshlrev_b32 v{vFA}, 7, v11')
    A(f'v_lshrrev_b32 v10, 4, v0\nv_mul_u32_u24 v10, {PSTR}, v10\nv_and_b32 v11, 15, v0\nv_lshlrev_b32 v12, 4, v11\nv_add_u32 v{v1A}, v10, v12')
    A(f'v_and_b32 v12, 1, v11\nv_lshlrev_b32 v12, 4, v12\nv_mov_b32 v13, 0x3f80\nv_lshlrev_b32 v12, v12, v13\nv_lshrrev_b32 v11, 1, v11')
    for q in range(4):
        A(f'v_cmp_eq_u32 vcc, {q}, v11\ns_nop 1\nv_cndmask_b32 v{vSEL+q}, v15, v12, vcc')
    stamp('B prologue issued')
    BUF=[[wf,wf+4,wf+8,wf+12],[72,76,80,88]]
    def rd_unit(u,buf):
        slot=slotaddr(u)
        for kk in range(4):
            A(f'ds_read_b64_tr_b16 {vr(buf[kk],2)}, v{vWR} offset:{slot+2048*kk}')
            A(f'ds_read_b64_tr_b16 {vr(buf[kk]+2,2)}, v{vWR} offset:{slot+2048*kk+512}')
    def gemm_group(units,c0,acc,x_is_A,first,pre=None):
        rd_unit(units[0],BUF[0])
        if pre: pre()
        for i,u in enumerate(units):
            nxt = i+1<len(units)
            if nxt: rd_unit(units[i+1],BUF[(i+1)&1])
            c=c0+i
            for kk in range(4):
                extra = 8 if nxt else 0
                if i==0 and pre: extra += 0
                A(f's_waitcnt lgkmcnt({min(15,2*(3-kk)+extra)})')
                cin='0' if (first and i==0 and kk==0) else vr(acc,16)
                wfr=vr(BUF[i&1][kk],4); xfr=vr(XF+16*c+4*kk,4)
                A(f'v_mfma_f32_32x32x16_bf16 {vr(acc,16)}, '+(f'{xfr}, {wfr}' if x_is_A else f'{wfr}, {xfr}')+f', {cin}')
    if KDMA:
        for u in (4,5,6): issue_unit(u)
        for j in range(2):
            A(f's_add_u32 m0, s{sWB}, {L_WP+j*1024}\ns_mov_b32 s{sT}, {j*1024}')
            A.vm_op(f'buffer_load_dwordx4 v{vL16}, {sr(S_WP,4)}, s{sT} offen lds',tag='wp')
        for c in range(7):
            A.vm_wait(('u',2*c+1))
            A('s_barrier')
            if c>=1:
                issue_unit(2*c+5); issue_unit(2*c+6)
            sx=slotaddr(2*c)
            for kk in range(4):
                A(f'ds_read_b128 {vr(XF+16*c+4*kk,4)}, v{vXR+kk} offset:{sx}')
            read_wfrags(2*c+1)
            if c==4:
                for j in range(2):
                    A(f'ds_read_b64_tr_b16 {vr(wpf+4*j,2)}, v{vWPA} offset:{L_WP+896*j}')
                    A(f'ds_read_b64_tr_b16 {vr(wpf+4*j+2,2)}, v{vWPA} offset:{L_WP+896*j+448}')
            ex = 4 if c==4 else 0
            for kk in range(4):
                A(f's_waitcnt lgkmcnt({2*(3-kk)+ex})')
                cin = '0' if (c==0 and kk==0) else vr(accA,16)
                A(f'v_mfma_f32_32x32x16_bf16 {vr(accA,16)}, {vr(wf+4*kk,4)}, {vr(XF+16*c+4*kk,4)}, {cin}')
            if c==4:
                A('s_waitcnt lgkmcnt(0)')
                A(f'v_cndmask_b32 v{wpf+6}, v{wpf+6}, v15, {sr(sHI,2)}\nv_cndmask_b32 v{wpf+7}, v{wpf+7}, v15, {sr(sHI,2)}')
            if c==0: stamp('K0 done')
        A('s_barrier')
        if '--latef' not in sys.argv:
            A(f's_mov_b32 s{sT}, {WS_FLAGA1}')
            A.vm_op(f'buffer_load_dword v{vFV}, v{vFA}, {sr(S_WS,4)}, s{sT} offen sc1',tag='flagc')
        issue_unit(19); issue_unit(20)
    else:
        vLW=252
        A(f'v_add_u32 v{vLW}, s{sWB}, v{vL16}')
        A.vm_wait(('k',0))
        write_k(0,vLW)
        A('s_waitcnt lgkmcnt(0)\ns_barrier')
        vleft=[14,15,16]
        for c in range(7):
            sx=(c&1)*16384
            for kk in range(4):
                A(f'ds_read_b128 {vr(XF+16*c+4*kk,4)}, v{vXR+kk} offset:{sx}')
            read_wfrags(2*c+1)
            nw=0
            if c<6:
                A.vm_wait(('k',c+1))
                write_k(c+1,vLW); nw=4
            if c+KDEPTH<=6: issue_reg(c+KDEPTH)
            if c+KDEPTH==7:
                for j in range(2):
                    A(f's_add_u32 m0, s{sWB}, {L_WP+j*1024}\ns_mov_b32 s{sT}, {j*1024}')
                    A.vm_op(f'buffer_load_dwordx4 v{vL16}, {sr(S_WP,4)}, s{sT} offen lds',tag='wp')
            if c+KDEPTH>=7 and vleft: issue_unit(vleft.pop(0))
            if c==5:
                while vleft: issue_unit(vleft.pop(0))
            if c==6:
                A.vm_wait('wp')
                for j in range(2):
                    A(f'ds_read_b64_tr_b16 {vr(wpf+4*j,2)}, v{vWPA} offset:{L_WP+896*j}')
                    A(f'ds_read_b64_tr_b16 {vr(wpf+4*j+2,2)}, v{vWPA} offset:{L_WP+896*j+448}')
                nw+=4
            for kk in range(4):
                A(f's_waitcnt lgkmcnt({min(15,2*(3-kk)+nw)})')
                cin = '0' if (c==0 and kk==0) else vr(accA,16)
                A(f'v_mfma_f32_32x32x16_bf16 {vr(accA,16)}, {vr(wf+4*kk,4)}, {vr(XF+16*c+4*kk,4)}, {cin}')
            A('s_waitcnt lgkmcnt(0)')
            if c==6:
                A(f'v_cndmask_b32 v{wpf+6}, v{wpf+6}, v15, {sr(sHI,2)}\nv_cndmask_b32 v{wpf+7}, v{wpf+7}, v15, {sr(sHI,2)}')
            A('s_barrier')
            if c==0: stamp('K0 done')
        A(f's_mov_b32 s{sT}, {WS_FLAGA1}')
        A.vm_op(f'buffer_load_dword v{vFV}, v{vFA}, {sr(S_WS,4)}, s{sT} offen sc1',tag='flagc')
        for u in (17,18,19,20): issue_unit(u)
    stamp('K phase done')
    if BPRIO0!=BPRIO: A(f's_setprio {BPRIO}')
    A.nop(6)
    pack_and_phi(accA)
    softmax(accA,'k')
    for jj in range(4):
        A(f'ds_write_b64 v{vPHW}, {vr(PK+2*jj,2)} offset:{16*jj}')
        A(f'ds_write_b64 v{vPHW}, {vr(PK+8+2*jj,2)} offset:{64+16*jj}')
    stamp('softmax k done')
    AF=[PK,PK+4,PK+8,PK+12]
    A.vm_wait(('u',16),' lgkmcnt(0)')
    A('s_barrier')
    gemm_group([14,15,16],0,accB,True,True)
    for m in range(4):
        A(f'ds_read_b64_tr_b16 {vr(AF[m],2)}, v{vPHR} offset:{16*m*136}')
        A(f'ds_read_b64_tr_b16 {vr(AF[m]+2,2)}, v{vPHR} offset:{16*m*136+8*136}')
    A.vm_wait(('u',18),' lgkmcnt(0)')
    A('s_barrier')
    if '--latef' in sys.argv:
        A(f's_mov_b32 s{sT}, {WS_FLAGA1}')
        A.vm_op(f'buffer_load_dword v{vFV}, v{vFA}, {sr(S_WS,4)}, s{sT} offen sc1',tag='flagc')
    issue_unit(21); issue_unit(22); issue_unit(23)
    gemm_group([17,18],3,accB,True,False)
    A.vm_wait(('u',20))
    A('s_barrier')
    issue_unit(24); issue_unit(25)
    gemm_group([19,20],5,accB,True,False)
    stamp('V phase done')
    A(f'v_and_b32 v10, 31, v0\nv_cmp_eq_u32 vcc, 28, v10\nv_mov_b32 v11, 0x3f803f80')
    A(f'v_add_u32 v12, s{sWB}, v{vL16}\ns_xor_b32 s{sT}, s{sWB}, 4096\nv_add_u32 v13, s{sT}, v{vL16}')
    A(f's_waitcnt lgkmcnt(0)\ns_add_u32 s{sN}, s{sN}, {NONCE_C}')
    A.nop(6)
    for r in range(0,16,2):
        A(f'v_cvt_pk_bf16_f32 v{wf+r//2}, v{accB+r}, v{accB+r+1}')
    for k in range(8): A(f'v_cndmask_b32 v{wf+k}, v{wf+k}, v11, vcc')
    L_VX=slotaddr(19)
    A('s_barrier')
    A(f'ds_write_b128 v12, {vr(wf,4)} offset:{L_VX}\nds_write_b128 v12, {vr(wf+4,4)} offset:{L_VX+1024}')
    A('s_waitcnt lgkmcnt(0)\ns_barrier')
    A(f'ds_read_b128 {vr(wf+8,4)}, v13 offset:{L_VX}\nds_read_b128 {vr(wf+12,4)}, v13 offset:{L_VX+1024}')
    issue_unit(27)
    A.vm_wait('flagc')
    chk_flags(vFV,vFA,WS_FLAGA1,S_WS)
    Lr1=A.newlabel('Lrt1'); Lr2=A.newlabel('Lrtd')
    order0=[wf,wf+4,wf+8,wf+12]; order1=[wf+8,wf+12,wf,wf+4]
    A(f's_cmp_lg_u32 s{sRT}, 0\ns_cbranch_scc1 {Lr1}')
    for m in range(4):
        if m==2: A('s_waitcnt lgkmcnt(0)')
        A(f'v_mfma_f32_32x32x16_bf16 {vr(accA,16)}, {vr(AF[m],4)}, {vr(order0[m],4)}, '+('0' if m==0 else vr(accA,16)))
    A(f's_branch {Lr2}')
    A.label(Lr1)
    for n,m in enumerate((2,3,0,1)):
        if n==2: A('s_waitcnt lgkmcnt(0)')
        A(f'v_mfma_f32_32x32x16_bf16 {vr(accA,16)}, {vr(AF[m],4)}, {vr(order1[m],4)}, '+('0' if n==0 else vr(accA,16)))
    A.label(Lr2)
    A.nop(14)
    for r in range(0,16,2):
        A(f'v_cvt_pk_bf16_f32 v{72+r//2}, v{accA+r}, v{accA+r+1}')
    A.vm_op(f'buffer_store_dwordx4 v[72:75], v{vL16}, {sr(S_WS,4)}, s{sPART} offen'+LSC,tag='part')
    A.vm_op(f'buffer_store_dwordx4 v[76:79], v{vL16}, {sr(S_WS,4)}, s{sPART} offen offset:1024'+LSC,tag='part')
    stamp('partial published')
    if not NOCLR:
        A('v_mov_b32 v10, -1\nv_mov_b32 v11, -1\nv_mov_b32 v12, -1\nv_mov_b32 v13, -1')
        A.vm_op(f'buffer_store_dwordx4 v[10:13], v{vL16}, {sr(S_WS,4)}, s{sOB} offen sc1',tag='oclr')
        A.vm_op(f'buffer_store_dwordx4 v[10:13], v{vL16}, {sr(S_WS,4)}, s{sOB} offen offset:1024 sc1',tag='oclr')
    A.vm_wait(('u',25))
    A('s_barrier')
    issue_unit(26)
    E1A='--early1a' in sys.argv
    LD=[32,36,40,44,104,108,112,116]
    def issue_1a():
        for m in range(8):
            A(f's_add_u32 s{sT}, s40, {m*4*PSTR}')
            A(f'buffer_load_dwordx4 {vr(LD[m],4)}, v{v1A}, {sr(S_WS,4)}, s{sT} offen sc1')
    def blk_1a():
        L1i=A.newlabel('L1a_i')
        A(f's_cmp_lg_u32 s{sW}, 0\ns_cbranch_scc1 {L1i}')
        A(f's_mul_i32 s{sT}, s{sP}, {32*PSTR}\ns_lshl_b32 s{sT2}, s{sRB}, 8\ns_add_u32 s{sT}, s{sT}, s{sT2}\ns_add_u32 s40, s{sT}, {WS_PART}')
        issue_1a()
        A.label(L1i)
    if E1A==1 and '--e1pos=0' in sys.argv: blk_1a()
    gemm_group([21,22,23,24,25],0,accA,False,True)
    if E1A and '--e1pos=0' not in sys.argv: blk_1a()
    vWO=1; vWOR=2
    sWOB=41; sCOL=42; sACT=43
    A((f's_lshr_b32 s{sT}, s{sP}, 1' if '--s3map' in sys.argv else f's_and_b32 s{sT}, s{sP}, 3')+f'\ns_lshl_b32 s45, s{sT}, 8\ns_lshl_b32 s{sT}, s{sT}, 7\ns_lshl_b32 s{sT2}, s{sW}, 5\ns_add_u32 s{sCOL}, s{sT}, s{sT2}')
    A(f's_cmp_lt_u32 s{sCOL}, 448\ns_cselect_b32 s{sACT}, 1, 0\ns_lshl_b32 s{sWOB}, s{sW}, 10')
    A(f'v_lshrrev_b32 v10, 4, v0\nv_mul_u32_u24 v{vWO}, 896, v10\nv_lshlrev_b32 v11, 2, v10\nv_and_b32 v12, 15, v0\nv_xor_b32 v11, v11, v12\nv_lshlrev_b32 v11, 4, v11\nv_add_u32 v{vWO}, v{vWO}, v11\nv_add_u32 v{vWO}, s45, v{vWO}')
    A(f'v_lshrrev_b32 v10, 5, v0\nv_lshlrev_b32 v10, 2, v10\nv_bfe_u32 v11, v0, 2, 2\nv_add_u32 v10, v10, v11\nv_lshlrev_b32 v10, 8, v10\nv_xor_b32 v11, s{sW}, v11\nv_lshlrev_b32 v11, 6, v11\nv_add_u32 v10, v10, v11')
    A(f'v_bfe_u32 v11, v0, 4, 1\nv_lshlrev_b32 v11, 5, v11\nv_add_u32 v10, v10, v11\nv_and_b32 v11, 3, v0\nv_lshlrev_b32 v11, 3, v11\nv_add_u32 v{vWOR}, v10, v11')
    if E1A:
        Lq=A.newlabel('Lq26'); Lq2=A.newlabel('Lq26b')
        A(f's_cmp_lg_u32 s{sW}, 0\ns_cbranch_scc1 {Lq}\ns_waitcnt vmcnt(8)\ns_branch {Lq2}')
        A.label(Lq); A('s_waitcnt vmcnt(0)'); A.label(Lq2); A.vm=[]
    else:
        A.vm_wait(('u',26))
    A('s_barrier')
    Lf2=A.newlabel('Lfb2')
    A(f's_cmp_lg_u32 s{sW}, 3\ns_cbranch_scc1 {Lf2}')
    A(f's_lshl_b32 s{sT}, s2, 7\ns_add_u32 s{sT}, s{sT}, {WS_FLAGB2}\nv_mov_b32 v10, s{sN}\nv_mov_b32 v11, s{sN}\nv_mov_b32 v12, s{sN}\nv_mov_b32 v13, s{sN}\ns_mov_b64 exec, 0xff')
    A(f'buffer_store_dwordx4 v[10:13], v{vL16}, {sr(S_WS,4)}, s{sT} offen sc1\ns_mov_b64 exec, -1\ns_nop 1')
    A.label(Lf2)
    if not E1A: blk_1a()
    gemm_group([26,27],5,accA,False,False)
    stamp('Q gemm done')
    A('s_waitcnt lgkmcnt(0)\ns_barrier')
    def wo_dma(row0,k0,k1):
        for k in range(k0,k1):
            A(f's_add_u32 m0, s{sWOB}, {k*4096}\ns_add_u32 s{sT}, s46, {(row0+16*k)*896}')
            A(f'buffer_load_dwordx4 v{vWO}, {sr(S_WO,4)}, s{sT} offen lds')
    def wo_frags(h0,h1,row0):
        for h in range(h0,h1):
            for j in range(2):
                b_=XF+8*h+4*j; o=(28*h-row0+16*j)*256
                if o+2048<65536:
                    A(f'ds_read_b64_tr_b16 {vr(b_,2)}, v{vWOR} offset:{o}\nds_read_b64_tr_b16 {vr(b_+2,2)}, v{vWOR} offset:{o+2048}')
                else:
                    A(f'ds_read_b64_tr_b16 {vr(b_,2)}, v6 offset:{o-32768}\nds_read_b64_tr_b16 {vr(b_+2,2)}, v6 offset:{o+2048-32768}')
    A(f's_mul_i32 s46, s{sW}, 3584\nv_add_u32 v6, 32768, v{vWOR}')
    A.nop(8)
    pack_and_phi(accA)
    L1a=A.newlabel('L1a_skip')
    A(f's_cmp_lg_u32 s{sW}, 0\ns_cbranch_scc1 {L1a}')
    A(f'v_and_b32 v10, 15, v0\nv_lshlrev_b32 v10, 4, v10\nv_lshrrev_b32 v11, 4, v0\nv_lshlrev_b32 v11, 3, v11\nv_add_u32 v10, v10, v11')
    A(f's_lshl_b32 s47, s{sRB}, 8\ns_add_u32 s47, s47, s{sRED}\ns_mov_b32 s{sCNT}, 0')
    Lp=A.newlabel('L1a_poll'); Lpd=A.newlabel('L1a_done')
    A.label(Lp)
    for m in range(8):
        A(f's_waitcnt vmcnt({7-m})')
        A(f'v_mfma_f32_16x16x32_bf16 v[48:51], {vr(vSEL,4)}, {vr(LD[m],4)}, '+('0' if m==0 else 'v[48:51]'))
    A.nop(8)
    A(f'v_cmp_u_f32 vcc, v48, v48\ns_cbranch_vccz {Lpd}')
    if PSL: A(f's_sleep {PSL}')
    issue_1a()
    A(f's_add_u32 s{sCNT}, s{sCNT}, 1\ns_cmp_lt_u32 s{sCNT}, {SPIN}\ns_cbranch_scc1 {Lp}')
    A('s_waitcnt vmcnt(0)')
    A.label(Lpd)
    A('v_cvt_pk_bf16_f32 v52, v48, v49\nv_cvt_pk_bf16_f32 v53, v50, v51')
    A(f's_mov_b64 exec, {sr(sLO,2)}')
    A(f'buffer_store_dwordx2 v[52:53], v10, {sr(S_WS,4)}, s47 offen'+LSC)
    A('s_mov_b64 exec, -1')
    A.label(L1a)
    stamp('1a done')
    wo_dma(0,0,7)
    softmax(accA,'q',mid=lambda: wo_dma(0,7,14))
    FAST1B='--fast1b' in sys.argv
    if not FAST1B: wo_dma(0,14,20)
    stamp('softmax q done')
    if LOC: A(f'v_and_b32 v12, 7, v0\ns_lshl_b32 s{sT}, s{sRB}, 3\nv_add_u32 v12, s{sT}, v12\nv_lshlrev_b32 v{vF2A}, 7, v12')
    elif M16:
        A(f'v_and_b32 v12, 7, v0\nv_lshrrev_b32 v11, 1, v12\nv_and_b32 v12, 1, v12\nv_lshl_add_u32 v12, v12, 7, v11\ns_lshr_b32 s{sT}, s{sRB}, 4\ns_lshl_b32 s{sT}, s{sT}, 2\ns_and_b32 s{sT2}, s{sRB}, 15\ns_lshl_b32 s{sT2}, s{sT2}, 3\ns_add_u32 s{sT}, s{sT}, s{sT2}\nv_add_u32 v12, s{sT}, v12\nv_lshlrev_b32 v{vF2A}, 7, v12')
    elif M2D:
        A(f'v_and_b32 v12, 7, v0\nv_lshrrev_b32 v11, 2, v12\nv_and_b32 v12, 3, v12\nv_lshl_add_u32 v12, v12, 6, v11\ns_lshr_b32 s{sT}, s{sRB}, 3\ns_lshl_b32 s{sT}, s{sT}, 1\ns_and_b32 s{sT2}, s{sRB}, 7\ns_lshl_b32 s{sT2}, s{sT2}, 3\ns_add_u32 s{sT}, s{sT}, s{sT2}\nv_add_u32 v12, s{sT}, v12\nv_lshlrev_b32 v{vF2A}, 7, v12')
    else: A(f'v_and_b32 v12, 7, v0\nv_lshlrev_b32 v12, 5, v12\ns_and_b32 s{sT}, s2, 31\nv_add_u32 v12, s{sT}, v12\nv_lshlrev_b32 v{vF2A}, 7, v12')
    if not FAST1B:
        A(f's_mov_b32 s{sT}, {WS_FLAGB2}')
        A(f'buffer_load_dword v{vF2V}, v{vF2A}, {sr(S_WS,4)}, s{sT} offen sc1')
    if WOE:
        A('s_waitcnt vmcnt(0)\ns_barrier')
        Lw2=A.newlabel('Lwo2e')
        A(f's_cmp_eq_u32 s{sACT}, 0\ns_cbranch_scc1 {Lw2}')
        wo_frags(0,11,0)
        A.label(Lw2)
        A('s_waitcnt lgkmcnt(0)\ns_barrier')
        wo_dma(308,0,9)
    Lp=A.newlabel('L1b_poll'); Lpd=A.newlabel('L1b_done')
    A(f's_lshl_b32 s{sT}, s{sA}, 12\ns_add_u32 s40, s{sT}, s{sRED}\ns_mov_b32 s{sCNT}, 0')
    Lc1=A.newlabel('L1b_chk')
    if FAST1B:
        for m in range(4):
            A(f'buffer_load_dwordx4 {vr(32+4*m,4)}, v{vL16}, {sr(S_WS,4)}, s40 offen offset:{m*1024} sc1')
        wo_dma(0,14,20)
        A(f's_mov_b32 s{sT}, {WS_FLAGB2}')
        A(f'buffer_load_dword v{vF2V}, v{vF2A}, {sr(S_WS,4)}, s{sT} offen sc1')
        A(f's_waitcnt vmcnt(7)\ns_branch {Lc1}')
    A.label(Lp)
    for m in range(4):
        A(f'buffer_load_dwordx4 {vr(32+4*m,4)}, v{vL16}, {sr(S_WS,4)}, s40 offen offset:{m*1024} sc1')
    A('s_waitcnt vmcnt(0)')
    A.label(Lc1)
    A('v_max3_u32 v10, v32, v33, v34')
    for k in range(35,47,2): A(f'v_max3_u32 v10, v10, v{k}, v{k+1}')
    A('v_max_u32 v10, v10, v47\nv_cmp_eq_u32 vcc, -1, v10')
    A(f's_cbranch_vccz {Lpd}')
    if PSL: A(f's_sleep {PSL}')
    A(f's_add_u32 s{sCNT}, s{sCNT}, 1\ns_cmp_lt_u32 s{sCNT}, {SPIN}\ns_cbranch_scc1 {Lp}')
    A.label(Lpd)
    A.vm=[]
    stamp('1b done')
    for m in range(4):
        A(f'v_mfma_f32_32x32x16_bf16 {vr(accA,16)}, {vr(32+4*m,4)}, {vr(PK+4*m,4)}, '+('0' if m==0 else vr(accA,16)))
    A.nop(16)
    A(f'v_mov_b32 v10, v{accA+12}\nv_mov_b32 v11, v{accA+12}\ns_nop 1\nv_permlane32_swap_b32 v10, v11')
    A('v_add_f32 v11, 0x358637bd, v11\nv_rcp_f32 v12, v11\ns_nop 0')
    for r in range(16):
        A(f'v_mul_f32 v{accA+r}, v12, v{accA+r}')
    for r in range(0,16,2):
        A(f'v_cvt_pk_bf16_f32 v{48+r//2}, v{accA+r}, v{accA+r+1}')
    A(f'v_cndmask_b32 v54, v54, v15, {sr(sHI,2)}\nv_cndmask_b32 v55, v55, v15, {sr(sHI,2)}')
    A.vm_op(f'buffer_store_dwordx4 v[48:51], v{vL16}, {sr(S_WS,4)}, s{sOB} offen sc1',tag='o')
    A.vm_op(f'buffer_store_dwordx4 v[52:55], v{vL16}, {sr(S_WS,4)}, s{sOB} offen offset:1024 sc1',tag='o')
    stamp('o published')
    A(f's_lshl_b32 s{sT}, s{sRB}, 1\n'+(f's_and_b32 s{sT2}, s{sP}, 1' if '--s3map' in sys.argv else f's_lshr_b32 s{sT2}, s{sP}, 2')+f'\ns_add_u32 s{sT}, s{sT}, s{sT2}\ns_mov_b32 s44, s{sT}\ns_lshl_b32 s{sT}, s{sT}, 15\ns_lshl_b32 s{sT2}, s{sW}, 13\ns_add_u32 s{sT}, s{sT}, s{sT2}\ns_add_u32 s40, s{sT}, {WS_OBUF}')
    if WOE:
        A('s_waitcnt vmcnt(0)')
    else:
        if FAST1B: A('s_waitcnt vmcnt(2)')
        A('s_barrier')
        Lw2=A.newlabel('Lwo2')
        A(f's_cmp_eq_u32 s{sACT}, 0\ns_cbranch_scc1 {Lw2}')
        wo_frags(0,11,0)
        A.label(Lw2)
        A('s_waitcnt lgkmcnt(0)\ns_barrier')
        NB4=int([a.split('=')[1] for a in sys.argv if a.startswith('--nb4=')][0]) if any(a.startswith('--nb4=') for a in sys.argv) else 5
        wo_dma(308,0,NB4)
        if '--noack' not in sys.argv: A(f's_waitcnt vmcnt({NB4})')
    chk_flags(vF2V,vF2A,WS_FLAGB2,S_WS)
    def issue_h2():
        for m in range(8):
            A(f's_add_u32 s{sT}, s40, {(m//4)*4096}')
            A(f'buffer_load_dwordx4 {vr(72+4*m,4)}, v{vL16}, {sr(S_WS,4)}, s{sT} offen offset:{(m%4)*1024} sc1')
    issue_h2()
    if not WOE: wo_dma(308,NB4,9)
    L_O=36864; L_OUT=69632
    A(f's_lshl_b32 s{sT}, s{sW}, 13\ns_add_u32 s{sT}, s{sT}, {L_O}\nv_add_u32 v7, s{sT}, v{vL16}\nv_add_u32 v8, {L_O}, v{vL16}')
    Lp=A.newlabel('Lh2_poll'); Lpd=A.newlabel('Lh2_done')
    A(f's_mov_b32 s{sCNT}, 0')
    A.label(Lp)
    A('s_waitcnt vmcnt(0)')
    A('v_max3_u32 v10, v72, v73, v74')
    for k in range(75,103,2): A(f'v_max3_u32 v10, v10, v{k}, v{k+1}')
    A('v_max_u32 v10, v10, v103\nv_cmp_eq_u32 vcc, -1, v10')
    A(f's_cbranch_vccz {Lpd}')
    if PSL: A(f's_sleep {PSL}')
    issue_h2()
    A(f's_add_u32 s{sCNT}, s{sCNT}, 1\ns_cmp_lt_u32 s{sCNT}, {SPIN}\ns_cbranch_scc1 {Lp}')
    A('s_waitcnt vmcnt(0)')
    A.label(Lpd)
    stamp('hop2 loaded')
    for m in range(8): A(f'ds_write_b128 v7, {vr(72+4*m,4)} offset:{m*1024}')
    A('s_waitcnt lgkmcnt(0)\ns_barrier')
    Le=A.newlabel('LB_s3skip'); Lep=A.newlabel('LB_epoch')
    A(f's_cmp_eq_u32 s{sACT}, 0\ns_cbranch_scc1 {Lep}')
    wo_frags(11,16,308)
    OB=[[32,36,40,44],[48,52,56,60]]
    def rdo(g):
        for m in range(4): A(f'ds_read_b128 {vr(OB[g&1][m],4)}, v8 offset:{(g*4+m)*1024}')
    rdo(0)
    for g in range(8):
        if g+1<8: rdo(g+1)
        for m in range(4):
            f=g*4+m
            A(f's_waitcnt lgkmcnt({(3-m)+(4 if g+1<8 else 0)})')
            A(f'v_mfma_f32_32x32x16_bf16 {vr(accA,16)}, {vr(XF+4*f,4)}, {vr(OB[g&1][m],4)}, '+('0' if f==0 else vr(accA,16)))
    A(f'v_and_b32 v10, 31, v0\nv_mul_u32_u24 v10, 272, v10\nv_lshrrev_b32 v11, 5, v0\nv_lshlrev_b32 v11, 4, v11\nv_add_u32 v10, v10, v11\ns_lshl_b32 s{sT}, s{sW}, 6\ns_add_u32 s{sT}, s{sT}, {L_OUT}\nv_add_u32 v10, s{sT}, v10')
    A.nop(6)
    for r in range(0,16,2):
        A(f'v_cvt_pk_bf16_f32 v{64+r//2}, v{accA+r}, v{accA+r+1}')
    A('s_nop 1')
    A('v_permlane32_swap_b32 v64, v66\nv_permlane32_swap_b32 v65, v67\nv_permlane32_swap_b32 v68, v70\nv_permlane32_swap_b32 v69, v71')
    A('s_nop 0\nds_write_b128 v10, v[64:67]\nds_write_b128 v10, v[68:71] offset:32')
    A(f's_branch {Le}')
    A.label(Lep)
    A(f's_cmp_lg_u32 s{sP}, 3\ns_cbranch_scc1 {Le}\ns_cmp_lg_u32 s{sRB}, 0\ns_cbranch_scc1 {Le}\ns_cmp_lg_u32 s{sW}, 3\ns_cbranch_scc1 {Le}')
    L=A.newlabel('Lepl'); Ld=A.newlabel('Lepd')
    A(f'v_lshlrev_b32 v10, 7, v0\nv_min_u32 v11, 31, v0\nv_lshlrev_b32 v11, 7, v11\ns_mov_b32 s{sCNT}, 0')
    A.label(L)
    for k in range(4):
        A(f's_mov_b32 s{sT}, {WS_FLAGA1+k*64*128}\nbuffer_load_dword v{64+k}, v{10 if k<3 else 11}, {sr(S_WS,4)}, s{sT} offen sc1')
    A('s_waitcnt vmcnt(0)')
    for k in range(4): A(f'v_xor_b32 v{64+k}, s{sN}, v{64+k}')
    A(f'v_or3_b32 v64, v64, v65, v66\nv_or_b32 v64, v64, v67\nv_cmp_ne_u32 vcc, 0, v64\ns_cbranch_vccz {Ld}')
    A(f's_add_u32 s{sCNT}, s{sCNT}, 1\ns_cmp_lt_u32 s{sCNT}, {SPIN}\ns_cbranch_scc1 {L}')
    A.label(Ld)
    A(f's_mov_b64 exec, 0xff\nv_mov_b32 v64, s{sN}\nv_mov_b32 v65, s{sN}\nv_mov_b32 v66, s{sN}\nv_mov_b32 v67, s{sN}\ns_mov_b32 s{sT}, {WS_EPOCH}')
    A(f'buffer_store_dwordx4 v[64:67], v{vL16}, {sr(S_WS,4)}, s{sT} offen sc1\ns_mov_b64 exec, -1\ns_nop 1')
    A.label(Le)
    A(f'v_lshrrev_b32 v10, 4, v0\ns_lshl_b32 s{sT}, s{sW}, 3\nv_add_u32 v10, s{sT}, v10\nv_and_b32 v11, 15, v0\nv_lshlrev_b32 v11, 4, v11')
    A(f'v_mul_u32_u24 v12, 272, v10\nv_add_u32 v12, v12, v11\nv_add_u32 v12, {L_OUT}, v12')
    A(f's_lshl_b32 s{sT}, s44, 5\nv_add_u32 v10, s{sT}, v10\nv_mul_u32_u24 v10, 1792, v10\nv_add_u32 v10, v10, v11\ns_add_u32 s{sT}, s45, 896')
    A('s_waitcnt lgkmcnt(0)\ns_barrier')
    A('ds_read_b128 v[64:67], v12\nds_read_b128 v[68:71], v12 offset:1088')
    Lm=A.newlabel('Lmask')
    A(f's_cmp_lg_u32 s45, 768\ns_cbranch_scc1 {Lm}\ns_mov_b32 exec_lo, 0x00ff00ff\ns_mov_b32 exec_hi, 0x00ff00ff')
    A.label(Lm)
    A('s_waitcnt lgkmcnt(0)')
    A(f'buffer_store_dwordx4 v[64:67], v10, {sr(S_OUT,4)}, s{sT} offen'+OSC)
    A(f's_add_u32 s{sT}, s{sT}, {4*1792}')
    A(f'buffer_store_dwordx4 v[68:71], v10, {sr(S_OUT,4)}, s{sT} offen'+OSC+'\ns_mov_b64 exec, -1')
    stamp('B end')
    prof_flush(S_WS,sW)
    A('s_endpgm')

def f32(x):
    import struct
    return '0x%08x'%struct.unpack('<I',struct.pack('<f',x))[0]
import math
aU=8; aWS=12; aOUT=16
aRE=40
aDS=56
aG=20; aTB=21; aAI=22; aWv=23; aC=24; aHF=25; aT=26; aT2=27; aWB=28; aSH=29; aLD=30; aCNT=67
KT_W=16880; KT_R=528
LA_UIMG=0; LA_T2=8192
LA_UC=67520; UC_S=4576; UPAD=480
LA_T=76672; T_S=2624
LA_C=16384; C_CH=16640; C_M=4160
LA_UIMG2=0; LA_YIMG=8192
LA_EX=16384; LA_Y=32768
XB=2047
def a_flag_store(base):
    L=A.newlabel('Lafs')
    A(f's_cmp_lg_u32 s{aWv}, 0\ns_cbranch_scc1 {L}')
    A(f's_lshl_b32 s{aT}, s{aAI}, 7\ns_add_u32 s{aT}, s{aT}, {base}\nv_mov_b32 v10, s{sN}\nv_mov_b32 v11, s{sN}\nv_mov_b32 v12, s{sN}\nv_mov_b32 v13, s{sN}\ns_mov_b64 exec, 0xff')
    A(f'buffer_store_dwordx4 v[10:13], v9, {sr(aWS,4)}, s{aT} offen sc1\ns_mov_b64 exec, -1\ns_nop 1')
    A.label(L)
def a_flag_poll(base):
    L=A.newlabel('Lafp'); Ld=A.newlabel('Lafd')
    A(f's_cmp_lg_u32 s{aWv}, 0\ns_cbranch_scc1 {Ld}')
    A(f's_lshl_b32 s{aT}, s{aG}, 12\ns_add_u32 s{aT}, s{aT}, {base}\nv_lshlrev_b32 v2, 7, v0\ns_mov_b32 s{aCNT}, 0\ns_mov_b32 exec_hi, 0')
    A.label(L)
    A(f'buffer_load_dword v3, v2, {sr(aWS,4)}, s{aT} offen sc1\ns_waitcnt vmcnt(0)')
    A(f'v_cmp_ne_u32 vcc, s{sN}, v3\ns_cbranch_vccz {Ld}')
    A(f's_sleep 2\ns_add_u32 s{aCNT}, s{aCNT}, 1\ns_cmp_lt_u32 s{aCNT}, {SPIN}\ns_cbranch_scc1 {L}')
    A.label(Ld)
    A('s_mov_b64 exec, -1\ns_waitcnt lgkmcnt(0)\ns_barrier')
    A.vm=[]

def gen_A():
    A.label('L_A')
    A.vm=[]
    if ASTOP==9:
        A('s_sleep 127\ns_sleep 127\ns_sleep 127\ns_endpgm'); return
    if '--aprio' in sys.argv: A('s_setprio 3')
    stamp('A start')
    A('s_load_dwordx16 s[40:55], s[0:1], 0\ns_load_dwordx2 s[56:57], s[0:1], 64\ns_load_dwordx2 s[58:59], s[0:1], 104\ns_load_dwordx2 s[60:61], s[0:1], 120')
    A(f'v_lshrrev_b32 v1, 6, v0\nv_and_b32 v0, 63, v0\ns_nop 0\nv_readfirstlane_b32 s{aWv}, v1')
    A((f's_and_b32 s{aT}, s2, 7\ns_cmp_eq_u32 s{aT}, 7\ns_cbranch_scc1 L_exit\ns_lshl_b32 s{aT}, s{aT}, 5\ns_lshr_b32 s{aAI}, s2, 3\ns_add_u32 s{aAI}, s{aAI}, s{aT}\n' if LOC else f's_mov_b32 s{aAI}, s2\n')+f's_lshr_b32 s{aG}, s{aAI}, 5\ns_and_b32 s{aTB}, s{aAI}, 31\nv_lshlrev_b32 v9, 4, v0\nv_lshrrev_b32 v2, 3, v0\nv_and_b32 v3, 7, v0\nv_lshlrev_b32 v3, 4, v3')
    A(f's_lshr_b32 s{aC}, s{aWv}, 1\ns_and_b32 s{aHF}, s{aWv}, 1\ns_lshl_b32 s{aWB}, s{aWv}, 11\ns_lshl_b32 s{aT}, s{aWv}, 4\nv_add_u32 v2, s{aT}, v2')
    A('v_mul_u32_u24 v4, 896, v2\nv_add_u32 v4, v4, v3')
    A('v_lshlrev_b32 v5, 7, v2\nv_add_u32 v5, v5, v3')
    sUT=31
    A(f's_mul_i32 s{sUT}, s{aTB}, 57344\ns_lshl_b32 s{aT}, s{aG}, 7\ns_add_u32 s{sUT}, s{sUT}, s{aT}')
    A(f's_lshl_b32 s{aT}, s{aAI}, 1\ns_add_u32 s{aT}, s{aT}, s{aC}\ns_lshl_b32 s{aT}, s{aT}, 9\ns_lshl_b32 s{aT2}, s{aHF}, 8\ns_add_u32 s{aT}, s{aT}, s{aT2}\nv_lshlrev_b32 v6, 2, v0\nv_add_u32 v6, s{aT}, v6')
    A('s_waitcnt lgkmcnt(0)')
    srd(aU,40,1835008)
    for j in range(2):
        A(f's_add_u32 m0, s{aWB}, {LA_UIMG+j*1024}\ns_add_u32 s{aT}, s{sUT}, {j*7168}')
        A.vm_op(f'buffer_load_dwordx4 v4, {sr(aU,4)}, s{aT} offen lds',tag='ut')
    LA_PAR=17408
    A(f's_lshl_b32 s{aT}, s{aAI}, 10\nv_add_u32 v6, s{aT}, v9')
    Lq=[A.newlabel('Lpar') for _ in range(5)]
    for w in range(4):
        A(f's_cmp_lg_u32 s{aWv}, {w}\ns_cbranch_scc1 {Lq[w]}')
        A(f's_mov_b32 m0, {LA_PAR+w*1024}\ns_nop 0\nglobal_load_lds_dwordx4 v6, s[{42+2*w}:{43+2*w}]')
        if w<2: A(f's_mov_b32 m0, {LA_PAR+(w+4)*1024}\ns_nop 0\nglobal_load_lds_dwordx4 v6, s[{42+2*(w+4)}:{43+2*(w+4)}]')
        A(f's_branch {Lq[4]}')
        A.label(Lq[w])
    A.label(Lq[4])
    A.vm.append('par')
    srd(aWS,60,WS_SIZE); srd(aOUT,58,3670016)
    A(f's_load_dword s{sN}, s[60:61], {WS_EPOCH}')
    A(f's_lshl_b32 s{aT}, s{aAI}, 2\ns_add_u32 s54, s54, s{aT}\ns_addc_u32 s55, s55, 0\ns_load_dword s{aLD}, s[54:55], 0')
    A('v_mov_b32 v10, -1\nv_mov_b32 v11, -1\nv_mov_b32 v12, -1\nv_mov_b32 v13, -1')
    if LOC: A(f's_and_b32 s34, s{aAI}, 31\ns_lshl_b32 s34, s34, 3\ns_add_u32 s34, s34, s{aG}')
    else: A(f's_mov_b32 s34, s{aAI}')
    Lc=A.newlabel('Lclr')
    def clears():
        A.label(Lc)
        if not NOCLR:
            if LOC: A('s_lshr_b32 s35, s34, 3\ns_and_b32 s36, s34, 7')
            elif M16: A('s_bfe_u32 s35, s34, 0x10002\ns_lshl_b32 s35, s35, 4\ns_bfe_u32 s36, s34, 0x40003\ns_add_u32 s35, s35, s36\ns_and_b32 s36, s34, 3\ns_lshl_b32 s36, s36, 1\ns_lshr_b32 s37, s34, 7\ns_add_u32 s36, s36, s37')
            elif M2D: A('s_bfe_u32 s35, s34, 0x20001\ns_lshl_b32 s35, s35, 3\ns_bfe_u32 s36, s34, 0x30003\ns_add_u32 s35, s35, s36\ns_and_b32 s36, s34, 1\ns_lshl_b32 s36, s36, 2\ns_lshr_b32 s37, s34, 6\ns_add_u32 s36, s36, s37')
            else: A(f's_and_b32 s35, s34, 7\ns_lshl_b32 s35, s35, 2\ns_lshr_b32 s36, s34, 3\ns_and_b32 s36, s36, 3\ns_add_u32 s35, s35, s36\ns_lshr_b32 s36, s34, 5')
            A(f's_lshl_b32 s37, s36, 5\ns_add_u32 s37, s37, s35\ns_mul_i32 s37, s37, {PSTR}\ns_add_u32 s37, s37, s{aWB}\ns_add_u32 s37, s37, {WS_PART}')
            A(f'buffer_store_dwordx4 v[10:13], v9, {sr(aWS,4)}, s37 offen{LSC}\nbuffer_store_dwordx4 v[10:13], v9, {sr(aWS,4)}, s37 offen offset:1024{LSC}')
            Lr=A.newlabel('Lred')
            A(f's_cmp_lg_u32 s{aWv}, 0\ns_cbranch_scc1 {Lr}')
            A(f's_lshl_b32 s37, s36, 13\ns_lshl_b32 s38, s35, 8\ns_add_u32 s37, s37, s38\ns_add_u32 s37, s37, {WS_RED}\ns_mov_b64 exec, 0xffff')
            A(f'buffer_store_dwordx4 v[10:13], v9, {sr(aWS,4)}, s37 offen{LSC}\ns_mov_b64 exec, -1')
            A.label(Lr)
        if not LOC: A(f's_add_u32 s34, s34, 224\ns_cmp_lt_u32 s34, 256\ns_cbranch_scc1 {Lc}')
    A(f'v_lshrrev_b32 v7, 4, v0\nv_lshlrev_b32 v7, 3, v7\nv_bfe_u32 v8, v0, 2, 2\nv_add_u32 v7, v7, v8\nv_lshlrev_b32 v7, 7, v7\nv_and_b32 v8, 3, v0\nv_lshlrev_b32 v8, 3, v8\nv_add_u32 v7, v7, v8\ns_lshl_b32 s{aT}, s{aWv}, 5\nv_add_u32 v7, s{aT}, v7')
    A(f'v_and_b32 v8, 15, v0\ns_lshl_b32 s{aT}, s{aWv}, 4\nv_add_u32 v8, s{aT}, v8\nv_mul_u32_u24 v8, 144, v8\nv_lshrrev_b32 v14, 4, v0\nv_lshlrev_b32 v14, 4, v14\nv_add_u32 v8, v8, v14')
    A('v_mul_u32_u24 v14, 144, v2\nv_add_u32 v14, v14, v3')
    sTT=63
    A(f's_mul_i32 s{sTT}, s{aAI}, {TSTR}')
    A(f's_mul_i32 s{aT}, s{aWv}, {KT_W}\nv_lshlrev_b32 v57, 3, v0\nv_add_u32 v57, s{aT}, v57')
    A(f'v_and_b32 v58, 31, v0\nv_mul_u32_u24 v58, {KT_R}, v58\nv_lshrrev_b32 v59, 5, v0\nv_lshlrev_b32 v59, 4, v59\nv_add_u32 v58, v58, v59\nv_add_u32 v58, s{aT}, v58')
    A(f'v_mul_u32_u24 v1, {T_S}, v0\nv_add_u32 v1, {LA_T+2600}, v1\nv_mov_b32 v14, 0\ns_mov_b64 exec, 3\nds_write_b32 v1, v14\ns_mov_b64 exec, -1')
    A('v_mul_u32_u24 v14, 144, v2\nv_add_u32 v14, v14, v3')
    A.vm_drain()
    A('s_barrier')
    A(f's_lshl_b32 s{aT}, s{aC}, 9\ns_lshl_b32 s{aT2}, s{aHF}, 8\ns_add_u32 s{aT}, s{aT}, s{aT2}\nv_lshlrev_b32 v6, 2, v0\nv_add_u32 v6, s{aT}, v6')
    for k in range(6): A(f'ds_read_b32 v{32+k}, v6 offset:{17408+k*1024}')
    UKEEP='--ukeep' in sys.argv
    if UKEEP:
        A(f'v_and_b32 v1, 15, v0\ns_lshl_b32 s{aT}, s{aWv}, 4\nv_add_u32 v1, s{aT}, v1\nv_lshrrev_b32 v62, 4, v0\nv_lshlrev_b32 v62, 4, v62\nv_lshl_add_u32 v1, v1, 7, v62')
        A(f'ds_read_b128 v[184:187], v1 offset:{LA_UIMG}\nds_read_b128 v[188:191], v1 offset:{LA_UIMG+64}')
    for it in range(2):
        A(f'ds_read_b64_tr_b16 {vr(64+4*it,2)}, v7 offset:{LA_UIMG+it*4096}\nds_read_b64_tr_b16 {vr(66+4*it,2)}, v7 offset:{LA_UIMG+it*4096+512}')
    A('s_waitcnt lgkmcnt(0)')
    for it in range(2): A(f'ds_write_b128 v8, {vr(64+4*it,4)} offset:{LA_T2+64*it}')
    for j in range(2): A(f'ds_read_b128 {vr(72+4*j,4)}, v14 offset:{LA_T2+j*8*144}')
    A('s_waitcnt lgkmcnt(0)')
    for j in range(2):
        A(f's_add_u32 s{aT}, s{sTT}, {WS_UT+j*1024}')
        A.vm_op(f'buffer_store_dwordx4 {vr(72+4*j,4)}, v5, {sr(aWS,4)}, s{aT} offen'+LSC,tag='uts')
    clears()
    A('s_getpc_b64 s[64:65]')
    A.label('L_pc')
    A('s_add_u32 s64, s64, L_tab-L_pc\ns_addc_u32 s65, s65, 0')
    A(f's_lshl_b32 s{aT}, s{aWv}, 6\nv_add_u32 v1, s{aT}, v0\nv_lshlrev_b32 v6, 4, v1\nv_lshlrev_b32 v1, 3, v1\nv_add_u32 v1, {256*16}, v1')
    A.vm_op('global_load_dwordx4 v[172:175], v6, s[64:65]',tag='tab'); A.vm_op('global_load_dwordx2 v[176:177], v1, s[64:65]',tag='tab')
    stamp('A uT stored')
    if '--aprio' in sys.argv: A(f's_setprio {AP1}')
    A(f's_lshl_b32 s{aT}, s{aC}, 4\ns_lshr_b32 s{aLD}, s{aLD}, s{aT}\ns_lshl_b32 s{aLD}, s{aLD}, 16')
    A(f'v_mov_b32 v14, s{aLD}\nv_mul_f32 v14, {hex(LOG2E)}, v14\nv_exp_f32 v14, v14\ns_nop 0\nv_cvt_pk_bf16_f32 v14, v14, v14\nv_lshlrev_b32 v15, 16, v14')
    BS=[192,224]
    for st in range(2):
        B_=BS[st]
        for k in range(6):
            if st==0: A(f'v_lshlrev_b32 v{B_+k}, 16, v{32+k}')
            else: A(f'v_and_b32 v{B_+k}, 0xffff0000, v{32+k}')
        for k in range(4): A(f'v_mul_f32 v{B_+k}, v15, v{B_+k}')
    for st in range(2):
        B_=BS[st]
        A(f'v_mul_f32 v60, v{B_+5}, v{B_+3}\nv_mul_f32 v61, v{B_+5}, v{B_+2}\nv_fma_f32 v{B_+6}, v{B_+4}, v{B_+2}, -v60\nv_fma_f32 v{B_+7}, -v{B_+4}, v{B_+3}, -v61')
    for off,k,conj in ((10,8,False),(8,1,True),(12,256,True)):
        for st in range(2):
            B_=BS[st]; t=60+2*st
            A(f'v_mul_f32 v{t}, {f32(k*math.log2(math.e))}, v{B_}\nv_mul_f32 v{t+1}, {f32(k/(2*math.pi))}, v{B_+1}')
        for st in range(2):
            t=60+2*st
            A(f'v_exp_f32 v{t}, v{t}\nv_fract_f32 v{t+1}, v{t+1}')
        for st in range(2):
            B_=BS[st]; t=60+2*st
            A(f'v_cos_f32 v{B_+off}, v{t+1}\nv_sin_f32 v{B_+off+1}, v{t+1}')
        for st in range(2):
            B_=BS[st]; t=60+2*st
            A(f'v_mul_f32 v{B_+off}, v{t}, v{B_+off}')
            A(f'v_mul_f32 v{B_+off+1}, v{t}, v{B_+off+1}' if not conj else f'v_mul_f32_e64 v{B_+off+1}, -v{t}, v{B_+off+1}')
    def cm2(d,z,m):
        if '--nokv' in sys.argv: return
        for st in range(2):
            B_=BS[st]
            A(f'v_mul_f32 v{B_+30}, v{B_+z+1}, v{B_+m+1}\nv_mul_f32 v{B_+d+1}, v{B_+z+1}, v{B_+m}')
        for st in range(2):
            B_=BS[st]
            A(f'v_fmac_f32 v{B_+d+1}, v{B_+z}, v{B_+m+1}\nv_fma_f32 v{B_+d}, v{B_+z}, v{B_+m}, -v{B_+30}')
    cm2(14,12,12)
    cm2(16,14,14)
    LATEF='--latef' in sys.argv
    if LATEF:
        A('s_waitcnt lgkmcnt(0)\ns_barrier')
    else:
        A.vm_drain()
        A('s_barrier')
        A(f's_add_u32 s{sN}, s{sN}, {NONCE_C}')
        a_flag_store(WS_FLAGA1)
        stamp('A flag1 set')
    if ASTOP==1:
        prof_flush(aWS,aWv,256); A('s_endpgm'); return
    rot=[0]
    WT=[40,42,44,46,48,50,52,54]
    def wr2(offs,row):
        t=WT[rot[0]%len(WT)]; rot[0]+=1
        A(f'v_cvt_pk_bf16_f32 v{t}, v{BS[0]+offs}, v{BS[0]+offs+1}\nv_cvt_pk_bf16_f32 v{t+1}, v{BS[1]+offs}, v{BS[1]+offs+1}')
        if '--nokw' not in sys.argv: A(f'ds_write_b64 v57, {vr(t,2)} offset:{row*KT_R}')
    A('v_mov_b32 v54, 0x3f80\nv_mov_b32 v55, 0x3f80\nds_write_b64 v57, v[54:55] offset:0')
    wr2(10,1)
    cm2(18,10,10); wr2(18,2)
    for j in range(3,32):
        cm2(18,18,10); wr2(18,j)
    A('s_waitcnt lgkmcnt(0)')
    for kk in range(16): A(f'ds_read_b128 {vr(64+4*kk,4)}, v58 offset:{32*kk}')
    stamp('A E done')
    if LATEF:
        A.vm_drain()
        A('s_barrier')
        A(f's_add_u32 s{sN}, s{sN}, {NONCE_C}')
        a_flag_store(WS_FLAGA1)
        stamp('A flag1 set')
    if ASTOP==2:
        prof_flush(aWS,aWv,256); A('s_endpgm'); return
    A('s_waitcnt lgkmcnt(0)')
    wr2(6,0)
    cm2(18,6,8); wr2(18,1)
    cm2(20,18,8); wr2(20,2)
    cm2(18,20,8); wr2(18,3)
    cm2(22,18,8); wr2(22,4)
    cm2(18,22,8); wr2(18,5)
    cm2(24,18,8); wr2(24,6)
    cm2(18,24,8); wr2(18,7)
    for r,src in enumerate((6,20,22,24)):
        cm2(18,src,12); wr2(18,8+r)
    cm2(26,6,14); wr2(26,12)
    cm2(28,22,14); wr2(28,13)
    cm2(26,26,12); wr2(26,14)
    cm2(28,28,12); wr2(28,15)
    cm2(18,6,16); wr2(18,16)
    for r in range(17,21):
        cm2(18,18,12); wr2(18,r)
    a_flag_poll(WS_FLAGA1)
    A(f'v_lshrrev_b32 v2, 3, v0\nv_mul_u32_u24 v2, {TSTR}, v2\nv_and_b32 v3, 7, v0\nv_lshlrev_b32 v3, 4, v3\nv_add_u32 v60, v2, v3')
    A(f's_lshl_b32 s{aT}, s{aG}, 5\ns_lshl_b32 s{aT2}, s{aHF}, 4\ns_add_u32 s{aT}, s{aT}, s{aT2}\ns_mul_i32 s{aT}, s{aT}, {TSTR}')
    A(f's_lshl_b32 s{aT2}, s{aAI}, 1\ns_add_u32 s{aT2}, s{aT2}, s{aC}\ns_and_b32 s{aT2}, s{aT2}, 63\ns_lshl_b32 s{aT2}, s{aT2}, 7\ns_add_u32 s62, s{aT}, s{aT2}')
    A(f's_mul_i32 s35, s{aC}, {UC_S}\ns_lshl_b32 s{aT2}, s{aHF}, 11\ns_add_u32 s35, s35, s{aT2}\ns_add_u32 s35, s35, {LA_UC+UPAD}')
    for j in range(2):
        A(f's_add_u32 m0, s35, {j*1024}\ns_add_u32 s{aT}, s62, {WS_UT+j*8*TSTR}')
        A.vm_op(f'buffer_load_dwordx4 v60, {sr(aWS,4)}, s{aT} offen sc1 lds',tag='uc')
    A('v_mov_b32 v10, 0\nv_mov_b32 v11, 0\nv_mov_b32 v12, 0\nv_mov_b32 v13, 0')
    A(f's_mul_i32 s{aT}, s{aC}, {UC_S}\ns_add_u32 s{aT}, s{aT}, {LA_UC}\nv_add_u32 v2, s{aT}, v9\ns_mov_b32 exec_lo, 0x3fffffff\ns_mov_b32 exec_hi, 0\nds_write_b128 v2, v[10:13]\ns_mov_b64 exec, -1')
    A('s_waitcnt lgkmcnt(0)')
    for g in range(4):
        for k in range(4): A(f'ds_read_b128 {vr(128+16*(g&1)+4*k,4)}, v58 offset:{32*(4*g+k)}')
        if g>=1:
            for k in range(4):
                kk=4*(g-1)+k
                A(f's_waitcnt lgkmcnt({7-k})')
                A(f'v_mfma_f32_32x32x16_bf16 v[16:31], {vr(128+16*((g-1)&1)+4*k,4)}, {vr(64+4*kk,4)}, '+('0' if kk==0 else 'v[16:31]'))
    for k in range(4):
        kk=12+k
        A(f's_waitcnt lgkmcnt({3-k})')
        A(f'v_mfma_f32_32x32x16_bf16 v[16:31], {vr(128+16+4*k,4)}, {vr(64+4*kk,4)}, v[16:31]')
    A.vm_wait('tab')
    A(f'v_mov_b32 v1, {LA_T}')
    for i in range(11):
        r=172+i//2 if i<8 else 176+(i-8)//2
        A(f'v_add_u32_sdwa v{160+i}, v1, v{r} dst_sel:DWORD dst_unused:UNUSED_PAD src0_sel:DWORD src1_sel:WORD_{i%2}')
    A(f's_mul_i32 s{aT}, s{aC}, {T_S}\ns_add_u32 s{aT}, s{aT}, {LA_T}')
    A('v_and_b32 v3, 31, v0\nv_lshrrev_b32 v4, 5, v0\nv_cmp_eq_u32 vcc, 1, v4')
    A(f'v_lshlrev_b32 v10, 5, v3\nv_lshlrev_b32 v6, 4, v4\nv_add_u32 v10, v10, v6\nv_add_u32 v10, s{aT}, v10')
    A('v_lshlrev_b32 v6, 4, v3\nv_add_u32 v6, 1024, v6\nv_lshlrev_b32 v7, 3, v3\nv_add_u32 v7, 1536, v7\nv_cndmask_b32 v6, v6, v7, vcc')
    A('v_add_u32 v7, 8, v6\nv_add_u32 v8, 256, v6\nv_cndmask_b32 v7, v7, v8, vcc')
    A(f'v_add_u32 v6, s{aT}, v6\nv_add_u32 v7, s{aT}, v7')
    A('v_lshlrev_b32 v8, 2, v3\nv_add_u32 v8, 2048, v8\nv_mov_b32 v14, 2560\nv_cndmask_b32 v8, v8, v14, vcc')
    A(f'v_add_u32 v8, s{aT}, v8')
    A(f'v_lshrrev_b32 v3, 3, v0\ns_lshl_b32 s{aT}, s{aWv}, 4\nv_add_u32 v3, s{aT}, v3\nv_and_b32 v4, 7, v0\nv_lshlrev_b32 v4, 4, v4')
    A('v_mul_u32_u24 v5, 896, v3\nv_add_u32 v5, v5, v4\nv_lshlrev_b32 v61, 7, v3\nv_add_u32 v61, v61, v4')
    A.nop(2)
    stamp('A kgen done')
    A(f's_mul_i32 s{aT}, s{aWv}, {KT_W}\nv_add_u32 v2, s{aT}, v9\ns_xor_b32 s{aT}, s{aWv}, 1\ns_mul_i32 s{aT}, s{aT}, {KT_W}\nv_add_u32 v12, s{aT}, v9')
    Lh1=A.newlabel('Lkh1'); Lh2=A.newlabel('Lkh2')
    A(f's_cmp_lg_u32 s{aHF}, 0\ns_cbranch_scc1 {Lh1}')
    A('ds_write_b128 v2, v[24:27]\ns_waitcnt lgkmcnt(0)\ns_barrier')
    A('ds_read_b128 v[64:67], v12\nds_read_b128 v[68:71], v12 offset:1024\ns_waitcnt lgkmcnt(0)')
    for k in range(8): A(f'v_add_f32 v{16+k}, v{16+k}, v{64+k}')
    A('ds_write_b128 v10, v[16:19]\nds_write_b64 v6, v[20:21]\nds_write_b64 v7, v[22:23]')
    A(f's_branch {Lh2}')
    A.label(Lh1)
    A('ds_write_b128 v2, v[16:19]\nds_write_b128 v2, v[20:23] offset:1024\ns_waitcnt lgkmcnt(0)\ns_barrier')
    A('ds_read_b128 v[64:67], v12\ns_waitcnt lgkmcnt(0)')
    A('v_add_f32 v24, v24, v64\nv_add_f32 v25, v25, v65\nv_add_f32 v26, v26, v66\nv_add_f32 v27, v27, v67')
    A('s_mov_b32 exec_hi, 1\nds_write_b32 v8, v24\ns_mov_b32 exec_hi, 0')
    A('ds_write_b32 v8, v25 offset:128\nds_write_b32 v8, v26 offset:256\nds_write_b32 v8, v27 offset:384\ns_mov_b32 exec_hi, -1')
    A.label(Lh2)
    A(f's_lshl_b32 s{aT}, s{aWv}, 6\nv_add_u32 v2, s{aT}, v0\nv_lshlrev_b32 v4, 4, v2')
    A('s_waitcnt lgkmcnt(0)')
    stamp('A adds done')
    A('s_barrier')
    for c in range(2):
        for i in range(11): A(f'ds_read_b32 v{64+16*c+i}, v{160+i} offset:{c*T_S}')
    for j in range(2):
        if UKEEP: continue
        A(f's_add_u32 m0, s{aWB}, {LA_UIMG2+j*1024}\ns_add_u32 s{aT}, s{sUT}, {j*7168}')
        A.vm_op(f'buffer_load_dwordx4 v5, {sr(aU,4)}, s{aT} offen lds',tag='ut2')
    A(f'v_lshrrev_b32 v6, 4, v0\nv_lshlrev_b32 v6, 4, v6\ns_lshl_b32 s{aT}, s{aG}, 7\nv_add_u32 v6, s{aT}, v6')
    DR=224 if UKEEP else 184
    A.vm_op(f'global_load_dwordx4 {vr(DR,4)}, v6, s[56:57]',tag='d'); A.vm_op(f'global_load_dwordx4 {vr(DR+4,4)}, v6, s[56:57] offset:64',tag='d')
    A(f'v_lshrrev_b32 v7, 1, v0\nv_and_b32 v8, 3, v7\nv_mul_u32_u24 v8, {C_M}, v8\nv_lshrrev_b32 v7, 2, v7\nv_mul_u32_u24 v7, {C_CH}, v7\nv_add_u32 v8, v8, v7\nv_and_b32 v7, 1, v0\nv_lshlrev_b32 v7, 4, v7\nv_add_u32 v8, v8, v7')
    A('v_mov_b32 v10, 0\nv_mov_b32 v11, 0\nv_mov_b32 v12, 0\nv_mov_b32 v13, 0\ns_mov_b64 exec, 0xffff')
    A(f'ds_write_b128 v8, v[10:13] offset:{LA_C+4096}\ns_mov_b64 exec, -1')
    for c in range(2):
        A(f's_waitcnt lgkmcnt({12 if c==0 else 4})')
        g=64+16*c
        for m in range(4):
            for d in range(4): A(f'v_cvt_pk_bf16_f32 v{96+4*m+d}, v{g+m+2*d}, v{g+m+2*d+1}')
        for m in range(4): A(f'ds_write_b128 v4, {vr(96+4*m,4)} offset:{LA_C+c*C_CH+m*C_M}')
    stamp('A copies issued')
    A('v_and_b32 v2, 15, v0\nv_lshrrev_b32 v3, 4, v0\nv_and_b32 v5, 1, v3\nv_lshrrev_b32 v6, 1, v3')
    A(f'v_sub_u32 v7, 3, v2\nv_and_b32 v7, 3, v7')
    A(f'v_lshlrev_b32 v8, 4, v6\nv_add_u32 v8, v8, v2\nv_lshlrev_b32 v14, 3, v5\nv_sub_u32 v8, v8, v14\nv_add_u32 v8, v8, v7')
    A(f'v_sub_u32 v8, {XB}, v8\nv_lshlrev_b32 v8, 1, v8\nv_mul_u32_u24 v14, {C_M}, v7\nv_add_u32 v8, v8, v14')
    A(f's_mul_i32 s{aT}, s{aC}, {C_CH}\ns_lshl_b32 s{aT2}, s{aHF}, 8\ns_sub_u32 s{aT}, s{aT}, s{aT2}\ns_add_u32 s{aT}, s{aT}, {LA_C-64*59}\nv_add_u32 v48, s{aT}, v8')
    A('v_lshlrev_b32 v7, 4, v5\nv_lshlrev_b32 v8, 5, v6\nv_sub_u32 v7, v7, v8\nv_lshlrev_b32 v14, 5, v2\nv_add_u32 v14, v14, v7')
    A(f's_mul_i32 s{aT}, s{aC}, {UC_S}\ns_sub_u32 s{aT}, s{aT}, s{aT2}\ns_add_u32 s{aT}, s{aT}, {LA_UC+UPAD-192}\nv_add_u32 v56, s{aT}, v14')
    A.vm_wait('uc',' lgkmcnt(0)')
    A('s_barrier')
    stamp('A conv start')
    AB=[64,128]; BB=[96,192]
    def rdconv(rr):
        s_=rr&1
        for w in range(8): A(f'ds_read_b128 {vr(BB[s_]+4*w,4)}, v56 offset:{512*w+64*(3-rr)}')
        for q in range(8):
            o=64*(59-(8*q+rr))
            A(f'ds_read_b64 {vr(AB[s_]+4*q,2)}, v48 offset:{o}\nds_read_b64 {vr(AB[s_]+4*q+2,2)}, v48 offset:{o+8}')
    def rdlist(rr):
        s_=rr&1; L=[]
        for w in range(8): L.append(f'ds_read_b128 {vr(BB[s_]+4*w,4)}, v56 offset:{512*w+64*(3-rr)}')
        for q in range(8):
            o=64*(59-(8*q+rr))
            L.append(f'ds_read_b64 {vr(AB[s_]+4*q,2)}, v48 offset:{o}'); L.append(f'ds_read_b64 {vr(AB[s_]+4*q+2,2)}, v48 offset:{o+8}')
        return L
    for x in rdlist(0): A(x)
    for rr in range(4):
        s_=rr&1
        A('s_waitcnt lgkmcnt(0)')
        nxt=rdlist(rr+1) if rr<3 else []
        n=0
        for q in range(8):
            for w in range(8-q):
                t=q+w
                cin='0' if (rr==0 and q==0) else vr(16+4*t,4)
                A(f'v_mfma_f32_16x16x32_bf16 {vr(16+4*t,4)}, {vr(AB[s_]+4*q,4)}, {vr(BB[s_]+4*w,4)}, {cin}')
                n+=1
                if nxt and n>=2: A(nxt.pop(0))
        assert not nxt
    stamp('A conv done')
    if AP2!=AP1: A(f's_setprio {AP2}')
    A('s_barrier')
    A(f's_lshl_b32 s{aT}, s{aWv}, 12\ns_add_u32 s{aT}, s{aT}, {LA_EX}\nv_add_u32 v2, s{aT}, v9')
    A(f's_xor_b32 s{aT}, s{aWv}, 1\ns_lshl_b32 s{aT}, s{aT}, 12\ns_add_u32 s{aT}, s{aT}, {LA_EX}\nv_add_u32 v5, s{aT}, v9')
    A(f'v_and_b32 v3, 15, v0\nv_lshlrev_b32 v3, 5, v3\nv_lshrrev_b32 v4, 4, v0\nv_lshlrev_b32 v4, 3, v4\nv_add_u32 v3, v3, v4\ns_add_u32 s{aT}, s{aWB}, {LA_Y}\nv_add_u32 v3, s{aT}, v3\nv_add_u32 v4, s{aT}, v9')
    L1=A.newlabel('Lcx'); L2=A.newlabel('Lcy')
    def fin(keep,send):
        for k in range(4): A(f'ds_write_b128 v2, {vr(send+4*k,4)} offset:{k*1024}')
        A('s_waitcnt lgkmcnt(0)\ns_barrier')
        for k in range(4): A(f'ds_read_b128 {vr(64+4*k,4)}, v5 offset:{k*1024}')
        A('s_waitcnt lgkmcnt(0)')
        for k in range(16): A(f'v_add_f32 v{keep+k}, v{keep+k}, v{64+k}')
        for k in range(8): A(f'v_cvt_pk_bf16_f32 v{64+k}, v{keep+2*k}, v{keep+1+2*k}')
    A(f's_cmp_lg_u32 s{aHF}, 0\ns_cbranch_scc1 {L1}')
    fin(16,32)
    A(f's_branch {L2}')
    A.label(L1)
    fin(32,16)
    A.label(L2)
    for k in range(4): A(f'ds_write_b64 v3, {vr(64+2*k,2)} offset:{512*k}')
    A('ds_read_b128 v[72:75], v4\nds_read_b128 v[76:79], v4 offset:1024')
    A(f's_add_u32 s{aT}, s62, {WS_YT}\ns_add_u32 s{aT2}, s62, {WS_YT+8*TSTR}')
    A('s_waitcnt lgkmcnt(0)')
    A.vm_op(f'buffer_store_dwordx4 v[72:75], v60, {sr(aWS,4)}, s{aT} offen'+LSC,tag='ys')
    A.vm_op(f'buffer_store_dwordx4 v[76:79], v60, {sr(aWS,4)}, s{aT2} offen'+LSC,tag='ys')
    A(f'v_lshrrev_b32 v7, 4, v0\nv_lshlrev_b32 v7, 3, v7\nv_bfe_u32 v8, v0, 2, 2\nv_add_u32 v7, v7, v8\nv_lshlrev_b32 v7, 7, v7\nv_and_b32 v8, 3, v0\nv_lshlrev_b32 v8, 3, v8\nv_add_u32 v7, v7, v8\ns_lshl_b32 s{aT}, s{aWv}, 5\nv_add_u32 v7, s{aT}, v7')
    A(f'v_and_b32 v8, 15, v0\ns_lshl_b32 s{aT}, s{aWv}, 4\nv_add_u32 v8, s{aT}, v8\nv_lshlrev_b32 v14, 7, v8\nv_lshrrev_b32 v6, 4, v0\nv_lshlrev_b32 v6, 4, v6\nv_add_u32 v14, v14, v6')
    LA_OIMG=16384
    A(f'v_mul_u32_u24 v50, 144, v8\nv_add_u32 v50, v50, v6\nv_add_u32 v50, {LA_OIMG}, v50')
    A(f'v_lshrrev_b32 v51, 3, v0\ns_lshl_b32 s{aT}, s{aWv}, 4\nv_add_u32 v51, s{aT}, v51\nv_and_b32 v52, 7, v0\nv_lshlrev_b32 v52, 4, v52')
    A(f'v_mul_u32_u24 v53, 144, v51\nv_add_u32 v53, v53, v52\nv_add_u32 v53, {LA_OIMG}, v53')
    A(f's_lshl_b32 s{aT}, s{aTB}, 6\nv_add_u32 v51, s{aT}, v51\nv_mul_u32_u24 v51, 1792, v51\nv_add_u32 v51, v51, v52\ns_lshl_b32 s34, s{aG}, 7\ns_add_u32 s35, s34, {8*1792}')
    A.vm_wait('d')
    for it in range(2):
        for k in range(4):
            A(f'v_lshlrev_b32 v{192+8*it+2*k}, 16, v{DR+4*it+k}\nv_and_b32 v{193+8*it+2*k}, 0xffff0000, v{DR+4*it+k}')
    A.vm_drain()
    A('s_barrier')
    a_flag_store(WS_FLAGA2)
    stamp('A flag2 set')
    if not UKEEP:
        for it in range(2): A(f'ds_read_b128 {vr(72+4*it,4)}, v14 offset:{LA_UIMG2+64*it}')
        A('s_waitcnt lgkmcnt(0)')
    UR=184 if UKEEP else 72
    for it in range(2):
        for k in range(4):
            A(f'v_lshlrev_b32 v{208+8*it+2*k}, 16, v{UR+4*it+k}\nv_and_b32 v{209+8*it+2*k}, 0xffff0000, v{UR+4*it+k}')
    for k in range(16): A(f'v_mul_f32 v{208+k}, v{208+k}, v{192+k}')
    a_flag_poll(WS_FLAGA2)
    stamp('A flag2 seen')
    for j in range(2):
        A(f's_add_u32 m0, s{aWB}, {LA_YIMG+j*1024}\ns_add_u32 s{aT}, s{sTT}, {WS_YT+j*1024}')
        A.vm_op(f'buffer_load_dwordx4 v61, {sr(aWS,4)}, s{aT} offen sc1 lds',tag='yt')
    A.vm_drain()
    A('s_barrier')
    for it in range(2):
        A(f'ds_read_b64_tr_b16 {vr(64+4*it,2)}, v7 offset:{LA_YIMG+it*4096}\nds_read_b64_tr_b16 {vr(66+4*it,2)}, v7 offset:{LA_YIMG+it*4096+512}')
    for it in range(2):
        A(f's_waitcnt lgkmcnt({2*(1-it)+it})')
        for k in range(4):
            y=64+4*it+k
            A(f'v_lshlrev_b32 v96, 16, v{y}\nv_and_b32 v97, 0xffff0000, v{y}')
            A(f'v_add_f32 v96, v96, v{208+8*it+2*k}\nv_add_f32 v97, v97, v{209+8*it+2*k}')
            A(f'v_cvt_pk_bf16_f32 v{104+4*it+k}, v96, v97')
        A(f'ds_write_b128 v50, {vr(104+4*it,4)} offset:{64*it}')
    A('ds_read_b128 v[112:115], v53\nds_read_b128 v[116:119], v53 offset:1152')
    A(f's_waitcnt lgkmcnt(1)\nbuffer_store_dwordx4 v[112:115], v51, {sr(aOUT,4)}, s34 offen'+OSC+f'\ns_waitcnt lgkmcnt(0)\nbuffer_store_dwordx4 v[116:119], v51, {sr(aOUT,4)}, s35 offen'+OSC)
    stamp('A end')
    prof_flush(aWS,aWv,256)
    A('s_endpgm')

def main():
    hdr=f'''; S4 conv (A) + hedgehog linear attention (B), single launch, 256 B-workgroups + 224 A-workgroups
; @launch grid=({NB+NA},1,1) block=(256,1,1) lds={LDS_BYTES}
.amdgcn_target "amdgcn-amd-amdhsa--gfx950"
.text
.globl {KN}
.p2align 8
.type {KN},@function
{KN}:
'''
    if '--pf' in sys.argv:
        A('s_getpc_b64 s[4:5]')
        A.label('L_pf')
        A(f's_lshr_b32 s6, s2, 3\ns_and_b32 s6, s6, 31\ns_lshl_b32 s6, s6, 10\nv_and_b32 v1, 7, v0\nv_lshlrev_b32 v1, 7, v1\nv_add_u32 v1, s6, v1\nv_min_u32 v1, L_end-'+KN+'-4, v1')
        A('s_sub_u32 s4, s4, L_pf-'+KN+'\ns_subb_u32 s5, s5, 0')
        A(f's_cmp_ge_u32 s2, {NB+NA}\ns_cbranch_scc1 L_exit')
        A('v_cmp_gt_u32 vcc, 8, v0\ns_and_saveexec_b64 s[6:7], vcc\ns_cbranch_execz L_pfd\nglobal_load_dword v255, v1, s[4:5]')
        A.label('L_pfd')
        A('s_mov_b64 exec, -1')
    A(f's_cmp_ge_u32 s2, {NB+NA}\ns_cbranch_scc1 L_exit\n'+(f's_cmp_lt_u32 s2, {NB}\ns_cbranch_scc1 L_B\ns_sub_u32 s2, s2, {NB}\ns_branch L_A' if '--bfirst' in sys.argv else f's_cmp_lt_u32 s2, {NA}\ns_cbranch_scc1 L_A\ns_sub_u32 s2, s2, {NA}'))
    if NOB: A('s_endpgm')
    else: gen_B()
    if NOA: A.label('L_A'); A('s_endpgm')
    else: gen_A()
    A.label('L_exit'); A('s_endpgm')
    tail=f'''.section .rodata,"a"
.p2align 6
.amdhsa_kernel {KN}
  .amdhsa_next_free_vgpr 256
  .amdhsa_next_free_sgpr 102
  .amdhsa_accum_offset 256
  .amdhsa_group_segment_fixed_size 0
  .amdhsa_kernarg_size 128
  .amdhsa_user_sgpr_count 2
  .amdhsa_user_sgpr_kernarg_segment_ptr 1
  .amdhsa_system_sgpr_workgroup_id_x 1
.end_amdhsa_kernel
'''
    body=A.text()
    data=''
    if not NOA:
        import numpy as np
        def idx(l):
            if l<0 or l>2047: return 650
            u=np.array([float(l)],np.float32).view(np.uint32)[0]
            bits=int((int(u)+0x7FFF+((int(u)>>16)&1))>>16)
            return l if l<128 else bits-17024
        t4=[];t2=[]
        for t in range(256):
            g=[4*idx(2047-8*t-i) for i in range(11)]+[0]
            t4+=g[:8]; t2+=g[8:12]
        data='.p2align 4\nL_tab:\n'
        for arr in (t4,t2):
            for i in range(0,len(arr),16): data+='  .short '+', '.join(str(x) for x in arr[i:i+16])+'\n'
    data+='L_end:\n'
    open(OUTF,'w').write(hdr+body+data+tail)
    import subprocess
    r=subprocess.run(['clang','-x','assembler','-target','amdgcn-amd-amdhsa','-mcpu=gfx950','-c',OUTF,'-o','chk.o'],capture_output=True,text=True)
    if r.returncode: print('ASM ERRORS:\n'+r.stderr[:3000])
    errs=lint.lint(body)
    for e in errs: print('LINT',e)
    print('wrote',OUTF,len(body.split(chr(10))),'lines;',len(errs),'lint findings')
main()
```
